```python
import torch

def _softmax(x, axis=-1):
    return torch.softmax(x, dim=axis)
def _gelu(x):
    return torch.nn.functional.gelu(x, approximate="tanh")
def _silu(x):
    return torch.nn.functional.silu(x)
def _sigmoid(x):
    return torch.sigmoid(x)
def _layernorm(x, axis=-1, eps=1e-5):
    m = x.mean(dim=axis, keepdim=True)
    v = x.var(dim=axis, keepdim=True, unbiased=False)
    return (x - m) / torch.sqrt(v + eps)
def _scatter_add(tgt, idx, src, axis=0):
    return tgt.clone().index_add_(axis, idx, src)
def _segment_sum(src, seg, n):
    out = torch.zeros((n,) + src.shape[1:], dtype=src.dtype)
    return out.index_add_(0, seg, src)
def _pad(x, pw):
    flat = tuple(v for pair in reversed(pw) for v in pair)
    return torch.nn.functional.pad(x, flat)

kernel_name = 'concat_heads__mha_block_cached__gqa_block_cached__near_ridge'

def setup_inputs():

    _w = (lambda a: (lambda t: t.to(torch.bfloat16) if t.is_floating_point() else t)(torch.as_tensor(a)))
    def _A_setup():
        B, Sq, D = 8, 288, 576
        H, Sk, Dh = 32, 1024, 128
        return {
            "x": _w((lambda *s: torch.randn(*s, dtype=torch.bfloat16) * 0.8)(B, Sq, D)),
            "k_cache": _w((lambda *s: torch.randn(*s, dtype=torch.bfloat16) * 0.8)(B, H, Sk, Dh)),
            "v_cache": _w((lambda *s: torch.randn(*s, dtype=torch.bfloat16) * 0.05)(B, H, Sk, Dh)),
            "wq": _w((lambda *s: torch.randn(*s, dtype=torch.bfloat16) * 0.8)(D, H * Dh) * (D ** -0.5)),
            "wo": _w((lambda *s: torch.randn(*s, dtype=torch.bfloat16) * 0.05)(H * Dh, D) * ((H * Dh) ** -0.5)),
        }
    _A_in = _A_setup()

    def _B_setup():
        B, Sq, D = 8, 288, 576
        Hq, Hkv, Sk, Dh = 32, 32, 1024, 128
        assert Hq % Hkv == 0, (Hq, Hkv)
        return {
            "x": _w((lambda *s: torch.randn(*s, dtype=torch.bfloat16) * 0.8)(B, Sq, D)),
            "k_cache": _w((lambda *s: torch.randn(*s, dtype=torch.bfloat16) * 0.8)(B, Hkv, Sk, Dh)),
            "v_cache": _w((lambda *s: torch.randn(*s, dtype=torch.bfloat16) * 0.05)(B, Hkv, Sk, Dh)),
            "wq": _w((lambda *s: torch.randn(*s, dtype=torch.bfloat16) * 0.8)(D, Hq * Dh) * (D ** -0.5)),
            "wo": _w((lambda *s: torch.randn(*s, dtype=torch.bfloat16) * 0.05)(Hq * Dh, D) * ((Hq * Dh) ** -0.5)),
        }
    _B_in = _B_setup()

    return {
        "A_x": _A_in["x"],
        "A_k_cache": _A_in["k_cache"],
        "A_v_cache": _A_in["v_cache"],
        "A_wq": _A_in["wq"],
        "A_wo": _A_in["wo"],
        "B_x": _B_in["x"],
        "B_k_cache": _B_in["k_cache"],
        "B_v_cache": _B_in["v_cache"],
        "B_wq": _B_in["wq"],
        "B_wo": _B_in["wo"],
    }

def reference(A_x, A_k_cache, A_v_cache, A_wq, A_wo, B_x, B_k_cache, B_v_cache, B_wq, B_wo):
    def _A_ref(x, k_cache, v_cache, wq, wo):
        B, Sq, D = x.shape
        H, Dh = 32, 128
        q = (lambda x, *d: x.permute(*d))((x @ wq).reshape(B, Sq, H, Dh), 0, 2, 1, 3)
        scores = torch.einsum("bhqd,bhkd->bhqk", q, k_cache) * (Dh ** -0.5)
        p = _softmax(scores, axis=-1)
        o = torch.einsum("bhqk,bhkd->bhqd", p, v_cache)
        return (lambda x, *d: x.permute(*d))(o, 0, 2, 1, 3).reshape(B, Sq, H * Dh) @ wo

    def _B_ref(x, k_cache, v_cache, wq, wo):
        B, Sq, D = x.shape
        Hq, Dh = 32, 128
        Hkv = k_cache.shape[1]
        rep = Hq // Hkv
        q = (lambda x, *d: x.permute(*d))((x @ wq).reshape(B, Sq, Hq, Dh), 0, 2, 1, 3)
        k = (lambda x, n, axis: torch.repeat_interleave(x, n, dim=axis))(k_cache, rep, axis=1)
        v = (lambda x, n, axis: torch.repeat_interleave(x, n, dim=axis))(v_cache, rep, axis=1)
        scores = torch.einsum("bhqd,bhkd->bhqk", q, k) * (Dh ** -0.5)
        p = _softmax(scores, axis=-1)
        o = torch.einsum("bhqk,bhkd->bhqd", p, v)
        return (lambda x, *d: x.permute(*d))(o, 0, 2, 1, 3).reshape(B, Sq, Hq * Dh) @ wo

    a = _A_ref(A_x, A_k_cache, A_v_cache, A_wq, A_wo)
    b = _B_ref(B_x, B_k_cache, B_v_cache, B_wq, B_wo)
    return torch.concatenate([a, b], axis=-1)
```

```python
import re

class I:
    __slots__ = ("t", "k", "id", "needs", "key")
    def __init__(self, t, k=None, id=None, needs=None, key=None):
        self.t = t
        self.k = k or kind_of(t)
        self.id = id
        self.needs = list(needs) if needs else []
        self.key = key
    def __repr__(self):
        return self.t

TRANS = ("v_exp_f32", "v_log_f32", "v_rcp_f32", "v_rsq_f32", "v_sqrt_f32")
def kind_of(t):
    op = t.split()[0]
    if op.endswith(":"): return "l"
    if op.startswith("."): return "x"
    if op.startswith(";"): return "x"
    if op.startswith("v_mfma"): return "m"
    if op in TRANS: return "e"
    if op.startswith("v_"): return "v"
    if op.startswith("ds_"): return "ds"
    if op.startswith("buffer_") or op.startswith("global_"): return "vm"
    if op == "s_waitcnt": return "w"
    if op == "s_barrier": return "b"
    if op.startswith("s_cbranch") or op == "s_branch": return "br"
    if op.startswith("s_"): return "s"
    raise ValueError(t)

def R(k, a, n=1):
    return f"{k}{a}" if n == 1 else f"{k}[{a}:{a+n-1}]"

def mfma(d, a, b, c=None):
    cs = R(d[0], d[1], 4) if c is None else ("0" if c == 0 else R(c[0], c[1], 4))
    return f"v_mfma_f32_16x16x32_bf16 {R(d[0], d[1], 4)}, {R(a[0], a[1], 4)}, {R(b[0], b[1], 4)}, {cs}"

class WaitState:
    def __init__(self):
        self.q = {"ds": [], "vm": []}
        self.done = {"ds": 0, "vm": 0}
        self.pos = {}
    def issue(self, ins):
        q = self.q[ins.k]
        q.append(ins.id)
        if ins.id is not None:
            self.pos[ins.id] = (ins.k, len(q))
    def need(self, ids):
        want = {}
        for i in ids:
            if i not in self.pos:
                raise KeyError(f"need of un-issued op {i}")
            k, p = self.pos[i]
            if p > self.done[k]:
                want[k] = max(want.get(k, 0), p)
        if not want: return None
        parts = []
        for k, nm, mx in (("vm", "vmcnt", 63), ("ds", "lgkmcnt", 15)):
            if k in want:
                n = min(len(self.q[k]) - want[k], mx)
                self.done[k] = len(self.q[k]) - n
                parts.append(f"{nm}({n})")
        return "s_waitcnt " + " ".join(parts)
    def explicit(self, text):
        for k, nm in (("vm", "vmcnt"), ("ds", "lgkmcnt")):
            m = re.search(nm + r"\((\d+)\)", text)
            if m:
                self.done[k] = max(self.done[k], len(self.q[k]) - int(m.group(1)))

def linear_waits(ins, ws):
    out = []
    for x in ins:
        if x.needs:
            w = ws.need(x.needs)
            if w: out.append(I(w))
        if x.k == "w": ws.explicit(x.t)
        if x.k in ("ds", "vm"): ws.issue(x)
        out.append(x)
    return out

class Gaps:
    def __init__(self, ms):
        self.ms = ms
        n = len(ms)
        self.sal = [[] for _ in range(n)]
        self.mem = [[] for _ in range(n)]
        self.val = [[] for _ in range(n)]
        self.waitneeds = [[] for _ in range(n)]
    def place_waits(self, ws, pre):
        n = len(self.ms)
        w = ws.need(self.ms[0].needs)
        if w: pre.append(I(w))
        for g in range(n):
            needs = list(self.waitneeds[g])
            for x in self.mem[g]: needs += x.needs
            for x in self.val[g]: needs += x.needs
            if g + 1 < n: needs += self.ms[g + 1].needs
            w = ws.need(needs)
            if w: self.sal[g].insert(0, I(w))
            for x in self.mem[g]: ws.issue(x)
    def place_salu(self, seq):
        last = -1
        for x, lo, hi in seq:
            g0 = max(lo, last)
            g = g0
            while g <= hi and self.sal[g]: g += 1
            if g > hi:
                g = g0
                assert g <= hi, (x, lo, hi, last)
            self.sal[g].append(x)
            last = g
    def flat(self, a=0, b=None):
        out = []
        for g in range(a, len(self.ms) if b is None else b):
            out.append(self.ms[g])
            out += self.sal[g] + self.mem[g] + self.val[g]
        return out
    def cost(self, a=0, b=None):
        tot = 0
        for g in range(a, len(self.ms) if b is None else b):
            c = 8 + 4 * max(0, len(self.sal[g]) - 1)
            for x in self.mem[g]: c += 8 if x.k == "vm" else 4
            for x in self.val[g]: c += 8 if x.k == "e" else 4
            tot += max(16, c)
        return tot

_reg = re.compile(r"\b([vas])(?:(\d+)|\[(\d+):(\d+)\])")
def regs(tok):
    out = set()
    for m in _reg.finditer(tok):
        k = m.group(1)
        if m.group(2) is not None: out.add((k, int(m.group(2))))
        else: out.update((k, i) for i in range(int(m.group(3)), int(m.group(4)) + 1))
    if re.search(r"\bvcc\b", tok): out.add(("s", "vcc"))
    if re.search(r"\bm0\b", tok): out.add(("s", "m0"))
    if re.search(r"\bexec\b", tok): out.add(("s", "exec"))
    return out

def rw(x):
    t = x.t.split(";")[0].strip()
    op, _, rest = t.partition(" ")
    ops = [o.strip() for o in rest.split(",")] if rest else []
    k = x.k
    if k in ("l", "x", "w", "b", "br"): return set(), set(), {}
    if k == "m":
        return regs(ops[0]), regs(ops[1]) | regs(ops[2]) | regs(ops[3]), {"A": regs(ops[1]) | regs(ops[2]), "C": regs(ops[3])}
    if k == "ds":
        if op.startswith("ds_read"): return regs(ops[0]), regs(ops[1]), {}
        return set(), set().union(*[regs(o) for o in ops]), {}
    if k == "vm":
        if not ops: return set(), set(), {}
        if " lds" in t: return set(), set().union(*[regs(o) for o in ops]) | {("s", "m0")}, {}
        if "load" in op: return regs(ops[0]), set().union(*[regs(o) for o in ops[1:]]), {}
        if op.startswith("global_store"):
            return set(), set().union(*[regs(o) for o in ops]), {"data": regs(ops[1])}
        return set(), set().union(*[regs(o) for o in ops]), {"data": regs(ops[0])}
    if k == "s":
        if op.startswith("s_cmp") or op in ("s_nop", "s_sleep", "s_endpgm", "s_setprio"):
            return set(), set().union(set(), *[regs(o) for o in ops]), {}
        w = regs(ops[0])
        if "saveexec" in op: w |= {("s", "exec")}
        return w, set().union(set(), *[regs(o) for o in ops[1:]]), {}
    if "permlane" in op:
        a = regs(ops[0]) | regs(ops[1]); return a, a, {}
    w = regs(ops[0]); r = set().union(set(), *[regs(o) for o in ops[1:]])
    if op.startswith("v_fmac") or op.startswith("v_writelane"): r |= w
    return w, r, {}

def fix_hazards(ins):
    ins = list(ins)
    while True:
        p = check_hazards(ins, raw=True)
        if not p: return ins
        x, short = p[0]
        k = next(i for i, y in enumerate(ins) if y is x)
        ins.insert(k, I(f"s_nop {short-1}"))

def check_hazards(ins, name="", raw=False):
    seq = [x for x in ins if x.k not in ("l", "x")]
    info = [rw(x) for x in seq]
    probs = []
    for i, x in enumerate(seq):
        w, r, ex = info[i]
        op = x.t.split()[0]
        dist = 0
        for j in range(i - 1, max(-1, i - 24), -1):
            y = seq[j]; yw, yr, yex = info[j]
            yop = y.t.split()[0]
            need = 0
            isv = x.k in ("v", "e")
            if y.k in ("v", "e"):
                if x.k == "m" and yw & r: need = 2
                if isv and "permlane" in op and yw & r: need = 2
                if isv and "dpp" in x.t and yw & r: need = 2
                if op in ("v_readfirstlane_b32", "v_readlane_b32") and yw & r: need = max(need, 1)
                if y.k == "e" and x.k == "v" and yw & r: need = max(need, 1)
                ysg = {q for q in yw if q[0] == "s"}
                if ysg & r:
                    if x.k == "vm": need = max(need, 5)
                    elif isv: need = max(need, 2)
            if y.k == "m":
                if x.k == "m":
                    if yw & ex["A"]: need = 8
                    elif yw & ex["C"] and yw != ex["C"]: need = 6
                    elif yw & w and yw != ex["C"]: need = 6
                elif x.k in ("v", "e", "ds", "vm"):
                    if yw & (r | w): need = 8
                    if isv and yex["C"] & w: need = max(need, 3)
            if y.k == "vm" and "data" in yex and ("x4" in yop or "x3" in yop) and yex["data"] & w:
                need = max(need, 2 if isv else 1)
            if y.k == "s" and ("s", "m0") in yw and x.k == "vm" and " lds" in x.t: need = max(need, 1)
            if need > dist:
                probs.append((x, need - dist) if raw else f"{name}: hazard need {need} have {dist}: [{y.t}] -> [{x.t}]")
            dist += (int(y.t.split()[1]) + 1) if yop == "s_nop" else 1
            if dist >= 12: break
    return probs
```

```python
import sys, struct, math
from asmlib import *

NAME = "concat_heads__mha_block_cached__gqa_block_cached__near_ridge_kernel"
def f2u(x): return struct.unpack("<I", struct.pack("<f", x))[0]

class Cfg:
    stamps = False
    stop_after = None
    kv_flags = "nt"
    x_flags = ""
    wq_flags = ""
    wo_flags = ""
    thr = 2.0 ** 30
    backlog = 10
    rot = True
    code_prefetch = True
    kv_same = False
    no_dma = False

SX, SWQ, SK, SV, SWO, SWS, SOUT, SDBG = 4, 8, 12, 16, 20, 24, 28, 32
sW, sPI, sKQ, sB, sHP, sBR = 36, 37, 38, 39, 40, 41
sROW = 42
sH, sDA, sDB, sD, sM0, sOFF, sT, sT2 = 47, 48, 49, 50, 51, 52, 53, 54
sWM0 = 55
sC = 56
sTHR, sXK, sWK, sXM0, sREDO, sKVW = 58, 59, 60, 61, 62, 63
sOB = 64
sOS = 65
sG = 66
sST = 68
sSTO = 70
sFL = 71
sFP = 72
sFQ = 75
sOP = 78
sWR = 81
sPB = 85
sOM0 = 86
sT3 = 87
sSPIN = 88
PITCH = 17408
VBASE = 4 * PITCH
XB = (115712, 69632)
SCR = 8 * PITCH
MISC = 9 * PITCH
LDS_BYTES = 163840
HALF = 8448
WS_O = 0
WS_PART = 0x2800000
WS_SH = 0x3e00000
WS_FLAG = 0x3f00000
WS_STAMP = 0x4000000
OST = 36864
WS_BYTES = 292618240
vDMA, vKA, vVA = 1, 2, 3
vL = 4
vT = 9
vNM = 16
vS = 36
NS = 6
vP = (60, 80)
vO = 96
vXD, vWD, vXR, vWR0, vWR1 = 4, 5, 6, 7, 8
aQ = (0, 80)
aK = 160
aV = 192
NV = 4

def srd(n): return f"s[{n}:{n+3}]"

class Gen:
    def __init__(self, cfg):
        self.c = cfg
        self.out = []
        self.ws = WaitState()
        self.nstamp = 0
        self.tailcode = []
        self.checks = []
    def e(self, *ts):
        for t in ts:
            for line in (t.split("\n") if isinstance(t, str) else [t]):
                if isinstance(line, str):
                    line = line.strip()
                    if not line: continue
                    line = I(line)
                self.out += linear_waits([line], self.ws)
    def raw(self, ins):
        self.out += ins
    def stamp(self):
        if not self.c.stamps: return
        k = self.nstamp; self.nstamp += 1
        self.e(f"s_memtime s[{sST}:{sST+1}]", "s_waitcnt lgkmcnt(0)",
               f"v_mov_b32 v15, s{sST}", f"buffer_store_dword v15, off, {srd(SWS)}, s{sSTO} offset:{k*8}",
               f"s_memrealtime s[{sST}:{sST+1}]", "s_waitcnt lgkmcnt(0)",
               f"v_mov_b32 v15, s{sST}", f"buffer_store_dword v15, off, {srd(SWS)}, s{sSTO} offset:{k*8+4}")

    def setup(self):
        c = self.c; e = self.e
        e(f"""
        s_cmp_ge_u32 s2, 256
        s_cbranch_scc1 L_end
        s_load_dwordx16 s[64:79], s[0:1], 0
        s_load_dwordx8 s[80:87], s[0:1], 64
        s_load_dwordx2 s[88:89], s[0:1], 96
        v_lshrrev_b32 v9, 6, v0
        v_and_b32 v0, 63, v0
        s_and_b32 s3, s2, 7
        v_readfirstlane_b32 s{sW}, v9
        s_lshr_b32 s{sBR}, s3, 2
        s_and_b32 s{sKQ}, s3, 3
        s_lshr_b32 s3, s2, 3
        s_lshr_b32 s{sB}, s3, 2
        s_and_b32 s{sHP}, s3, 3
        s_and_b32 s{sPI}, s{sW}, 1
        """)
        if c.code_prefetch:
            e(f"""
            s_getpc_b64 s[90:91]
            L_pc:
            v_lshlrev_b32 v10, 7, v0
            s_lshl_b32 s3, s{sW}, 13
            v_add_u32 v10, s3, v10
            s_mov_b32 s92, s90
            s_mov_b32 s93, s91
            s_mov_b32 s94, L_end-L_pc
            s_mov_b32 s95, 0x20000
            buffer_load_dword v11, v10, s[92:95], 0 offen
            s_mov_b32 s3, 0x8000
            buffer_load_dword v12, v10, s[92:95], s3 offen
            s_mov_b32 s3, 0x10000
            buffer_load_dword v13, v10, s[92:95], s3 offen
            """)
        e(f"""
        v_lshrrev_b32 v9, 2, v0
        v_mul_u32_u24 v{vXD}, 1152, v9
        v_lshrrev_b32 v9, 4, v0
        v_and_b32 v9, 2, v9
        v_xor_b32 v9, v9, v0
        v_and_b32 v9, 3, v9
        v_lshl_add_u32 v{vXD}, v9, 4, v{vXD}
        v_lshrrev_b32 v9, 5, v0
        v_lshlrev_b32 v9, 15, v9
        v_and_b32 v14, 31, v0
        v_lshl_add_u32 v9, v14, 4, v9
        s_lshl_b32 s3, s{sW}, 16
        v_add_u32 v{vWD}, s3, v9
        v_lshrrev_b32 v9, 2, v0
        v_and_b32 v9, 2, v9
        v_lshrrev_b32 v14, 4, v0
        v_xor_b32 v9, v9, v14
        v_and_b32 v14, 15, v0
        v_lshl_add_u32 v9, v14, 2, v9
        s_mul_i32 s{sXM0}, s{sW}, 10240
        s_add_u32 s{sXM0}, s{sXM0}, {XB[1]}
        v_lshlrev_b32 v9, 4, v9
        v_add_u32 v{vXR}, s{sXM0}, v9
        v_lshrrev_b32 v9, 2, v0
        v_mul_u32_u24 v9, 1088, v9
        v_and_b32 v14, 3, v0
        v_lshl_add_u32 v9, v14, 4, v9
        s_lshl_b32 s3, s{sPI}, 8
        v_add_u32 v{vWR0}, s3, v9
        s_xor_b32 s3, s3, 256
        v_add_u32 v{vWR1}, s3, v9
        s_lshl_b32 s3, s{sW}, 12
        v_lshlrev_b32 v9, 4, v0
        v_add_u32 v{vDMA}, s3, v9
        s_mul_i32 s{sWM0}, s{sW}, 4352
        s_mul_i32 s{sKVW}, s{sW}, 4224
        s_lshr_b32 s3, s{sW}, 1
        s_mul_i32 s3, s3, 144
        s_add_u32 s{sROW+4}, s3, 128
        s_mul_i32 s{sROW+4}, s{sROW+4}, 1152
        s_lshl_b32 s{sT}, s{sPI}, 6
        s_add_u32 s3, s3, s{sT}
        """)
        for j in range(4):
            e(f"s_xor_b32 s{sT}, s{sKQ}, {j}", f"s_lshl_b32 s{sT}, s{sT}, 4", f"s_add_u32 s{sT}, s{sT}, s3",
              f"s_mul_i32 s{sROW+j}, s{sT}, 1152")
        if c.rot:
            e(f"s_lshl_b32 s3, s{sHP}, 1", f"s_add_u32 s3, s3, s{sB}", f"s_sub_u32 s{sT}, s3, 9", "s_cmp_ge_u32 s3, 9",
              f"s_cselect_b32 s3, s{sT}, s3")
        else:
            e("s_mov_b32 s3, 0")
        e(f"s_lshl_b32 s{sXK}, s3, 7", f"s_lshl_b32 s{sWK}, s3, 19")
        cc = f2u(math.log2(math.e) / math.sqrt(128.0))
        e(f"""
        s_mov_b32 s{sC}, {cc:#x}
        s_mov_b32 s{sC+1}, {cc:#x}
        s_mov_b32 s{sTHR}, {f2u(c.thr):#x}
        s_mul_i32 s{sH}, s{sPI}, {-2*HALF}
        s_add_u32 s{sH}, s{sH}, {HALF}
        s_sub_u32 s{sDA}, {PITCH}, s{sH}
        s_sub_u32 s{sDB}, {-3*PITCH}, s{sH}
        s_waitcnt lgkmcnt(0)
        s_cmp_eq_u32 s{sBR}, 0
        s_cselect_b64 s[{SX}:{SX+1}], s[64:65], s[74:75]
        s_cselect_b64 s[{SK}:{SK+1}], s[66:67], s[76:77]
        s_cselect_b64 s[{SV}:{SV+1}], s[68:69], s[78:79]
        s_cselect_b64 s[{SWQ}:{SWQ+1}], s[70:71], s[80:81]
        s_cselect_b64 s[{SWO}:{SWO+1}], s[72:73], s[82:83]
        s_mul_i32 s3, s{sB}, 331776
        s_add_u32 s{SX}, s{SX}, s3
        s_addc_u32 s{SX+1}, s{SX+1}, 0
        s_mov_b32 s{SX+2}, 331776
        s_mov_b32 s{SX+3}, 0x20000
        s_lshl_b32 s{sT}, s{sKQ}, 2
        s_add_u32 s{sT}, s{sT}, s{sHP}
        s_lshl_b32 s3, s{sT}, 9
        s_add_u32 s{SWQ}, s{SWQ}, s3
        s_addc_u32 s{SWQ+1}, s{SWQ+1}, 0
        s_sub_u32 s{SWQ+2}, {576*8192}, s3
        s_mov_b32 s{SWQ+3}, 0x20000
        """)

    def setup2(self):
        e = self.e
        e(f"""
        s_lshl_b32 s{sT}, s{sKQ}, 2
        s_add_u32 s{sT}, s{sT}, s{sHP}
        s_lshl_b32 s3, s{sB}, 4
        s_add_u32 s{sT}, s{sT}, s3
        s_lshl_b32 s3, s{sT}, 19
        {"s_mov_b32 s3, 0" if self.c.kv_same else ""}
        s_add_u32 s{SK}, s{SK}, s3
        s_addc_u32 s{SK+1}, s{SK+1}, 0
        s_mov_b32 s{SK+2}, 524288
        s_mov_b32 s{SK+3}, 0x20000
        s_add_u32 s{SV}, s{SV}, s3
        s_addc_u32 s{SV+1}, s{SV+1}, 0
        s_mov_b32 s{SV+2}, 524288
        s_mov_b32 s{SV+3}, 0x20000
        s_mov_b32 s{SWO+2}, {4096*1152}
        s_mov_b32 s{SWO+3}, 0x20000
        s_mov_b32 s{SOUT}, s84
        s_mov_b32 s{SOUT+1}, s85
        s_mov_b32 s{SOUT+2}, {8*288*1152*2}
        s_mov_b32 s{SOUT+3}, 0x20000
        s_mov_b32 s{SDBG}, s86
        s_mov_b32 s{SDBG+1}, s87
        s_mov_b32 s{SDBG+2}, 256
        s_mov_b32 s{SDBG+3}, 0x20000
        s_mov_b32 s{SWS}, s88
        s_mov_b32 s{SWS+1}, s89
        s_mov_b32 s{SWS+2}, {WS_BYTES}
        s_mov_b32 s{SWS+3}, 0x20000
        s_lshl_b32 s3, s{sBR}, 7
        s_add_u32 s{sT}, s{sT}, s3
        s_mul_i32 s{sOB}, s{sT}, 147456
        s_lshr_b32 s3, s{sW}, 1
        s_mul_i32 s3, s3, 36864
        s_add_u32 s{sOB}, s{sOB}, s3
        s_add_u32 s{sOS}, s{sOB}, 32768
        s_lshl_b32 s3, s{sPI}, 14
        s_add_u32 s{sOB}, s{sOB}, s3
        s_mov_b32 s{sG}, s2
        s_lshl_b32 s3, s2, 2
        s_add_u32 s3, s3, s{sW}
        s_lshl_b32 s3, s3, 8
        s_add_u32 s{sSTO}, s3, {WS_STAMP}
        s_mov_b32 s{sREDO}, 0
        s_mul_i32 s3, s{sKQ}, {1024*1152}
        s_mul_i32 s{sT}, s{sHP}, 288
        s_add_u32 s3, s3, s{sT}
        s_add_u32 s{SWO}, s{SWO}, s3
        s_addc_u32 s{SWO+1}, s{SWO+1}, 0
        s_sub_u32 s{SWO+2}, s{SWO+2}, s3
        s_lshl_b32 s{sFL}, s2, 7
        s_add_u32 s{sFL}, s{sFL}, {WS_FLAG}
        s_mul_i32 s{sOM0}, s{sW}, 9216
        s_mul_i32 s{sT2}, s{sW}, {32*1152}
        """)
        for p in range(4):
            e(f"s_xor_b32 s3, s{sHP}, {p}", f"s_mul_i32 s{sT}, s3, {256*1152}", f"s_add_u32 s{sWR+p}, s{sT}, s{sT2}")
            if p:
                e(f"s_sub_u32 s3, s3, s{sHP}", f"s_mul_i32 s{sOP+p-1}, s3, 147456",
                  f"s_xor_b32 s{sFP+p-1}, s{sFL}, {p << 10}", f"s_xor_b32 s{sFQ+p-1}, s{sFL}, {p << 7}")
        e(f"""
        s_lshr_b32 s3, s2, 3
        s_lshl_b32 s{sT}, s{sBR}, 5
        s_add_u32 s3, s3, s{sT}
        s_mul_i32 s{sPB}, s3, {64*5120}
        s_mul_i32 s{sT}, s{sW}, 5120
        s_add_u32 s{sPB}, s{sPB}, s{sT}
        s_add_u32 s{sPB}, s{sPB}, {WS_PART}
        """)
        if self.c.stop_after != "A":
            e("v_mov_b32 v9, 0", I(f"buffer_store_dword v9, off, {srd(SWS)}, s{sFL} sc1", id=("flclr",)))
        self.kv_addr_init()

    def dbg_addr(self, v):
        self.e(f"""
        s_and_b32 s3, s{sG}, 7
        s_lshl_b32 s3, s3, 3
        s_add_u32 s3, s3, s{sB}
        s_lshl_b32 s3, s3, 2
        s_lshr_b32 s{sT}, s{sG}, 3
        s_lshl_b32 s{sT2}, s{sBR}, 5
        s_add_u32 s{sT}, s{sT}, s{sT2}
        s_lshl_b32 s{sT}, s{sT}, 2
        v_mov_b32 v{v}, 0x1000
        v_writelane_b32 v{v}, s3, 0
        v_writelane_b32 v{v}, s{sT}, 1
        """)

    def announce_cleared(self):
        e = self.e
        e(f"s_cmp_lg_u32 s{sW}, 0", "s_cbranch_scc1 L_ann")
        self.dbg_addr(10)
        e("v_mov_b32 v11, 1", "s_movk_i32 s3, 0x100", "v_writelane_b32 v11, s3, 1")
        self.raw([I(f"buffer_atomic_add v11, v10, {srd(SDBG)}, 0 offen sc1")])
        e("L_ann:")

    def publish(self, val):
        lab = f"L_pub{val}"
        return [I(f"s_cmp_lg_u32 s{sW}, 0"), I(f"s_cbranch_scc1 {lab}"), I(f"v_accvgpr_write_b32 a255, {val}"),
                I(f"buffer_store_dword a255, off, {srd(SWS)}, s{sFL} sc1", k="x"), I(f"{lab}:")]

    def spin(self, name, load, test):
        self.tailcode += [I(f"L_sp_{name}:"), I(f"s_mov_b32 s{sSPIN}, 0x40000"), I(f"L_spl_{name}:"), I("s_sleep 1")]
        self.tailcode += [I(x) for x in load] + [I("s_waitcnt vmcnt(0)")] + [I(x) for x in test]
        self.tailcode += [I(f"s_cbranch_scc1 L_sb_{name}"), I(f"s_sub_u32 s{sSPIN}, s{sSPIN}, 1"), I(f"s_cmp_lg_u32 s{sSPIN}, 0"),
                          I(f"s_cbranch_scc1 L_spl_{name}"), I(f"s_branch L_sb_{name}")]

    def kv_addr_init(self):
        e = self.e
        e(f"""
        v_and_b32 v9, 7, v0
        v_mul_u32_u24 v9, 1056, v9
        v_and_b32 v14, 8, v0
        v_lshl_add_u32 v9, v14, 5, v9
        v_and_b32 v14, 48, v0
        s_mul_i32 s3, s{sPI}, {HALF}
        v_add3_u32 v{vKA}, v9, v14, s3
        v_bfe_u32 v9, v0, 2, 3
        v_mul_u32_u24 v9, 1056, v9
        v_and_b32 v14, 32, v0
        v_lshl_add_u32 v9, v14, 3, v9
        v_and_b32 v14, 3, v0
        v_lshl_add_u32 v9, v14, 3, v9
        s_add_u32 s3, s3, {VBASE}
        v_add_u32 v{vVA}, s3, v9
        """)

    def dma_wq(self, i):
        slot = (i + 2) % 4
        ops = []
        for r in range(4):
            pre = [I(f"s_add_u32 m0, s{sWM0}, {slot*PITCH + r*1088}")]
            same = [I(f"s_add_u32 s{sT}, s{sWK}, {r*8192}")]
            vm = I(f"buffer_load_dwordx4 v{vWD}, {srd(SWQ)}, s{sT} offen {self.c.wq_flags} lds", id=("wq", i, r))
            post = []
            if r == 3:
                post = [I(f"s_add_u32 s{sWK}, s{sWK}, {32*8192}")]
                if i % 2 == 1:
                    post += [I(f"s_cmp_eq_u32 s{sWK}, {576*8192}"), I(f"s_cselect_b32 s{sWK}, 0, s{sWK}")]
            ops.append((pre, same, vm, post))
        return ops
    def dma_x(self, st, js):
        boff = XB[st % 2] - XB[1]
        ops = []
        for j in js:
            needs = [("xr", 2*st - 4, j), ("xr", 2*st - 3, j)] if st >= 2 else []
            ops.append(([I(f"s_add_u32 m0, s{sXM0}, {boff + j*1024}")], [I(f"s_add_u32 s{sT2}, s{sROW+j}, s{sXK}")],
                        I(f"buffer_load_dwordx4 v{vXD}, {srd(SX)}, s{sT2} offen {self.c.x_flags} lds", id=("x", 2*st, j), needs=needs), []))
            post = []
            if j == 4:
                post = [I(f"s_add_u32 s{sXK}, s{sXK}, 128"), I(f"s_cmp_eq_u32 s{sXK}, 1152"), I(f"s_cselect_b32 s{sXK}, 0, s{sXK}")]
            ops.append(([I(f"s_add_u32 m0, s{sXM0}, {boff + 5120 + j*1024 - 64}")], [],
                        I(f"buffer_load_dwordx4 v{vXD}, {srd(SX)}, s{sT2} offen offset:64 {self.c.x_flags} lds", id=("x", 2*st+1, j)), post))
        return ops
    def dma_kv_static(self, which, M):
        base = (M % 4) * PITCH + (VBASE if which == "V" else 0)
        ops = []
        for i in range(4):
            same = [I(f"s_mov_b32 s{sT}, {M*16384}")] if i == 0 else []
            ops.append(([I(f"s_add_u32 m0, s{sKVW}, {base + 32*i}")], same,
                        I(f"buffer_load_dwordx4 v{vDMA}, {srd(SK if which == 'K' else SV)}, s{sT} offen offset:{i*1024} {self.c.kv_flags} lds", id=(which, M, i)), []))
        return ops
    def emit_dma_straight(self, ops):
        for pre, same, vm, post in ops:
            self.e(*pre)
            self.e(*(same or [I("s_nop 0")]))
            self.e(vm, *post)

    def qacc(self, tp, j):
        idn = tp * 4 + j if j < 4 else 64 + tp
        return ("v", 16 + 4 * idn) if idn < 60 else ("a", 208 + 4 * (idn - 60))

    def phase_q(self):
        e = self.e
        NR = 8
        aB, aA = 0, 40
        self.emit_dma_straight(self.dma_x(0, range(5)) + self.dma_wq(0) + self.dma_wq(1) + self.dma_x(1, range(5)) + self.dma_wq(2) + self.dma_wq(3))
        self.setup2()
        self.stamp()
        ms = []; start = {}; last = {}
        for i in range(18):
            for tp in range(16):
                f = 16 * i + tp
                start[f] = len(ms)
                for j in range(5 if tp < 8 else 4):
                    ms.append(I(mfma(self.qacc(tp, j), ("a", aA + 4 * (f % NR)), ("a", aB + 20 * (i % 2) + 4 * j), 0 if i == 0 else None),
                                needs=[("ar", f, 0), ("ar", f, 1), ("xr", i, j)]))
                last[f] = len(ms) - 1
        G = Gaps(ms)
        pre = []
        def aread(f, v):
            i, tp = divmod(f, 16)
            t = tp % 8
            off = ((i + 2) % 4) * PITCH + 512 * v + 64 * (t >> 1) + 8 * (t & 1)
            return I(f"ds_read_b64_tr_b16 {R('a', aA + 4*(f % NR) + 2*v, 2)}, v{vWR0 if tp < 8 else vWR1} offset:{off}", id=("ar", f, v))
        def xread(i, j):
            off = XB[(i // 2) % 2] - XB[1] + 5120 * (i % 2) + 1024 * j
            return I(f"ds_read_b128 {R('a', aB + 20*(i % 2) + 4*j, 4)}, v{vXR} offset:{off}", id=("xr", i, j), needs=[("x", i, j)])
        for j in range(5): pre.append(xread(0, j))
        pre.append(I("s_barrier", needs=[("wq", 0, r) for r in range(4)]))
        for i in range(18):
            for tp in range(16):
                for v in range(2):
                    f = 16 * i + tp
                    g = 72 * i - 13 + ((2 * tp + v) * 58) // 32
                    if g < 0: pre.append(aread(f, v)); continue
                    assert g <= start[f] - 8
                    assert f < NR or g >= last[f - NR], (f, g)
                    G.mem[g].append(aread(f, v))
            if i < 17:
                for j in range(5): G.mem[72 * i + 46 + 2 * j].append(xread(i + 1, j))
        sal = []
        for i in range(18):
            g = 72 * i + 56
            G.waitneeds[g] += [("ar", 16 * i + 15, 1)]
            if i < 17: G.waitneeds[g] += [("wq", i + 1, r) for r in range(4)]
            G.sal[g + 1].append(I("s_barrier"))
        seq = []
        for i in range(1, 19):
            lo = 72 * (i - 1) + 59; hi = min(72 * i + 54, len(ms) - 1)
            ops = []
            if i + 3 < 18: ops += [(o, lo) for o in self.dma_wq(i + 3)]
            if i % 2 == 1 and (i + 3) // 2 < 9: ops += [(o, 72 * i + 5) for o in self.dma_x((i + 3) // 2, range(3))]
            if i % 2 == 0 and (i + 2) // 2 < 9: ops = [(o, lo) for o in self.dma_x((i + 2) // 2, range(3, 5))] + ops
            if i == 15: ops += [(o, lo) for o in self.dma_kv_static("K", 0)]
            if i == 16: ops += [(o, lo) for o in self.dma_kv_static("V", 0) + self.dma_kv_static("K", 1) + self.dma_kv_static("V", 1)]
            if i == 17: ops += [(o, lo) for o in self.dma_kv_static("K", 2)]
            if i == 18: ops += [(o, lo) for o in self.dma_kv_static("V", 2)]
            step = 5 if i < 18 else 3
            g = lo - step + 1
            for (p, same, vm, post), l in ops:
                prev = g
                g = max(g + step, l)
                while G.mem[g]: g += 1
                assert g <= hi, (i, g, hi)
                G.mem[g].append(vm)
                for x in p: seq.append((x, g - 2, g - 1))
                for x in same: seq.append((x, g - 1, g))
                for x in post: seq.append((x, g + 1, min(g + 3, len(ms) - 1)))
        self.e(*pre)
        pre2 = []
        G.place_waits(self.ws, pre2)
        G.place_salu(seq)
        self.raw(pre2)
        self.raw(G.flat())
        print("phase Q est cycles", G.cost(), file=sys.stderr)
        self.stamp()
        def pack(src0, src1, tmp):
            o = []
            for k, (kind, b) in enumerate((src0, src1)):
                if kind == "a":
                    for r in range(4): o.append(f"v_accvgpr_read_b32 v{12+r}, a{b+r}")
                    b = 12
                o.append(f"v_pk_mul_f32 v[{b}:{b+1}], v[{b}:{b+1}], s[{sC}:{sC+1}]")
                o.append(f"v_pk_mul_f32 v[{b+2}:{b+3}], v[{b+2}:{b+3}], s[{sC}:{sC+1}]")
                o.append(f"v_cvt_pk_bf16_f32 v{tmp+2*k}, v{b}, v{b+1}")
                o.append(f"v_cvt_pk_bf16_f32 v{tmp+2*k+1}, v{b+2}, v{b+3}")
            return o
        e(f"v_add_u32 v9, {SCR}, v{vDMA}")
        for s in range(4):
            e(*pack(self.qacc(2*s, 4), self.qacc(2*s+1, 4), 4))
            e(I(f"ds_write_b128 v9, v[4:7] offset:{s*1024}", id=("qsw", s)))
        e(f"s_cmp_eq_u32 s{sPI}, 1", "s_cbranch_scc1 L_qe1")
        base = len(self.out)
        for pi in range(2):
            if pi == 1: e("L_qe1:")
            for hh in range(2):
                h = hh ^ pi
                for j in range(4):
                    for s in range(4):
                        t0 = self.qacc(8*hh + 2*s, j); t1 = self.qacc(8*hh + 2*s + 1, j)
                        assert t0[0] == "v"
                        e(*pack(t0, t1, t0[1]))
                        for r in range(4): e(f"v_accvgpr_write_b32 a{aQ[h] + (j*4+s)*4 + r}, v{t0[1]+r}")
            if pi == 0: e("s_branch L_qe2")
        e("L_qe2:")
        e(I("s_barrier", needs=[("qsw", 3)] + [(k, 0, i) for k in "KV" for i in range(4)]))
        if self.c.stop_after != "A": self.announce_cleared()
        e(f"s_lshl_b32 s3, s{sPI}, 12", "v_subrev_u32 v9, s3, v9")
        for h in range(2):
            for s in range(4):
                e(I(f"ds_read_b128 {R('a', aQ[h] + (16+s)*4, 4)}, v9 offset:{h*4096 + s*1024}", id=("qsr", h, s)))
        e(f"s_mov_b32 s{sOFF}, {3*16384}", f"s_add_u32 s{sM0}, s{sKVW}, {3*PITCH}", f"s_mov_b32 s{sD}, s{sDA}")
        for j in range(5): e(f"v_mov_b32 v{vNM+4*j}, 0xff800000")

    def attn_mfmas(self, h, nwin, first=True, lastw=True):
        ms = []; cstart = {}; cend = {}; pv = {}; wstart = []
        tcount = [0]; sslot = {}
        def chain(n, T, j):
            sl = tcount[0] % NS; tcount[0] += 1
            sslot[(n, T, j)] = sl
            cstart[(n, T, j)] = len(ms)
            for s in range(4):
                ms.append(I(mfma(("v", vS + 4*sl), ("a", aK + 16*T + 4*s), ("a", aQ[h] + (j*4+s)*4), ("v", vNM + 4*j) if s == 0 else None),
                            needs=[("kr", h, n, T, s)]))
            cend[(n, T, j)] = len(ms) - 1
        def pvm(n, dt, j):
            f = 8*n + dt
            pv[(n, dt, j)] = len(ms)
            ms.append(I(mfma(("v", vO + (j*8+dt)*4), ("a", aV + 4*(f % NV)), ("v", vP[n % 2] + 4*j), 0 if (n == 0 and first) else None),
                        needs=[("vr", h, f, 0), ("vr", h, f, 1)]))
        for m in range(nwin):
            wstart.append(len(ms))
            for c in range(8):
                chain(2*m+1, c >> 2, c & 3)
                for j in range(5): pvm(2*m, c, j)
            lst = [(dt, j) for dt in range(8) for j in range(4)]
            cnt = [3, 3, 3, 3, 4, 3, 3, 3, 3, 4]
            for c in range(10):
                if not (lastw and m == nwin - 1): chain(2*m+2, c // 5, c % 5)
                for _ in range(cnt[c]):
                    dt, j = lst.pop(0); pvm(2*m+1, dt, j)
        wstart.append(len(ms))
        return ms, cstart, cend, pv, sslot, wstart

    def kread(self, h, n, T, s):
        return I(f"ds_read_b128 {R('a', aK + 16*T + 4*s, 4)}, v{vKA} offset:{512*T + 64*s}", id=("kr", h, n, T, s))
    def vread(self, h, f, v):
        return I(f"ds_read_b64_tr_b16 {R('a', aV + 4*(f % NV) + 2*v, 2)}, v{vVA} offset:{512*v + 32*(f % 8)}", id=("vr", h, f, v))

    def attn_schedule(self):
        NW = 8
        ms, cstart, cend, pv, sslot, wstart = self.attn_mfmas(0, NW, first=False, lastw=False)
        n = len(ms)
        mem = {}
        def put(g, key):
            while g in mem: g += 1
            mem[g] = key; return g
        rel = {}
        for i, g in enumerate((3, 12, 21, 30)): rel[("dK", i)] = put(g, 1)
        for i, g in enumerate((44, 52, 60, 68)): rel[("dV", i)] = put(g, 1)
        first = {f: pv[(2 + f // 8, f % 8, 0)] - 144 for f in range(-4, 16)}
        lastu = {f: pv[(2 + f // 8, f % 8, 4 if (f // 8) % 2 == 0 else 3)] - 144 for f in range(-4, 16)}
        for f in range(16):
            g = max(first[f - 2], lastu[f - 4] + 1)
            for v in range(2):
                gg = g % 144
                g2 = put(gg, 1)
                rel[("vr", f, v)] = g + (g2 - gg)
                g = rel[("vr", f, v)] + 2
                assert rel[("vr", f, v)] <= first[f] - 7, (f, v, rel[("vr", f, v)], first[f])
        for (dn, T), g0 in (((1, 1), 1), ((2, 0), 42), ((2, 1), 73), ((3, 0), 109)):
            for s in range(4):
                rel[("kr", dn, T, s)] = put(g0 + 6 * s, 1)
        rel["bar"] = 39
        rel[("ka", 0)] = rel[("kr", 1, 1, 3)] + 1
        rel[("ka", 1)] = rel[("kr", 2, 1, 3)] + 1
        rel[("va", 0)] = rel[("vr", 7, 1)]
        rel[("va", 1)] = rel[("vr", 15, 1)]
        assert rel[("vr", 8, 0)] > rel[("va", 0)] and rel[("vr", 0, 0)] + 144 > rel[("va", 1)]
        used = [0] * 144
        for k, g in rel.items():
            if k == "bar": continue
            used[g % 144] += 2 if k[0] in ("dK", "dV") else 1
        used[143] += 2
        tiles = sorted(cend, key=lambda t: cend[t])
        place = {}
        eq = []
        sm = []
        ti = 0
        for g in range(n):
            while ti < len(tiles) and cend[tiles[ti]] + 3 <= g:
                eq += [(tiles[ti], r) for r in range(4)]; ti += 1
            u = used[g % 144]
            rdy = [x for x in sm if x[1] <= g]
            backlog = 3.5 * len(eq) + len(sm)
            budget = 3 if (backlog > self.c.backlog and g % 144 != 143) else 2
            def take_small():
                rdy.sort(); x = rdy.pop(0); sm.remove(x); place[x[2]] = g
            def take_e():
                t, r = eq.pop(0); place[("e", t, r)] = g
                sm.append(((cend[t], 1, r), g + 1, ("a", t, r)))
                if r % 2: sm.append(((cend[t], 0, r), g + 1, ("c", t, r // 2)))
            if u == 0 and eq and len(rdy) < 4:
                take_e(); u += 2
            elif u == 1 and budget == 3 and eq and len(rdy) < 2:
                take_e(); u += 2
            while u < budget and rdy:
                take_small(); u += 1
        def wrel(m):
            d = {}
            for k, g in place.items():
                nn, T, j = k[1]
                if nn in (2*m+1, 2*m+2): d[(k[0], nn - 2*m, T, j, k[2])] = g - 144 * m
            return d
        a, b = wrel(4), wrel(5)
        assert a == b, "VALU schedule not periodic"
        assert len(a) == 180
        rel.update(a)
        self.rel = rel

    def head(self, h):
        e = self.e; rel = self.rel; c = self.c
        e(f"L_head{h}:")
        self.stamp()
        for T in range(2):
            for s in range(4): e(self.kread(h, 0, T, s))
        e(f"v_add_u32 v{vKA}, s{sH}, v{vKA}")
        tS = lambda T, j: vO + (j*2 + T) * 4
        for j in range(5):
            for T in range(2):
                for s in range(4):
                    nd = [("kr", h, 0, T, s)] + ([("qsr", 1, 3)] if (h == 0 and j == 4) else [])
                    e(I(mfma(("v", tS(T, j)), ("a", aK + 16*T + 4*s), ("a", aQ[h] + (j*4+s)*4), 0 if s == 0 else None), needs=nd))
        ms, cstart, cend, pv, sslot, wstart = self.attn_mfmas(h, 16)
        G = Gaps(ms)
        early = []
        lastw = 15
        full, fcs, fce, fpv, _, _ = self.attn_mfmas(h, 16, lastw=False)
        dropped = set()
        for k, st in fcs.items():
            if k[0] == 32: dropped.update(range(st, st + 4))
        amap = []; a = -1
        for g in range(len(full)):
            if g not in dropped: a += 1
            amap.append(a)
        def at(m, g):
            p = 144 * m + g
            if p < 0: return None
            return amap[p]
        seq = []
        for m in range(-1, 16):
            items = []
            for k, g in rel.items():
                if k == "bar": continue
                kind = k[0]
                if kind == "kr":
                    n = 2*m + k[1]
                    if n < 1 or n > 31: continue
                    items.append((g, "mem", self.kread(h, n, k[2], k[3])))
                elif kind == "vr":
                    if m < 0: continue
                    items.append((g, "mem", self.vread(h, 16*m + k[1], k[2])))
                elif kind in ("dK", "dV"):
                    if m < 0: continue
                    M = 16*h + m + 3; i = k[1]
                    items.append((g, "mem", I(f"buffer_load_dwordx4 v{vDMA}, {srd(SK if kind == 'dK' else SV)}, s{sOFF} offen offset:{i*1024} {c.kv_flags} lds", id=(kind[1], M, i))))
                elif kind == "ka":
                    if m < 0 or (m == 15 and k[1] == 1): continue
                    items.append((g, "val", I(f"v_add_u32 v{vKA}, s{sD if k[1] == 0 else sH}, v{vKA}")))
                elif kind == "va":
                    if m < 0: continue
                    items.append((g, "val", I(f"v_add_u32 v{vVA}, s{sH if k[1] == 0 else sD}, v{vVA}")))
                else:
                    n = 2*m + k[1]
                    if n < 1 or n > 31: continue
                    T, j, r = k[2], k[3], k[4]
                    S = vS + 4 * sslot[(n, T, j)]
                    if kind == "e": x = I(f"v_exp_f32 v{S+r}, v{S+r}")
                    elif kind == "a": x = I(f"v_add_f32 v{vL+j}, v{vL+j}, v{S+r}")
                    else:
                        x = I(f"v_cvt_pk_bf16_f32 v{vP[n % 2] + 4*j + 2*T + r}, v{S+2*r}, v{S+2*r+1}")
                        assert at(m, g) <= pv[(n, 0, j)] - 2, ("late cvt", n, T, j)
                    x.key = (144*m + g, cend[(n, T, j)], {"e": 2, "c": 0, "a": 1}[kind], r)
                    nxt = [t for t in cstart if cstart[t] > cstart[(n, T, j)] and sslot[t] == sslot[(n, T, j)]]
                    if nxt: assert at(m, g) < min(cstart[t] for t in nxt), ("S slot reuse", n, T, j)
                    items.append((g, "val", x))
            items.sort(key=lambda t: t[0])
            for g, where, x in items:
                p = at(m, g)
                if p is None: early.append(x)
                else: getattr(G, where)[p].append(x)
            if m >= 0:
                M = 16*h + m
                g = at(m, rel["bar"])
                G.waitneeds[g] += [("kr", h, 2*m+1, 1, 3)] + [(k, M+1, i) for k in "KV" for i in range(4)]
                G.sal[g + 1].append(I("s_barrier"))
                for i in range(4):
                    g = rel[("dK", i)]
                    seq.append((I(f"s_mov_b32 m0, s{sM0}" if i == 0 else "s_add_u32 m0, m0, 32"), at(m, max(0, g - 4)), at(m, g - 1)))
                for i in range(4):
                    g = rel[("dV", i)]
                    seq.append((I(f"s_add_u32 m0, s{sM0}, {VBASE}" if i == 0 else "s_add_u32 m0, m0, 32"), at(m, g - 4), at(m, g - 1)))
                g = rel[("dV", 3)] + 1
                for t in (f"s_add_u32 s{sOFF}, s{sOFF}, 16384",
                          f"s_add_u32 s{sM0}, s{sM0}, {PITCH}", f"s_sub_u32 s{sT}, s{sM0}, {4*PITCH}",
                          f"s_cmp_ge_u32 s{sM0}, {4*PITCH}", f"s_cselect_b32 s{sM0}, s{sT}, s{sM0}"):
                    seq.append((I(t), at(m, g), at(m, 125)))
                g1 = at(m, rel[("va", 1)]) + 1
                for t in (f"s_and_b32 s{sT}, s{sOFF}, 0xc000",):
                    seq.append((I(t), at(m, 100), at(m, 141)))
                for t in (f"s_cmp_eq_u32 s{sT}, 0x8000", ):
                    seq.append((I(t), at(m, 100), at(m, 141)))
                seq.append((I(f"s_cselect_b32 s{sD}, s{sDB}, s{sDA}"), g1, at(m, 142)))
                if 1 <= m <= 14:
                    seq.append((I(f"s_cmp_lg_u32 s{sOFF}, {(16*h + 18)*16384}"), g1, at(m, 142)))
        e(*[x for x in early if x.k == "ds"])
        assert all(x.k == "ds" for x in early)
        tm = lambda j: vS + j
        tt = lambda j: vS + 8 + j
        for j in range(5):
            b = tS(0, j)
            e(f"v_max3_f32 v{tm(j)}, v{b}, v{b+1}, v{vNM+4*j}", f"v_max3_f32 v{tt(j)}, v{b+2}, v{b+3}, v{b+4}",
              f"v_max3_f32 v{tm(j)}, v{b+5}, v{b+6}, v{tm(j)}", f"v_max3_f32 v{tm(j)}, v{b+7}, v{tt(j)}, v{tm(j)}")
        self.xlane([tm(j) for j in range(5)], [tt(j) for j in range(5)], "v_max_f32")
        for j in range(5):
            for r in range(4): e(f"v_sub_f32 v{vNM+4*j+r}, 0, v{tm(j)}")
        for j in range(5):
            b = tS(0, j)
            for r in range(0, 8, 2): e(f"v_pk_add_f32 v[{b+r}:{b+r+1}], v[{b+r}:{b+r+1}], v[{vNM+4*j}:{vNM+4*j+1}]")
            for r in range(8): e(f"v_exp_f32 v{b+r}, v{b+r}")
        for j in range(5):
            b = tS(0, j)
            for r in range(4): e(f"v_cvt_pk_bf16_f32 v{vP[0]+4*j+r}, v{b+2*r}, v{b+2*r+1}")
            e(f"v_pk_add_f32 v[{b}:{b+1}], v[{b}:{b+1}], v[{b+2}:{b+3}]", f"v_pk_add_f32 v[{b+4}:{b+5}], v[{b+4}:{b+5}], v[{b+6}:{b+7}]",
              f"v_pk_add_f32 v[{b}:{b+1}], v[{b}:{b+1}], v[{b+4}:{b+5}]", f"v_add_f32 v{vL+j}, v{b}, v{b+1}")
        full_o = (h == 1 and c.stop_after != "A")
        if full_o:
            self.dbg_addr(10)
            dload = f"buffer_load_dword v11, v10, {srd(SDBG)}, 0 offen sc1"
            e(I(dload, id=("dbgp",)))
        self.stamp()
        for g in range(len(ms)):
            G.val[g].sort(key=lambda x: x.key or (0, 0, 0, 0))
        pre = []
        G.place_waits(self.ws, pre)
        G.place_salu(seq)
        self.raw(pre)
        win = [[x.t for x in G.flat(wstart[m], wstart[m+1])] for m in range(16)]
        import re
        for m in range(1, 14):
            assert len(win[m]) == len(win[14]), f"window {m} differs"
            for x, y in zip(win[m], win[14]):
                if x == y: continue
                nx, ny = re.search(r"vmcnt\((\d+)\)", x), re.search(r"vmcnt\((\d+)\)", y)
                assert nx and ny and int(nx.group(1)) >= int(ny.group(1)) and re.sub(r"vmcnt\(\d+\)", "", x) == re.sub(r"vmcnt\(\d+\)", "", y), (m, x, y)
        print(f"head {h}: window est cycles", G.cost(wstart[1], wstart[2]), "instrs", len(win[1]), file=sys.stderr)
        self.raw(G.flat(0, wstart[1]))
        self.raw([I(".p2align 6"), I(f"L_loop{h}:")])
        body = G.flat(wstart[14], wstart[15])
        assert body[-1].k == "m", body[-3:]
        self.raw(body)
        self.raw([I(f"s_cbranch_scc1 L_loop{h}")])
        self.checks.append((f"loop{h}", body + body))
        if full_o:
            test = ["v_readlane_b32 s3, v11, 0", f"v_readlane_b32 s{sT2}, v11, 1", "s_and_b32 s3, s3, 0xff",
                    f"s_and_b32 s{sT2}, s{sT2}, 0xff00", f"s_or_b32 s3, s3, s{sT2}", "s_cmp_eq_u32 s3, 0x404"]
            self.raw(self.publish(1))
            self.raw([I(x) for x in test] + [I("s_cbranch_scc0 L_sp_dbg"), I("L_sb_dbg:")])
            self.spin("dbg", [dload], test)
        self.raw(fix_hazards(G.flat(wstart[15], wstart[16])))
        self.stamp()
        self.head_epilogue(h)

    def xlane(self, xs, ts, op):
        e = self.e
        for sw in ("v_permlane32_swap_b32", "v_permlane16_swap_b32"):
            for x, t in zip(xs, ts): e(f"v_mov_b32 v{t}, v{x}")
            if len(xs) < 3: e("s_nop 1")
            for k, (x, t) in enumerate(zip(xs, ts)): e(f"{sw} v{t}, v{x}")
            for x, t in zip(xs, ts): e(f"{op} v{x}, v{x}, v{t}")

    def head_epilogue(self, h):
        e = self.e
        O = lambda j, dt: vO + (j*8 + dt) * 4
        self.xlane([vL + j for j in range(5)], [vS + j for j in range(5)], "v_add_f32")
        e(f"v_add_f32 v10, v{vL}, v{vL+1}", f"v_add_f32 v11, v{vL+2}, v{vL+3}",
          f"v_add_f32 v10, v10, v{vL+4}", "v_add_f32 v10, v10, v11",
          f"v_cmp_nge_f32 vcc, s{sTHR}, v10", "s_cmp_lg_u64 vcc, 0", f"s_cselect_b32 s3, 1, 0",
          f"v_mov_b32 v12, s3", f"s_lshl_b32 s3, s{sW}, 2", f"s_add_u32 s3, s3, {MISC + 2048}", "v_mov_b32 v13, s3",
          I("ds_write_b32 v13, v12", id=("fw", h)))
        e(f"v_add_u32 v9, {SCR}, v{vDMA}")
        e(f"v_xor_b32 v10, 4096, v{vDMA}", f"v_add_u32 v10, {SCR}, v10")
        e(f"v_lshrrev_b32 v11, 1, v{vDMA}", "v_and_b32 v11, 0x1f8, v11", f"s_lshl_b32 s3, s{sW}, 9", f"s_add_u32 s3, s3, {MISC}",
          "v_add_u32 v11, s3, v11", f"v_mov_b32 v12, v{vL+4}", f"v_mov_b32 v13, v{vNM+16}",
          I("ds_write_b64 v11, v[12:13]", id=("lw", h)), "v_xor_b32 v11, 512, v11")
        e(f"s_cmp_eq_u32 s{sPI}, 1", f"s_cbranch_scc1 L_he1_{h}")
        st = (dict((k, list(v)) for k, v in self.ws.q.items()), dict(self.ws.done), dict(self.ws.pos))
        for pi in range(2):
            if pi == 1:
                e(f"L_he1_{h}:")
                self.ws.q, self.ws.done, self.ws.pos = st
            for k in range(4):
                e(I(f"ds_write_b128 v10, {R('v', O(4, 4*(1-pi) + k), 4)} offset:{k*1024}", id=("ow", h, k)))
            if pi == 1:
                e("s_nop 1")
                for r in range(16): e(f"v_mov_b32 v{O(4, 0) + r}, v{O(4, 4) + r}")
            if pi == 0: e("s_branch L_he2_%d" % h)
        e(f"L_he2_{h}:")
        for j in range(4): e(f"v_rcp_f32 v{vL+j}, v{vL+j}")
        full_o = (h == 1 and self.c.stop_after != "A")
        e(I("s_barrier", needs=[("ow", h, 3)] + ([("V", 34, 3)] if full_o else [])))
        e(f"v_mov_b32 v14, {MISC + 2048}")
        e(I(f"ds_read_b128 v[{vS}:{vS+3}], v14", id=("fr", h)))
        e(I(f"ds_read_b64 v[14:15], v11", id=("lr", h)))
        for k in range(4):
            e(I(f"ds_read_b128 {R('v', O(4, 4 + k), 4)}, v9 offset:{k*1024}", id=("or", h, k)))
        e(I(f"v_or3_b32 v{vS}, v{vS}, v{vS+1}, v{vS+2}", needs=[("fr", h)]), f"v_or_b32 v{vS}, v{vS}, v{vS+3}", "s_nop 0",
          f"v_readfirstlane_b32 s3, v{vS}", f"s_andn2_b32 s3, s3, s{sREDO}", f"s_cbranch_scc1 L_redo{h}",
          f"s_mov_b32 s{sREDO}, 0")
        if full_o: self.o_start()
        e(I("v_min_f32 v11, v13, v15", needs=[("lr", h)]), "v_sub_f32 v13, v11, v13", "v_sub_f32 v15, v11, v15",
          "v_exp_f32 v13, v13", "v_exp_f32 v15, v15", "s_nop 0", "v_mul_f32 v12, v12, v13", "v_fmac_f32 v12, v14, v15",
          "v_rcp_f32 v12, v12", "s_nop 0", "v_mul_f32 v14, v12, v15", "v_mul_f32 v12, v12, v13")
        b0, b1 = O(4, 0), O(4, 4)
        for r in range(0, 16, 2):
            e(f"v_pk_mul_f32 v[{b0+r}:{b0+r+1}], v[{b0+r}:{b0+r+1}], v[12:13] op_sel_hi:[1,0]")
        for r in range(0, 16, 2):
            e(I(f"v_pk_fma_f32 v[{b0+r}:{b0+r+1}], v[{b1+r}:{b1+r+1}], v[14:15], v[{b0+r}:{b0+r+1}] op_sel_hi:[1,0,1]", needs=[("or", h, r // 4)]))
        for r in range(8): e(f"v_cvt_pk_bf16_f32 v{b0+r}, v{b0+2*r}, v{b0+2*r+1}")
        e(f"v_and_b32 v13, 0x3ff, v{vDMA}", f"s_lshl_b32 s3, s{sPI}, 11", f"s_add_u32 s3, s3, s{sOS}")
        if h: e(f"s_add_u32 s3, s3, 73728")
        for k in range(2):
            e(I(f"ds_write_b128 v9, v[{b0+4*k}:{b0+4*k+3}] offset:{k*1024}", id=("pw", h, k)))
            e(I(f"buffer_store_dwordx4 v[{b0+4*k}:{b0+4*k+3}], v13, {srd(SWS)}, s3 offen offset:{k*1024} sc1", id=("os", h, 4, k)))
        for j in range(4):
            e(f"s_add_u32 s3, s{sOB}, {h*73728 + j*4096}")
            for s in range(4):
                b = O(j, 2*s)
                p = (vL + j) & ~1
                sel = "op_sel:[0,1] op_sel_hi:[1,1]" if (vL + j) & 1 else "op_sel_hi:[1,0]"
                for r in range(0, 8, 2):
                    e(f"v_pk_mul_f32 v[{b+r}:{b+r+1}], v[{b+r}:{b+r+1}], v[{p}:{p+1}] {sel}")
                d = 16 + (j*4 + s) * 4
                for r in range(4): e(f"v_cvt_pk_bf16_f32 v{d+r}, v{b+2*r}, v{b+2*r+1}")
                e(I(f"buffer_store_dwordx4 v[{d}:{d+3}], v13, {srd(SWS)}, s3 offen offset:{s*1024} sc1", id=("os", h, j, s)))
                if h == 0:
                    for r in range(4): e(f"v_accvgpr_write_b32 a{(j*4+s)*4 + r}, v{d+r}")
        e(I("s_barrier", needs=[("pw", h, 1)]))
        e(f"s_lshl_b32 s3, s{sPI}, 12", "v_subrev_u32 v9, s3, v9")
        for s in range(4):
            dst = R("a", 64 + 4*s, 4) if h == 0 else R("v", 80 + 4*s, 4)
            e(I(f"ds_read_b128 {dst}, v9 offset:{(s >> 1)*4096 + (s & 1)*1024}", id=("pr", h, s)))
        if h == 0:
            e("s_nop 1")
            for j in range(5): e(f"v_mov_b32 v{vNM+4*j}, 0xff800000")

    def redo(self, h):
        e = self.e
        save = self.ws; self.ws = WaitState()
        e(f"L_redo{h}:", "s_waitcnt vmcnt(0) lgkmcnt(0)", "s_barrier", f"s_mov_b32 s{sREDO}, 1")
        self.kv_addr_init()
        for j in range(5): e(f"v_mov_b32 v{vNM+4*j}, 0xff800000")
        e(f"s_mov_b32 s{sOFF}, {16*h*16384}", f"s_mov_b32 s{sD}, s{sH}", f"L_rl{h}:")
        for i in range(4):
            e(f"s_add_u32 m0, s{sKVW}, {32*i}", "s_nop 0",
              f"buffer_load_dwordx4 v{vDMA}, {srd(SK)}, s{sOFF} offen offset:{i*1024} lds")
        e("s_waitcnt vmcnt(0)", "s_barrier")
        for half in range(2):
            for T in range(2):
                for s in range(4): e(self.kread(h, 0, T, s))
            e("s_waitcnt lgkmcnt(0)", f"v_add_u32 v{vKA}, s{sD}, v{vKA}", f"s_sub_u32 s{sD}, 0, s{sD}")
            for j in range(5):
                for T in range(2):
                    for s in range(4):
                        e(mfma(("v", vO + (j*2+T)*4), ("a", aK + 16*T + 4*s), ("a", aQ[h] + (j*4+s)*4), 0 if s == 0 else None))
            e("s_nop 7")
            for j in range(5):
                b = vO + j*8
                for r in range(0, 8, 2): e(f"v_max3_f32 v{vNM+4*j}, v{b+r}, v{b+r+1}, v{vNM+4*j}")
        e("s_barrier", f"s_add_u32 s{sOFF}, s{sOFF}, 16384", f"s_cmp_lg_u32 s{sOFF}, {16*(h+1)*16384}", f"s_cbranch_scc1 L_rl{h}")
        for M in range(16*h, 16*h + 3):
            self.emit_dma_straight(self.dma_kv_static("K", M) + self.dma_kv_static("V", M))
        e(f"s_mov_b32 s{sOFF}, {(16*h+3)*16384}", f"s_add_u32 s{sM0}, s{sKVW}, {3*PITCH}", f"s_mov_b32 s{sD}, s{sDA}")
        e("s_waitcnt vmcnt(0)", "s_barrier", f"s_branch L_head{h}")
        self.ws = save

    def wo_hh(self, i):
        return [(0, 0), (0, 1), (1, 0), (2, 0), (3, 0), (1, 1), (2, 1), (3, 1)][i]
    def dma_wo(self, i, vbase):
        p, par = self.wo_hh(i)
        ops = []
        for t in range(9):
            pre = [I(f"s_add_u32 m0, s{sOM0}, {(i % 4)*OST + t*1024}")] if t % 4 == 0 else []
            same = [I(f"s_add_u32 s{sT3}, s{sWR+p}, {par*128*1152}")] if t == 0 else []
            ops.append((pre, same, I(f"buffer_load_dwordx4 v{vbase+t}, {srd(SWO)}, s{sT3} offen offset:{(t % 4)*1024} {self.c.wo_flags} lds", id=("wo", i, t)), []))
        return ops
    def o_start(self):
        e = self.e
        vb = vS + 4
        for t in range(9):
            e(f"v_add_u32 v{vb+t}, {64*t}, v0", f"v_mul_u32_u24 v{vb+t}, 3641, v{vb+t}", f"v_lshrrev_b32 v{vb+t}, 16, v{vb+t}",
              f"v_mul_u32_u24 v{vb+t}, 864, v{vb+t}", f"v_lshl_add_u32 v{vb+t}, v0, 4, v{vb+t}")
            if t >= 4: e(f"v_add_u32 v{vb+t}, {1024*(t - t % 4)}, v{vb+t}")
        for i in range(3):
            for pre, same, vm, post in self.dma_wo(i, vb):
                e(*pre); e(*same)
                if pre and not same: e("s_nop 0")
                e(vm)
        for t in range(9): e(f"v_accvgpr_write_b32 a{240+t}, v{vb+t}")

    def oacc(self, j, i):
        if j < 4: return ("v", 96 + (j*9 + i) * 4)
        return ("v", 240 + 4*i) if i < 4 else ("a", 160)

    def phase_o(self):
        e = self.e; c = self.c
        vLN, vA1, vPL = 1, 2, 3
        vA0 = 12
        vA0 = [13, 14, 0, 12]
        vWO = 4
        vWO, vPL = 3, 15
        aA, NR = 164, 8
        e(f"v_lshrrev_b32 v12, 2, v0", "v_mul_u32_u24 v12, 288, v12", "v_and_b32 v14, 3, v0", "v_lshl_add_u32 v12, v14, 3, v12",
          f"v_lshlrev_b32 v{vLN}, 4, v0",
          f"s_lshl_b32 s3, s{sPI}, 7", "s_xor_b32 s3, s3, 128", f"v_add_u32 v{vA1}, s3, v12", f"s_mul_i32 s{sT}, s{sPI}, 160")
        for i in range(4):
            e(f"s_xor_b32 s3, s{sKQ}, {i}", "s_lshl_b32 s3, s3, 5", f"s_add_u32 s3, s3, s{sT}", f"v_add_u32 v{vA0[i]}, s3, v12")
        for t in range(9): e(f"v_accvgpr_read_b32 v{vWO+t}, a{240+t}")
        Bbuf = lambda i: ("v", 16) if i == 1 else (("a", 0) if (i == 0 or i % 2 == 1) else ("a", 80))
        ms = []; start = {}; last = {}
        for i in range(8):
            for s in range(4):
                for n in range(9):
                    f = 36*i + 9*s + n
                    start[f] = len(ms)
                    for j in range(5 if n <= 4 else 4):
                        k, b = Bbuf(i)
                        nd = [("oa", f, 0), ("oa", f, 1)]
                        if i >= 2: nd.append(("ob", i, s, j))
                        elif j == 4: nd.append(("pr", i, s))
                        ms.append(I(mfma(self.oacc(j, n), ("a", aA + 4*(f % NR)), (k, b + (j*4+s)*4), 0 if (i == 0 and s == 0) else None), needs=nd))
                    last[f] = len(ms) - 1
        G = Gaps(ms)
        def aread(f, v):
            i, r = divmod(f, 36); s, n = divmod(r, 9)
            va, off = (vA0[n], 0) if n < 4 else (vA1, 32*(n-4))
            return I(f"ds_read_b64_tr_b16 {R('a', aA + 4*(f % NR) + 2*v, 2)}, v{va} offset:{s*9216 + v*4608 + off}", id=("oa", f, v))
        pre = [I("s_barrier", needs=[("wo", 0, 8), ("pr", 1, 3)])]
        for i in range(8):
            for r in range(36):
                for v in range(2):
                    f = 36*i + r
                    g = 164*i - 13 + ((2*r + v) * 152) // 72
                    if g < 0: pre.append(aread(f, v)); continue
                    assert g <= start[f] - 8, (f, g, start[f])
                    assert f < NR or g >= last[f - NR], (f, g)
                    G.mem[g].append(aread(f, v))
        seq = []
        for i in range(8):
            g0 = 164 * i
            if i < 7:
                d = OST if i % 4 != 3 else -3 * OST
                for k, va in enumerate(vA0 + [vA1]):
                    G.val[g0 + 140 + k].append(I(f"v_add_u32 v{va}, {d & 0xffffffff:#x}, v{va}"))
                G.waitneeds[g0 + 148] += [("oa", 36*i + 35, 1), ("wo", i + 1, 8)]
                if i == 1: G.waitneeds[g0 + 148] += [("os", 1, 3, 3)]
                G.sal[g0 + 149].append(I("s_barrier"))
                if i == 1: G.val[g0 + 150] += self.publish(2)
            ops = []
            lo = g0 + 2
            if i + 3 < 8: wo = self.dma_wo(i + 3, vWO)
            else: wo = []
            ob = []
            if 1 <= i < 7:
                p, par = self.wo_hh(i + 1)
                k, b = Bbuf(i + 1)
                for s in range(4):
                    for j in range(5):
                        same = [I(f"s_add_u32 s{sT2}, s{sT}, {j*4096}")] if j < 4 else [I(f"s_add_u32 s{sT2}, s3, 0")]
                        ob.append(([], same, I(f"buffer_load_dwordx4 {R(k, b + (j*4+s)*4, 4)}, v{vLN}, {srd(SWS)}, s{sT2} offen offset:{s*1024} sc1", id=("ob", i + 1, s, j)), []))
                need = 1 + par
                load = f"buffer_load_dword v{vPL}, off, {srd(SWS)}, s{sFP+p-1} sc1"
                test = [f"v_readfirstlane_b32 s{sT2}, v{vPL}", f"s_cmp_ge_u32 s{sT2}, {need}"]
                gp = g0 - 164 + 90
                while G.mem[gp]: gp += 1
                G.mem[gp].append(I(load, id=("poll", i)))
                G.val[g0] += [I(test[0], needs=[("poll", i)]), I(test[1]), I(f"s_cbranch_scc0 L_sp_o{i}"), I(f"L_sb_o{i}:"),
                              I(f"s_add_u32 s{sT}, s{sOB}, s{sOP+p-1}"), I(f"s_add_u32 s3, s{sOS}, s{sOP+p-1}")]
                if par: G.val[g0] += [I(f"s_add_u32 s{sT}, s{sT}, 73728"), I(f"s_add_u32 s3, s3, 73728")]
                self.spin(f"o{i}", [load], test)
            tim = [(g0 + 3 + k * 7, o) for k, o in enumerate(ob)] + [(g0 + 6 + k * 14, o) for k, o in enumerate(wo)]
            tim.sort(key=lambda t: t[0])
            g = g0
            for t, (p_, same, vm, post) in tim:
                g = max(g + 2, t)
                while G.mem[g]: g += 1
                assert g < g0 + 147
                G.mem[g].append(vm)
                for x in p_: seq.append((x, g - 1, g - 1))
                for x in same: seq.append((x, g - 1, g))
        self.e(*pre)
        pre2 = []
        G.place_waits(self.ws, pre2)
        G.place_salu(seq)
        self.raw(pre2)
        self.raw(G.flat())
        print("phase O est cycles", G.cost(), file=sys.stderr)
        self.stamp()
        def pk(dst, t):
            return [f"v_cvt_pk_bf16_f32 v{dst}, v{t}, v{t+1}", f"v_cvt_pk_bf16_f32 v{dst+1}, v{t+2}, v{t+3}"]
        e(f"s_mul_i32 s{sT}, s{sKQ}, {4*5120}", f"s_add_u32 s{sT}, s{sT}, s{sPB}")
        for j in range(1, 4):
            e(f"s_xor_b32 s3, s{sKQ}, {j}", f"s_mul_i32 s3, s3, {16*5120}", f"s_add_u32 s3, s3, s{sT}")
            tl = [self.oacc(4, j)[1]] + [self.oacc(j, n)[1] for n in range(9)]
            for k in range(5):
                d = 16 + ((j-1)*5 + k) * 4
                e(*pk(d, tl[2*k]), *pk(d + 2, tl[2*k+1]))
                if k == 4: e("s_add_u32 s3, s3, 4096")
                e(I(f"buffer_store_dwordx4 v[{d}:{d+3}], v{vLN}, {srd(SWS)}, s3 offen offset:{(k % 4)*1024} sc1", id=("ps", j, k)))
        for r in range(4): e(f"v_accvgpr_read_b32 v{76+r}, a{160+r}")
        e(f"v_lshrrev_b32 v2, 1, v{vLN}")
        e(*pk(80, 76))
        e(f"s_lshr_b32 s3, s{sG}, 3", f"s_lshl_b32 s{sT2}, s{sBR}, 5", f"s_add_u32 s3, s3, s{sT2}", "s_lshl_b32 s3, s3, 13",
          f"s_lshl_b32 s{sT2}, s{sW}, 9", f"s_add_u32 s3, s3, s{sT2}", f"s_add_u32 s{sT3}, s3, {WS_SH}",
          f"s_lshl_b32 s3, s{sKQ}, 11", f"s_add_u32 s3, s3, s{sT3}")
        e(I(f"buffer_store_dwordx2 v[80:81], v2, {srd(SWS)}, s3 offen sc1", id=("ps", 4, 0)))
        e(f"v_lshrrev_b32 v3, 4, v{vLN}", "v_lshrrev_b32 v4, 4, v3", "v_bfe_u32 v5, v3, 2, 2", "v_cmp_eq_u32 vcc, v4, v5",
          "v_and_b32 v6, 1, v3", "v_lshlrev_b32 v6, 4, v6", "v_mov_b32 v7, 0x3f80", "v_lshlrev_b32 v6, v6, v7",
          "v_cndmask_b32 v6, 0, v6, vcc", "v_and_b32 v7, 2, v3", "v_cmp_eq_u32 vcc, 0, v7",
          "v_mov_b32 v84, 0", "v_mov_b32 v85, 0", "v_cndmask_b32 v86, 0, v6, vcc", "v_sub_u32 v87, v6, v86",
          "v_mov_b32 v88, 0", "v_mov_b32 v89, 0")
        e("v_and_b32 v5, 15, v3", "v_mul_u32_u24 v5, 2304, v5", "v_lshl_add_u32 v5, v4, 3, v5")
        e(f"v_mov_b32 v8, s{sFQ}", f"v_writelane_b32 v8, s{sFQ+1}, 1", f"v_writelane_b32 v8, s{sFQ+2}, 2")
        e(I("s_barrier", needs=[("ps", 4, 0)]))
        self.raw(self.publish(3))
        self.stamp()
        load = f"buffer_load_dword v9, v8, {srd(SWS)}, 0 offen sc1"
        test = ["v_cmp_gt_u32 vcc, 3, v9", "s_cmp_eq_u64 vcc, 0"]
        e(load, "s_waitcnt vmcnt(0)", *test, "s_cbranch_scc0 L_sp_fin", "L_sb_fin:")
        self.spin("fin", [load], test)
        self.stamp()
        e(f"s_mul_i32 s{sT}, s{sKQ}, {16*5120}", f"s_add_u32 s{sT}, s{sT}, s{sPB}")
        for j in range(1, 4):
            e(f"s_xor_b32 s{sT2}, s{sKQ}, {j}", f"s_mul_i32 s3, s{sT2}, {4*5120}", f"s_add_u32 s3, s3, s{sT}")
            for k in range(5):
                d = 16 + ((j-1)*5 + k) * 4
                if k == 4: e("s_add_u32 s3, s3, 4096")
                e(I(f"buffer_load_dwordx4 v[{d}:{d+3}], v{vLN}, {srd(SWS)}, s3 offen offset:{(k % 4)*1024} sc1", id=("pl", j, k)))
            e(f"s_lshl_b32 s3, s{sT2}, 11", f"s_add_u32 s3, s3, s{sT3}")
            e(I(f"buffer_load_dwordx2 v[{132+4*j}:{133+4*j}], v2, {srd(SWS)}, s3 offen sc1", id=("pl", j, 5)))
            e(f"v_mov_b32 v{134+4*j}, 0", f"v_mov_b32 v{135+4*j}, 0")
        for j in range(1, 4):
            tl = [self.oacc(4, 0)] + [self.oacc(0, (n ^ j) if n < 4 else n) for n in range(9)]
            for k in range(5):
                d = 16 + ((j-1)*5 + k) * 4
                e(I(mfma(tl[2*k], ("v", 86), ("v", d)), needs=[("pl", j, k)]), mfma(tl[2*k+1], ("v", 84), ("v", d)))
            e(I(mfma(("v", 76), ("v", 86), ("v", 132 + 4*j)), needs=[("pl", j, 5)]))
        e(f"s_mul_i32 s{sT}, s{sBR}, 1152", f"s_mul_i32 s3, s{sHP}, 288", f"s_add_u32 s{sT}, s{sT}, s3",
          f"s_mul_i32 s3, s{sB}, {288*2304}", f"s_add_u32 s{sT}, s{sT}, s3",
          f"s_lshl_b32 s3, s{sROW+4}, 1", f"s_add_u32 s{sT3}, s{sT}, s3",
          f"s_lshl_b32 s3, s{sROW}, 1", f"s_add_u32 s{sT}, s{sT}, s3", f"s_mul_i32 s{sD}, s{sPI}, 160")
        t = self.oacc(4, 0)[1]
        e(*pk(t, t), f"s_lshl_b32 s3, s{sKQ}, 5", f"s_add_u32 s3, s3, s{sD}", f"s_add_u32 s3, s3, s{sT3}",
          f"buffer_store_dwordx2 v[{t}:{t+1}], v5, {srd(SOUT)}, s3 offen")
        for n in range(9):
            t = self.oacc(0, n)[1]
            e(*pk(t, t))
            if n < 4:
                e(f"s_xor_b32 s3, s{sKQ}, {n}", "s_lshl_b32 s3, s3, 5", f"s_add_u32 s3, s3, s{sD}", f"s_add_u32 s3, s3, s{sT}")
                off = 0
            else:
                if n == 4: e(f"s_lshl_b32 s3, s{sPI}, 7", "s_xor_b32 s3, s3, 128", f"s_add_u32 s3, s3, s{sT}")
                off = 32 * (n - 4)
            e(f"buffer_store_dwordx2 v[{t}:{t+1}], v5, {srd(SOUT)}, s3 offen offset:{off}")
        e(f"s_cmp_eq_u32 s{sPI}, 1", "s_cbranch_scc1 L_fin", *pk(76, 76), f"v_cmp_eq_u32 vcc, s{sKQ}, v4",
          "s_and_saveexec_b64 s[90:91], vcc", f"buffer_store_dwordx2 v[76:77], v5, {srd(SOUT)}, s{sT3} offen offset:128",
          "s_mov_b64 exec, s[90:91]", "L_fin:")

    def build(self):
        self.setup()
        self.phase_q()
        self.attn_schedule()
        self.head(0)
        self.head(1)
        self.stamp()
        if self.c.stop_after != "A":
            self.phase_o()
        self.e("s_waitcnt vmcnt(0) lgkmcnt(0)")
        self.stamp()
        self.e("s_endpgm")
        self.raw(self.tailcode)
        self.redo(0)
        self.redo(1)
        self.e("L_end:")
        probs = check_hazards(self.out, "main")
        for nm, seq in self.checks: probs += check_hazards(seq, nm)
        for p in probs: print(p, file=sys.stderr)
        assert not probs
        hdr = open("cdna_kernels/" + NAME[:-7] + ".s.ref").read().split("; Override launch")[0]
        txt = hdr + f"; @launch grid=(256,1,1) block=(256,1,1) lds={LDS_BYTES}\n"
        txt += f""".amdgcn_target "amdgcn-amd-amdhsa--gfx950"
.text
.globl {NAME}
.p2align 8
.type {NAME},@function
{NAME}:
"""
        for x in self.out:
            if self.c.no_dma and x.k == "vm" and f"s{sOFF} offen" in x.t: continue
            txt += (x.t if x.k == "l" else "    " + " ".join(x.t.split())) + "\n"
        txt += f"""    s_endpgm
.section .rodata,"a"
.p2align 6
.amdhsa_kernel {NAME}
  .amdhsa_next_free_vgpr 512
  .amdhsa_next_free_sgpr 102
  .amdhsa_accum_offset 256
  .amdhsa_group_segment_fixed_size 0
  .amdhsa_kernarg_size 104
  .amdhsa_user_sgpr_count 2
  .amdhsa_user_sgpr_kernarg_segment_ptr 1
  .amdhsa_system_sgpr_workgroup_id_x 1
.end_amdhsa_kernel
"""
        return txt

def make(**kw):
    c = Cfg()
    for k, v in kw.items():
        assert hasattr(c, k), k
        setattr(c, k, v)
    return Gen(c).build()

if __name__ == "__main__":
    kw = {}
    out = sys.argv[1]
    for a in sys.argv[2:]:
        k, v = a.split("=", 1)
        try: v = eval(v)
        except Exception: pass
        kw[k] = v
    open(out, "w").write(make(**kw))
```

```python
import sys, struct, math
from asmlib import *

NAME = "concat_heads__mha_block_cached__gqa_block_cached__near_ridge_kernel"
def f2u(x): return struct.unpack("<I", struct.pack("<f", x))[0]

class Cfg:
    stamps = False
    stop_after = None
    kv_flags = "nt"
    x_flags = ""
    wq_flags = ""
    wo_flags = ""
    thr = 2.0 ** 30
    backlog = 10
    rot = False
    code_prefetch = True
    wo_touch = 4
    nfirst = 18
    no_vmwait = False
    kv_same = False
    no_dma = False

SX, SWQ, SK, SV, SWO, SWS, SOUT, SDBG = 4, 8, 12, 16, 20, 24, 28, 32
sW, sPI, sKQ, sB, sHP, sBR = 36, 37, 38, 39, 40, 41
sROW = 42
sH, sDA, sDB, sD, sM0, sOFF, sT, sT2 = 47, 48, 49, 50, 51, 52, 53, 54
sWM0 = 55
sC = 56
sTHR, sXK, sWK, sXM0, sREDO, sKVW = 58, 59, 60, 61, 62, 63
sOB = 64
sOS = 65
sG = 66
sST = 68
sSTO = 70
sFL = 71
sFP = 72
sFQ = 75
sOP = 78
sWR = 81
sPB = 85
sOM0 = 86
sT3 = 87
sSPIN = 88
PITCH = 17408
VBASE = 4 * PITCH
XB = (115712, 69632)
SCR = 8 * PITCH
MISC = 9 * PITCH
LDS_BYTES = 163840
HALF = 8448
WS_O = 0
WS_PART = 0x2800000
WS_SH = 0x3e00000
WS_FLAG = 0x3f00000
WS_STAMP = 0x4000000
OST = 36864
WS_BYTES = 292618240
vDMA, vKA, vVA = 1, 2, 3
vL = 4
vT = 9
vNM = 16
vS = 36
NS = 6
vP = (60, 80)
vO = 96
vXD, vWD, vXR, vWR0, vWR1 = 4, 5, 6, 7, 8
aQ = (0, 80)
aK = 160
aV = 192
NV = 4

def srd(n): return f"s[{n}:{n+3}]"

class Gen:
    def __init__(self, cfg):
        self.c = cfg
        self.out = []
        self.ws = WaitState()
        self.nstamp = 0
        self.tailcode = []
        self.checks = []
    def e(self, *ts):
        for t in ts:
            for line in (t.split("\n") if isinstance(t, str) else [t]):
                if isinstance(line, str):
                    line = line.strip()
                    if not line: continue
                    line = I(line)
                self.out += linear_waits([line], self.ws)
    def raw(self, ins):
        self.out += ins
    def stamp_ins(self):
        k = self.nstamp; self.nstamp += 1
        return [I(x) for x in (f"s_memtime s[{sST}:{sST+1}]", "s_memrealtime s[96:97]", "s_waitcnt lgkmcnt(0)",
               f"v_accvgpr_write_b32 a252, s{sST}", f"v_accvgpr_write_b32 a253, s96",
               f"buffer_store_dwordx2 a[252:253], off, {srd(SWS)}, s{sSTO} offset:{k*8}")]
    def stamp(self):
        if self.c.stamps: self.e(*self.stamp_ins())
    def stamp_gap(self, G, g):
        if not self.c.stamps: return
        x = self.stamp_ins()
        G.val[g] += x[:-1]
        G.mem[g + 1].insert(0, x[-1])

    def setup(self):
        c = self.c; e = self.e
        e(f"""
        s_cmp_ge_u32 s2, 256
        s_cbranch_scc1 L_end
        {"s_memtime s[96:97]" if c.stamps else ""}
        {"s_memrealtime s[98:99]" if c.stamps else ""}
        s_load_dwordx16 s[64:79], s[0:1], 0
        s_load_dwordx8 s[80:87], s[0:1], 64
        s_load_dwordx2 s[88:89], s[0:1], 96
        v_lshrrev_b32 v9, 6, v0
        v_and_b32 v0, 63, v0
        s_and_b32 s3, s2, 7
        v_readfirstlane_b32 s{sW}, v9
        s_lshr_b32 s{sBR}, s3, 2
        s_and_b32 s{sKQ}, s3, 3
        s_lshr_b32 s3, s2, 3
        s_lshr_b32 s{sB}, s3, 2
        s_and_b32 s{sHP}, s3, 3
        s_and_b32 s{sPI}, s{sW}, 1
        """)
        if c.code_prefetch:
            e(f"""
            s_getpc_b64 s[90:91]
            L_pc:
            v_lshlrev_b32 v10, 7, v0
            s_lshl_b32 s3, s{sW}, 13
            v_add_u32 v10, s3, v10
            s_mov_b32 s92, s90
            s_mov_b32 s93, s91
            s_mov_b32 s94, L_end-L_pc
            s_mov_b32 s95, 0x20000
            buffer_load_dword v15, v10, s[92:95], 0 offen
            s_mov_b32 s3, 0x8000
            buffer_load_dword v12, v10, s[92:95], s3 offen
            s_mov_b32 s3, 0x10000
            buffer_load_dword v13, v10, s[92:95], s3 offen
            """)
        e(f"""
        v_lshrrev_b32 v9, 2, v0
        v_mul_u32_u24 v{vXD}, 1152, v9
        v_lshrrev_b32 v9, 4, v0
        v_and_b32 v9, 2, v9
        v_xor_b32 v9, v9, v0
        v_and_b32 v9, 3, v9
        v_lshl_add_u32 v{vXD}, v9, 4, v{vXD}
        v_lshrrev_b32 v9, 5, v0
        v_lshlrev_b32 v9, 15, v9
        v_and_b32 v14, 31, v0
        v_lshl_add_u32 v9, v14, 4, v9
        s_lshl_b32 s3, s{sW}, 16
        v_add_u32 v{vWD}, s3, v9
        v_lshrrev_b32 v9, 2, v0
        v_and_b32 v9, 2, v9
        v_lshrrev_b32 v14, 4, v0
        v_xor_b32 v9, v9, v14
        v_and_b32 v14, 15, v0
        v_lshl_add_u32 v9, v14, 2, v9
        s_mul_i32 s{sXM0}, s{sW}, 10240
        s_add_u32 s{sXM0}, s{sXM0}, {XB[1]}
        v_lshlrev_b32 v9, 4, v9
        v_add_u32 v{vXR}, s{sXM0}, v9
        v_lshrrev_b32 v9, 2, v0
        v_mul_u32_u24 v9, 1088, v9
        v_and_b32 v14, 3, v0
        v_lshl_add_u32 v9, v14, 4, v9
        s_lshl_b32 s3, s{sPI}, 8
        v_add_u32 v{vWR0}, s3, v9
        s_xor_b32 s3, s3, 256
        v_add_u32 v{vWR1}, s3, v9
        s_lshl_b32 s3, s{sW}, 12
        v_lshlrev_b32 v9, 4, v0
        v_add_u32 v{vDMA}, s3, v9
        s_mul_i32 s{sWM0}, s{sW}, 4352
        s_mul_i32 s{sKVW}, s{sW}, 4224
        s_lshr_b32 s3, s{sW}, 1
        s_mul_i32 s3, s3, 144
        s_add_u32 s{sROW+4}, s3, 128
        s_mul_i32 s{sROW+4}, s{sROW+4}, 1152
        s_lshl_b32 s{sT}, s{sPI}, 6
        s_add_u32 s3, s3, s{sT}
        """)
        for j in range(4):
            e(f"s_xor_b32 s{sT}, s{sKQ}, {j}", f"s_lshl_b32 s{sT}, s{sT}, 4", f"s_add_u32 s{sT}, s{sT}, s3",
              f"s_mul_i32 s{sROW+j}, s{sT}, 1152")
        if c.rot:
            e(f"s_lshl_b32 s3, s{sHP}, 1", f"s_add_u32 s3, s3, s{sB}", f"s_sub_u32 s{sT}, s3, 9", "s_cmp_ge_u32 s3, 9",
              f"s_cselect_b32 s3, s{sT}, s3")
        else:
            e("s_mov_b32 s3, 0")
        e(f"s_lshl_b32 s{sXK}, s3, 7", f"s_lshl_b32 s{sWK}, s3, 19")
        cc = f2u(math.log2(math.e) / math.sqrt(128.0))
        e(f"""
        s_mov_b32 s{sC}, {cc:#x}
        s_mov_b32 s{sC+1}, {cc:#x}
        s_mov_b32 s{sTHR}, {f2u(c.thr):#x}
        s_mul_i32 s{sH}, s{sPI}, {-2*HALF}
        s_add_u32 s{sH}, s{sH}, {HALF}
        s_sub_u32 s{sDA}, {PITCH}, s{sH}
        s_sub_u32 s{sDB}, {-3*PITCH}, s{sH}
        s_waitcnt lgkmcnt(0)
        s_cmp_eq_u32 s{sBR}, 0
        s_cselect_b64 s[{SX}:{SX+1}], s[64:65], s[74:75]
        s_cselect_b64 s[{SK}:{SK+1}], s[66:67], s[76:77]
        s_cselect_b64 s[{SV}:{SV+1}], s[68:69], s[78:79]
        s_cselect_b64 s[{SWQ}:{SWQ+1}], s[70:71], s[80:81]
        s_cselect_b64 s[{SWO}:{SWO+1}], s[72:73], s[82:83]
        s_mul_i32 s3, s{sB}, 331776
        s_add_u32 s{SX}, s{SX}, s3
        s_addc_u32 s{SX+1}, s{SX+1}, 0
        s_mov_b32 s{SX+2}, 331776
        s_mov_b32 s{SX+3}, 0x20000
        s_lshl_b32 s{sT}, s{sKQ}, 2
        s_add_u32 s{sT}, s{sT}, s{sHP}
        s_lshl_b32 s3, s{sT}, 9
        s_add_u32 s{SWQ}, s{SWQ}, s3
        s_addc_u32 s{SWQ+1}, s{SWQ+1}, 0
        s_sub_u32 s{SWQ+2}, {576*8192}, s3
        s_mov_b32 s{SWQ+3}, 0x20000
        """)

    def setup2(self):
        e = self.e
        e(f"""
        s_lshl_b32 s{sT}, s{sKQ}, 2
        s_add_u32 s{sT}, s{sT}, s{sHP}
        s_lshl_b32 s3, s{sB}, 4
        s_add_u32 s{sT}, s{sT}, s3
        s_lshl_b32 s3, s{sT}, 19
        {"s_mov_b32 s3, 0" if self.c.kv_same else ""}
        s_add_u32 s{SK}, s{SK}, s3
        s_addc_u32 s{SK+1}, s{SK+1}, 0
        s_mov_b32 s{SK+2}, 524288
        s_mov_b32 s{SK+3}, 0x20000
        s_add_u32 s{SV}, s{SV}, s3
        s_addc_u32 s{SV+1}, s{SV+1}, 0
        s_mov_b32 s{SV+2}, 524288
        s_mov_b32 s{SV+3}, 0x20000
        s_mov_b32 s{SWO+2}, {4096*1152}
        s_mov_b32 s{SWO+3}, 0x20000
        s_mov_b32 s{SOUT}, s84
        s_mov_b32 s{SOUT+1}, s85
        s_mov_b32 s{SOUT+2}, {8*288*1152*2}
        s_mov_b32 s{SOUT+3}, 0x20000
        s_mov_b32 s{SDBG}, s86
        s_mov_b32 s{SDBG+1}, s87
        s_mov_b32 s{SDBG+2}, 256
        s_mov_b32 s{SDBG+3}, 0x20000
        s_mov_b32 s{SWS}, s88
        s_mov_b32 s{SWS+1}, s89
        s_mov_b32 s{SWS+2}, {WS_BYTES}
        s_mov_b32 s{SWS+3}, 0x20000
        s_lshl_b32 s3, s{sBR}, 7
        s_add_u32 s{sT}, s{sT}, s3
        s_mul_i32 s{sOB}, s{sT}, 147456
        s_lshr_b32 s3, s{sW}, 1
        s_mul_i32 s3, s3, 36864
        s_add_u32 s{sOB}, s{sOB}, s3
        s_add_u32 s{sOS}, s{sOB}, 32768
        s_lshl_b32 s3, s{sPI}, 14
        s_add_u32 s{sOB}, s{sOB}, s3
        s_mov_b32 s{sG}, s2
        s_lshl_b32 s3, s2, 2
        s_add_u32 s3, s3, s{sW}
        s_lshl_b32 s3, s3, 8
        s_add_u32 s{sSTO}, s3, {WS_STAMP}
        s_mov_b32 s{sREDO}, 0
        s_mul_i32 s3, s{sKQ}, {1024*1152}
        s_mul_i32 s{sT}, s{sHP}, 288
        s_add_u32 s3, s3, s{sT}
        s_add_u32 s{SWO}, s{SWO}, s3
        s_addc_u32 s{SWO+1}, s{SWO+1}, 0
        s_sub_u32 s{SWO+2}, s{SWO+2}, s3
        s_lshl_b32 s{sFL}, s2, 7
        s_add_u32 s{sFL}, s{sFL}, {WS_FLAG}
        s_mul_i32 s{sOM0}, s{sW}, 9216
        s_mul_i32 s{sT2}, s{sW}, {32*1152}
        """)
        for p in range(4):
            e(f"s_xor_b32 s3, s{sHP}, {p}", f"s_mul_i32 s{sT}, s3, {256*1152}", f"s_add_u32 s{sWR+p}, s{sT}, s{sT2}")
            if p:
                e(f"s_sub_u32 s3, s3, s{sHP}", f"s_mul_i32 s{sOP+p-1}, s3, 147456",
                  f"s_xor_b32 s{sFP+p-1}, s{sFL}, {p << 10}", f"s_xor_b32 s{sFQ+p-1}, s{sFL}, {p << 7}")
        e(f"""
        s_lshr_b32 s3, s2, 3
        s_lshl_b32 s{sT}, s{sBR}, 5
        s_add_u32 s3, s3, s{sT}
        s_mul_i32 s{sPB}, s3, {64*5120}
        s_mul_i32 s{sT}, s{sW}, 5120
        s_add_u32 s{sPB}, s{sPB}, s{sT}
        s_add_u32 s{sPB}, s{sPB}, {WS_PART}
        """)
        if self.c.wo_touch:
            e(f"s_lshr_b32 s3, s{sG}, 3", f"s_mul_i32 s3, s3, {32*1152}", f"s_mul_i32 s{sT}, s{sW}, {8*1152}", f"s_add_u32 s{sT3}, s3, s{sT}",
              f"v_lshlrev_b32 v10, 7, v0", f"v_and_b32 v11, 0x380, v10", "v_add_u32 v11, 8192, v11")
        if self.c.stop_after != "A":
            e("v_mov_b32 v9, 0", I(f"buffer_store_dword v9, off, {srd(SWS)}, s{sFL} sc1", id=("flclr",)))
        self.kv_addr_init()

    def dbg_addr(self, v):
        self.e(f"""
        s_and_b32 s3, s{sG}, 7
        s_lshl_b32 s3, s3, 3
        s_add_u32 s3, s3, s{sB}
        s_lshl_b32 s3, s3, 2
        s_lshr_b32 s{sT}, s{sG}, 3
        s_lshl_b32 s{sT2}, s{sBR}, 5
        s_add_u32 s{sT}, s{sT}, s{sT2}
        s_lshl_b32 s{sT}, s{sT}, 2
        v_mov_b32 v{v}, 0x1000
        v_writelane_b32 v{v}, s3, 0
        v_writelane_b32 v{v}, s{sT}, 1
        """)

    def announce_cleared(self):
        e = self.e
        e(f"s_cmp_lg_u32 s{sW}, 0", "s_cbranch_scc1 L_ann")
        self.dbg_addr(10)
        e("v_mov_b32 v11, 1", "s_mov_b32 s3, 0x10000", "v_writelane_b32 v11, s3, 1")
        self.raw([I(f"buffer_atomic_add v11, v10, {srd(SDBG)}, 0 offen sc1")])
        e("L_ann:")

    def publish(self, val):
        lab = f"L_pub{val}"
        return [I(f"s_cmp_lg_u32 s{sW}, 0"), I(f"s_cbranch_scc1 {lab}"), I(f"v_accvgpr_write_b32 a255, {val}"),
                I(f"buffer_store_dword a255, off, {srd(SWS)}, s{sFL} sc1", k="x"), I(f"{lab}:")]

    def spin(self, name, load, test):
        self.tailcode += [I(f"L_sp_{name}:"), I(f"s_mov_b32 s{sSPIN}, 0x40000"), I(f"L_spl_{name}:"), I("s_sleep 1")]
        self.tailcode += [I(x) for x in load] + [I("s_waitcnt vmcnt(0)")] + [I(x) for x in test]
        self.tailcode += [I(f"s_cbranch_scc1 L_sb_{name}"), I(f"s_sub_u32 s{sSPIN}, s{sSPIN}, 1"), I(f"s_cmp_lg_u32 s{sSPIN}, 0"),
                          I(f"s_cbranch_scc1 L_spl_{name}"), I(f"s_branch L_sb_{name}")]

    def kv_addr_init(self):
        e = self.e
        e(f"""
        v_and_b32 v9, 7, v0
        v_mul_u32_u24 v9, 1056, v9
        v_and_b32 v14, 8, v0
        v_lshl_add_u32 v9, v14, 5, v9
        v_and_b32 v14, 48, v0
        s_mul_i32 s3, s{sPI}, {HALF}
        v_add3_u32 v{vKA}, v9, v14, s3
        v_bfe_u32 v9, v0, 2, 3
        v_mul_u32_u24 v9, 1056, v9
        v_and_b32 v14, 32, v0
        v_lshl_add_u32 v9, v14, 3, v9
        v_and_b32 v14, 3, v0
        v_lshl_add_u32 v9, v14, 3, v9
        s_add_u32 s3, s3, {VBASE}
        v_add_u32 v{vVA}, s3, v9
        """)

    def dma_wq(self, i):
        slot = (i + 2) % 4
        ops = []
        for r in range(4):
            pre = [I(f"s_add_u32 m0, s{sWM0}, {slot*PITCH + r*1088}")]
            same = [I(f"s_add_u32 s{sT}, s{sWK}, {r*8192}")]
            vm = I(f"buffer_load_dwordx4 v{vWD}, {srd(SWQ)}, s{sT} offen {self.c.wq_flags} lds", id=("wq", i, r))
            post = []
            if r == 3:
                post = [I(f"s_add_u32 s{sWK}, s{sWK}, {32*8192}")]
                if i % 2 == 1:
                    post += [I(f"s_cmp_eq_u32 s{sWK}, {576*8192}"), I(f"s_cselect_b32 s{sWK}, 0, s{sWK}")]
            ops.append((pre, same, vm, post))
        return ops
    def dma_x(self, st, js):
        boff = XB[st % 2] - XB[1]
        ops = []
        for j in js:
            needs = [("xr", 2*st - 4, j), ("xr", 2*st - 3, j)] if st >= 2 else []
            ops.append(([I(f"s_add_u32 m0, s{sXM0}, {boff + j*1024}")], [I(f"s_add_u32 s{sT2}, s{sROW+j}, s{sXK}")],
                        I(f"buffer_load_dwordx4 v{vXD}, {srd(SX)}, s{sT2} offen {self.c.x_flags} lds", id=("x", 2*st, j), needs=needs), []))
            post = []
            if j == 4:
                post = [I(f"s_add_u32 s{sXK}, s{sXK}, 128"), I(f"s_cmp_eq_u32 s{sXK}, 1152"), I(f"s_cselect_b32 s{sXK}, 0, s{sXK}")]
            ops.append(([I(f"s_add_u32 m0, s{sXM0}, {boff + 5120 + j*1024 - 64}")], [],
                        I(f"buffer_load_dwordx4 v{vXD}, {srd(SX)}, s{sT2} offen offset:64 {self.c.x_flags} lds", id=("x", 2*st+1, j)), post))
        return ops
    def dma_kv_static(self, which, M):
        base = (M % 4) * PITCH + (VBASE if which == "V" else 0)
        ops = []
        for i in range(4):
            same = [I(f"s_mov_b32 s{sT}, {M*16384}")] if i == 0 else []
            ops.append(([I(f"s_add_u32 m0, s{sKVW}, {base + 32*i}")], same,
                        I(f"buffer_load_dwordx4 v{vDMA}, {srd(SK if which == 'K' else SV)}, s{sT} offen offset:{i*1024} {self.c.kv_flags} lds", id=(which, M, i)), []))
        return ops
    def emit_dma_straight(self, ops):
        for pre, same, vm, post in ops:
            self.e(*pre)
            self.e(*(same or [I("s_nop 0")]))
            self.e(vm, *post)

    def qacc(self, tp, j):
        idn = tp * 4 + j if j < 4 else 64 + tp
        return ("v", 16 + 4 * idn) if idn < 60 else ("a", 200 + 4 * (idn - 60))

    def phase_q(self):
        e = self.e
        NR = 8
        aB, aA = 0, 40
        first = self.dma_wq(0) + self.dma_x(0, range(5)) + self.dma_wq(1) + self.dma_x(1, range(5)) + self.dma_wq(2) + self.dma_wq(3)
        self.emit_dma_straight(first[:self.c.nfirst])
        self.setup2()
        if self.c.stamps:
            self.nstamp = 1
            e("v_mov_b32 v15, s96", f"buffer_store_dword v15, off, {srd(SWS)}, s{sSTO}", "v_mov_b32 v15, s98", f"buffer_store_dword v15, off, {srd(SWS)}, s{sSTO} offset:4")
        self.stamp()
        ms = []; start = {}; last = {}
        for i in range(18):
            for tp in range(16):
                f = 16 * i + tp
                start[f] = len(ms)
                for j in range(5 if tp < 8 else 4):
                    ms.append(I(mfma(self.qacc(tp, j), ("a", aA + 4 * (f % NR)), ("a", aB + 20 * (i % 2) + 4 * j), 0 if i == 0 else None),
                                needs=[("ar", f, 0), ("ar", f, 1), ("xr", i, j)]))
                last[f] = len(ms) - 1
        G = Gaps(ms)
        pre = []
        def aread(f, v):
            i, tp = divmod(f, 16)
            t = tp % 8
            off = ((i + 2) % 4) * PITCH + 512 * v + 64 * (t >> 1) + 8 * (t & 1)
            return I(f"ds_read_b64_tr_b16 {R('a', aA + 4*(f % NR) + 2*v, 2)}, v{vWR0 if tp < 8 else vWR1} offset:{off}", id=("ar", f, v))
        def xread(i, j):
            off = XB[(i // 2) % 2] - XB[1] + 5120 * (i % 2) + 1024 * j
            return I(f"ds_read_b128 {R('a', aB + 20*(i % 2) + 4*j, 4)}, v{vXR} offset:{off}", id=("xr", i, j), needs=[("x", i, j)])
        for j in range(5): pre.append(xread(0, j))
        pre.append(I("s_barrier", needs=[("wq", 0, r) for r in range(4)]))
        for i in range(18):
            for tp in range(16):
                for v in range(2):
                    f = 16 * i + tp
                    g = 72 * i - 13 + ((2 * tp + v) * 58) // 32
                    if g < 0: pre.append(aread(f, v)); continue
                    assert g <= start[f] - 8
                    assert f < NR or g >= last[f - NR], (f, g)
                    G.mem[g].append(aread(f, v))
            if i < 17:
                for j in range(5): G.mem[72 * i + 46 + 2 * j].append(xread(i + 1, j))
        sal = []
        for i in range(18):
            g = 72 * i + 56
            G.waitneeds[g] += [("ar", 16 * i + 15, 1)]
            if i < 17: G.waitneeds[g] += [("wq", i + 1, r) for r in range(4)]
            G.sal[g + 1].append(I("s_barrier"))
            if i in (0, 3, 8): self.stamp_gap(G, g + 1)
        seq = []
        for i in range(0, 19):
            lo = max(2, 72 * (i - 1) + 59); hi = min(72 * i + 55, len(ms) - 1)
            ops = []
            if i == 0: ops = [(o, lo) for o in first[self.c.nfirst:]]
            elif i + 3 < 18: ops += [(o, lo) for o in self.dma_wq(i + 3)]
            if i % 2 == 1 and (i + 3) // 2 < 9: ops += [(o, 72 * i + 5) for o in self.dma_x((i + 3) // 2, range(3))]
            if i > 0 and i % 2 == 0 and (i + 2) // 2 < 9: ops = [(o, lo) for o in self.dma_x((i + 2) // 2, range(3, 5))] + ops
            if i == self.c.wo_touch:
                ops += [(([], [], I(f"buffer_load_dword v13, v10, {srd(SWO)}, s{sT3} offen"), []), lo),
                        (([], [], I(f"buffer_load_dword v14, v11, {srd(SWO)}, s{sT3} offen"), []), lo)]
            if i == 15: ops += [(o, lo) for o in self.dma_kv_static("K", 0)]
            if i == 16: ops += [(o, lo) for o in self.dma_kv_static("V", 0) + self.dma_kv_static("K", 1) + self.dma_kv_static("V", 1)]
            if i == 17: ops += [(o, lo) for o in self.dma_kv_static("K", 2)]
            if i == 18: ops += [(o, lo) for o in self.dma_kv_static("V", 2)]
            step = 5 if 0 < i < 18 else (3 if i else 2)
            g = lo - step + 1
            for (p, same, vm, post), l in ops:
                prev = g
                g = max(g + step, l)
                while G.mem[g]: g += 1
                assert g <= hi, (i, g, hi)
                G.mem[g].append(vm)
                for x in p: seq.append((x, max(prev + 1, g - 2), g - 1))
                for x in same: seq.append((x, g - 1, g))
                for x in post: seq.append((x, g + 1, min(g + step - 1 - (step > 2), len(ms) - 1)))
        self.e(*pre)
        pre2 = []
        G.place_waits(self.ws, pre2)
        G.place_salu(seq)
        self.raw(pre2)
        self.raw(G.flat())
        print("phase Q est cycles", G.cost(), file=sys.stderr)
        self.stamp()
        def pack(src0, src1, tmp):
            o = []
            for k, (kind, b) in enumerate((src0, src1)):
                if kind == "a":
                    for r in range(4): o.append(f"v_accvgpr_read_b32 v{12+r}, a{b+r}")
                    b = 12
                o.append(f"v_pk_mul_f32 v[{b}:{b+1}], v[{b}:{b+1}], s[{sC}:{sC+1}]")
                o.append(f"v_pk_mul_f32 v[{b+2}:{b+3}], v[{b+2}:{b+3}], s[{sC}:{sC+1}]")
                o.append(f"v_cvt_pk_bf16_f32 v{tmp+2*k}, v{b}, v{b+1}")
                o.append(f"v_cvt_pk_bf16_f32 v{tmp+2*k+1}, v{b+2}, v{b+3}")
            return o
        e(f"v_add_u32 v9, {SCR}, v{vDMA}")
        for s in range(4):
            e(*pack(self.qacc(2*s, 4), self.qacc(2*s+1, 4), 4))
            e(I(f"ds_write_b128 v9, v[4:7] offset:{s*1024}", id=("qsw", s)))
        e(f"s_cmp_eq_u32 s{sPI}, 1", "s_cbranch_scc1 L_qe1")
        base = len(self.out)
        for pi in range(2):
            if pi == 1: e("L_qe1:")
            for hh in range(2):
                h = hh ^ pi
                for j in range(4):
                    for s in range(4):
                        t0 = self.qacc(8*hh + 2*s, j); t1 = self.qacc(8*hh + 2*s + 1, j)
                        assert t0[0] == "v"
                        e(*pack(t0, t1, t0[1]))
                        for r in range(4): e(f"v_accvgpr_write_b32 a{aQ[h] + (j*4+s)*4 + r}, v{t0[1]+r}")
            if pi == 0: e("s_branch L_qe2")
        e("L_qe2:")
        e(I("s_barrier", needs=[("qsw", 3)] + [(k, 0, i) for k in "KV" for i in range(4)]))
        if self.c.stop_after != "A": self.announce_cleared()
        e(f"s_lshl_b32 s3, s{sPI}, 12", "v_subrev_u32 v9, s3, v9")
        for h in range(2):
            for s in range(4):
                e(I(f"ds_read_b128 {R('a', aQ[h] + (16+s)*4, 4)}, v9 offset:{h*4096 + s*1024}", id=("qsr", h, s)))
        e(f"s_mov_b32 s{sOFF}, {3*16384}", f"s_add_u32 s{sM0}, s{sKVW}, {3*PITCH}", f"s_mov_b32 s{sD}, s{sDA}")
        for j in range(5): e(f"v_mov_b32 v{vNM+4*j}, 0xff800000")

    def attn_mfmas(self, h, nwin, first=True, lastw=True):
        ms = []; cstart = {}; cend = {}; pv = {}; wstart = []
        tcount = [0]; sslot = {}
        def chain(n, T, j):
            sl = tcount[0] % NS; tcount[0] += 1
            sslot[(n, T, j)] = sl
            cstart[(n, T, j)] = len(ms)
            for s in range(4):
                ms.append(I(mfma(("v", vS + 4*sl), ("a", aK + 16*T + 4*s), ("a", aQ[h] + (j*4+s)*4), ("v", vNM + 4*j) if s == 0 else None),
                            needs=[("kr", h, n, T, s)]))
            cend[(n, T, j)] = len(ms) - 1
        def pvm(n, dt, j):
            f = 8*n + dt
            pv[(n, dt, j)] = len(ms)
            ms.append(I(mfma(("v", vO + (j*8+dt)*4), ("a", aV + 4*(f % NV)), ("v", vP[n % 2] + 4*j), 0 if (n == 0 and first) else None),
                        needs=[("vr", h, f, 0), ("vr", h, f, 1)]))
        for m in range(nwin):
            wstart.append(len(ms))
            for c in range(8):
                chain(2*m+1, c >> 2, c & 3)
                for j in range(5): pvm(2*m, c, j)
            lst = [(dt, j) for dt in range(8) for j in range(4)]
            cnt = [3, 3, 3, 3, 4, 3, 3, 3, 3, 4]
            for c in range(10):
                if not (lastw and m == nwin - 1): chain(2*m+2, c // 5, c % 5)
                for _ in range(cnt[c]):
                    dt, j = lst.pop(0); pvm(2*m+1, dt, j)
        wstart.append(len(ms))
        return ms, cstart, cend, pv, sslot, wstart

    def kread(self, h, n, T, s):
        return I(f"ds_read_b128 {R('a', aK + 16*T + 4*s, 4)}, v{vKA} offset:{512*T + 64*s}", id=("kr", h, n, T, s))
    def vread(self, h, f, v):
        return I(f"ds_read_b64_tr_b16 {R('a', aV + 4*(f % NV) + 2*v, 2)}, v{vVA} offset:{512*v + 32*(f % 8)}", id=("vr", h, f, v))

    def attn_schedule(self):
        NW = 8
        ms, cstart, cend, pv, sslot, wstart = self.attn_mfmas(0, NW, first=False, lastw=False)
        n = len(ms)
        mem = {}
        def put(g, key):
            while g in mem: g += 1
            mem[g] = key; return g
        rel = {}
        for i, g in enumerate((3, 12, 21, 30)): rel[("dK", i)] = put(g, 1)
        for i, g in enumerate((44, 52, 60, 68)): rel[("dV", i)] = put(g, 1)
        first = {f: pv[(2 + f // 8, f % 8, 0)] - 144 for f in range(-4, 16)}
        lastu = {f: pv[(2 + f // 8, f % 8, 4 if (f // 8) % 2 == 0 else 3)] - 144 for f in range(-4, 16)}
        for f in range(16):
            g = max(first[f - 2], lastu[f - 4] + 1)
            for v in range(2):
                gg = g % 144
                g2 = put(gg, 1)
                rel[("vr", f, v)] = g + (g2 - gg)
                g = rel[("vr", f, v)] + 2
                assert rel[("vr", f, v)] <= first[f] - 7, (f, v, rel[("vr", f, v)], first[f])
        for (dn, T), g0 in (((1, 1), 1), ((2, 0), 42), ((2, 1), 73), ((3, 0), 109)):
            for s in range(4):
                rel[("kr", dn, T, s)] = put(g0 + 6 * s, 1)
        rel["bar"] = 39
        rel[("ka", 0)] = rel[("kr", 1, 1, 3)] + 1
        rel[("ka", 1)] = rel[("kr", 2, 1, 3)] + 1
        rel[("va", 0)] = rel[("vr", 7, 1)]
        rel[("va", 1)] = rel[("vr", 15, 1)]
        assert rel[("vr", 8, 0)] > rel[("va", 0)] and rel[("vr", 0, 0)] + 144 > rel[("va", 1)]
        used = [0] * 144
        for k, g in rel.items():
            if k == "bar": continue
            used[g % 144] += 2 if k[0] in ("dK", "dV") else 1
        used[143] += 2
        tiles = sorted(cend, key=lambda t: cend[t])
        place = {}
        eq = []
        sm = []
        ti = 0
        for g in range(n):
            while ti < len(tiles) and cend[tiles[ti]] + 3 <= g:
                eq += [(tiles[ti], r) for r in range(4)]; ti += 1
            u = used[g % 144]
            rdy = [x for x in sm if x[1] <= g]
            backlog = 3.5 * len(eq) + len(sm)
            budget = 3 if (backlog > self.c.backlog and g % 144 != 143) else 2
            def take_small():
                rdy.sort(); x = rdy.pop(0); sm.remove(x); place[x[2]] = g
            def take_e():
                t, r = eq.pop(0); place[("e", t, r)] = g
                sm.append(((cend[t], 1, r), g + 1, ("a", t, r)))
                if r % 2: sm.append(((cend[t], 0, r), g + 1, ("c", t, r // 2)))
            if u == 0 and eq and len(rdy) < 4:
                take_e(); u += 2
            elif u == 1 and budget == 3 and eq and len(rdy) < 2:
                take_e(); u += 2
            while u < budget and rdy:
                take_small(); u += 1
        def wrel(m):
            d = {}
            for k, g in place.items():
                nn, T, j = k[1]
                if nn in (2*m+1, 2*m+2): d[(k[0], nn - 2*m, T, j, k[2])] = g - 144 * m
            return d
        a, b = wrel(4), wrel(5)
        assert a == b, "VALU schedule not periodic"
        assert len(a) == 180
        rel.update(a)
        self.rel = rel

    def head(self, h):
        e = self.e; rel = self.rel; c = self.c
        e(f"L_head{h}:")
        self.stamp()
        for T in range(2):
            for s in range(4): e(self.kread(h, 0, T, s))
        e(f"v_add_u32 v{vKA}, s{sH}, v{vKA}")
        tS = lambda T, j: vO + (j*2 + T) * 4
        for j in range(5):
            for T in range(2):
                for s in range(4):
                    nd = [("kr", h, 0, T, s)] + ([("qsr", 1, 3)] if (h == 0 and j == 4) else [])
                    e(I(mfma(("v", tS(T, j)), ("a", aK + 16*T + 4*s), ("a", aQ[h] + (j*4+s)*4), 0 if s == 0 else None), needs=nd))
        ms, cstart, cend, pv, sslot, wstart = self.attn_mfmas(h, 16)
        G = Gaps(ms)
        early = []
        lastw = 15
        full, fcs, fce, fpv, _, _ = self.attn_mfmas(h, 16, lastw=False)
        dropped = set()
        for k, st in fcs.items():
            if k[0] == 32: dropped.update(range(st, st + 4))
        amap = []; a = -1
        for g in range(len(full)):
            if g not in dropped: a += 1
            amap.append(a)
        def at(m, g):
            p = 144 * m + g
            if p < 0: return None
            return amap[p]
        seq = []
        for m in range(-1, 16):
            items = []
            for k, g in rel.items():
                if k == "bar": continue
                kind = k[0]
                if kind == "kr":
                    n = 2*m + k[1]
                    if n < 1 or n > 31: continue
                    items.append((g, "mem", self.kread(h, n, k[2], k[3])))
                elif kind == "vr":
                    if m < 0: continue
                    items.append((g, "mem", self.vread(h, 16*m + k[1], k[2])))
                elif kind in ("dK", "dV"):
                    if m < 0: continue
                    M = 16*h + m + 3; i = k[1]
                    items.append((g, "mem", I(f"buffer_load_dwordx4 v{vDMA}, {srd(SK if kind == 'dK' else SV)}, s{sOFF} offen offset:{i*1024} {c.kv_flags} lds", id=(kind[1], M, i))))
                elif kind == "ka":
                    if m < 0 or (m == 15 and k[1] == 1): continue
                    items.append((g, "val", I(f"v_add_u32 v{vKA}, s{sD if k[1] == 0 else sH}, v{vKA}")))
                elif kind == "va":
                    if m < 0: continue
                    items.append((g, "val", I(f"v_add_u32 v{vVA}, s{sH if k[1] == 0 else sD}, v{vVA}")))
                else:
                    n = 2*m + k[1]
                    if n < 1 or n > 31: continue
                    T, j, r = k[2], k[3], k[4]
                    S = vS + 4 * sslot[(n, T, j)]
                    if kind == "e": x = I(f"v_exp_f32 v{S+r}, v{S+r}")
                    elif kind == "a": x = I(f"v_add_f32 v{vL+j}, v{vL+j}, v{S+r}")
                    else:
                        x = I(f"v_cvt_pk_bf16_f32 v{vP[n % 2] + 4*j + 2*T + r}, v{S+2*r}, v{S+2*r+1}")
                        assert at(m, g) <= pv[(n, 0, j)] - 2, ("late cvt", n, T, j)
                    x.key = (144*m + g, cend[(n, T, j)], {"e": 2, "c": 0, "a": 1}[kind], r)
                    nxt = [t for t in cstart if cstart[t] > cstart[(n, T, j)] and sslot[t] == sslot[(n, T, j)]]
                    if nxt: assert at(m, g) < min(cstart[t] for t in nxt), ("S slot reuse", n, T, j)
                    items.append((g, "val", x))
            items.sort(key=lambda t: t[0])
            for g, where, x in items:
                p = at(m, g)
                if p is None: early.append(x)
                else: getattr(G, where)[p].append(x)
            if m >= 0:
                M = 16*h + m
                g = at(m, rel["bar"])
                G.waitneeds[g] += [("kr", h, 2*m+1, 1, 3)] + [(k, M+1, i) for k in "KV" for i in range(4)]
                G.sal[g + 1].append(I("s_barrier"))
                for i in range(4):
                    g = rel[("dK", i)]
                    seq.append((I(f"s_mov_b32 m0, s{sM0}" if i == 0 else "s_add_u32 m0, m0, 32"), at(m, max(0, g - 4)), at(m, g - 1)))
                for i in range(4):
                    g = rel[("dV", i)]
                    seq.append((I(f"s_add_u32 m0, s{sM0}, {VBASE}" if i == 0 else "s_add_u32 m0, m0, 32"), at(m, g - 4), at(m, g - 1)))
                g = rel[("dV", 3)] + 1
                for t in (f"s_add_u32 s{sOFF}, s{sOFF}, 16384",
                          f"s_add_u32 s{sM0}, s{sM0}, {PITCH}", f"s_sub_u32 s{sT}, s{sM0}, {4*PITCH}",
                          f"s_cmp_ge_u32 s{sM0}, {4*PITCH}", f"s_cselect_b32 s{sM0}, s{sT}, s{sM0}"):
                    seq.append((I(t), at(m, g), at(m, 125)))
                g1 = at(m, rel[("va", 1)]) + 1
                for t in (f"s_and_b32 s{sT}, s{sOFF}, 0xc000",):
                    seq.append((I(t), at(m, 100), at(m, 141)))
                for t in (f"s_cmp_eq_u32 s{sT}, 0x8000", ):
                    seq.append((I(t), at(m, 100), at(m, 141)))
                seq.append((I(f"s_cselect_b32 s{sD}, s{sDB}, s{sDA}"), g1, at(m, 142)))
                if 1 <= m <= 14:
                    seq.append((I(f"s_cmp_lg_u32 s{sOFF}, {(16*h + 18)*16384}"), g1, at(m, 142)))
        e(*[x for x in early if x.k == "ds"])
        assert all(x.k == "ds" for x in early)
        tm = lambda j: vS + j
        tt = lambda j: vS + 8 + j
        for j in range(5):
            b = tS(0, j)
            e(f"v_max3_f32 v{tm(j)}, v{b}, v{b+1}, v{vNM+4*j}", f"v_max3_f32 v{tt(j)}, v{b+2}, v{b+3}, v{b+4}",
              f"v_max3_f32 v{tm(j)}, v{b+5}, v{b+6}, v{tm(j)}", f"v_max3_f32 v{tm(j)}, v{b+7}, v{tt(j)}, v{tm(j)}")
        self.xlane([tm(j) for j in range(5)], [tt(j) for j in range(5)], "v_max_f32")
        for j in range(5):
            for r in range(4): e(f"v_sub_f32 v{vNM+4*j+r}, 0, v{tm(j)}")
        for j in range(5):
            b = tS(0, j)
            for r in range(0, 8, 2): e(f"v_pk_add_f32 v[{b+r}:{b+r+1}], v[{b+r}:{b+r+1}], v[{vNM+4*j}:{vNM+4*j+1}]")
            for r in range(8): e(f"v_exp_f32 v{b+r}, v{b+r}")
        for j in range(5):
            b = tS(0, j)
            for r in range(4): e(f"v_cvt_pk_bf16_f32 v{vP[0]+4*j+r}, v{b+2*r}, v{b+2*r+1}")
            e(f"v_pk_add_f32 v[{b}:{b+1}], v[{b}:{b+1}], v[{b+2}:{b+3}]", f"v_pk_add_f32 v[{b+4}:{b+5}], v[{b+4}:{b+5}], v[{b+6}:{b+7}]",
              f"v_pk_add_f32 v[{b}:{b+1}], v[{b}:{b+1}], v[{b+4}:{b+5}]", f"v_add_f32 v{vL+j}, v{b}, v{b+1}")
        full_o = (h == 1 and c.stop_after != "A")
        if full_o:
            self.dbg_addr(10)
            dload = f"buffer_load_dword v11, v10, {srd(SDBG)}, 0 offen sc1"
            e(I(dload, id=("dbgp",)))
        self.stamp()
        for g in range(len(ms)):
            G.val[g].sort(key=lambda x: x.key or (0, 0, 0, 0))
        pre = []
        G.place_waits(self.ws, pre)
        G.place_salu(seq)
        self.raw(pre)
        win = [[x.t for x in G.flat(wstart[m], wstart[m+1])] for m in range(16)]
        import re
        for m in range(1, 14):
            assert len(win[m]) == len(win[14]), f"window {m} differs"
            for x, y in zip(win[m], win[14]):
                if x == y: continue
                nx, ny = re.search(r"vmcnt\((\d+)\)", x), re.search(r"vmcnt\((\d+)\)", y)
                assert nx and ny and int(nx.group(1)) >= int(ny.group(1)) and re.sub(r"vmcnt\(\d+\)", "", x) == re.sub(r"vmcnt\(\d+\)", "", y), (m, x, y)
        print(f"head {h}: window est cycles", G.cost(wstart[1], wstart[2]), "instrs", len(win[1]), file=sys.stderr)
        self.raw(G.flat(0, wstart[1]))
        self.raw([I(".p2align 6"), I(f"L_loop{h}:")])
        body = G.flat(wstart[14], wstart[15])
        assert body[-1].k == "m", body[-3:]
        self.raw(body)
        self.raw([I(f"s_cbranch_scc1 L_loop{h}")])
        self.checks.append((f"loop{h}", body + body))
        if full_o:
            test = ["v_readlane_b32 s3, v11, 0", f"v_readlane_b32 s{sT2}, v11, 1", "s_and_b32 s3, s3, 0xffff",
                    f"s_lshr_b32 s{sT2}, s{sT2}, 16", f"s_min_u32 s3, s3, s{sT2}", "s_cmp_ge_u32 s3, 4"]
            self.raw(self.publish(1))
            self.raw([I(x) for x in test] + [I("s_cbranch_scc0 L_sp_dbg"), I("L_sb_dbg:")])
            self.spin("dbg", [dload], test)
        self.raw(fix_hazards(G.flat(wstart[15], wstart[16])))
        self.stamp()
        self.head_epilogue(h)

    def xlane(self, xs, ts, op):
        e = self.e
        for sw in ("v_permlane32_swap_b32", "v_permlane16_swap_b32"):
            for x, t in zip(xs, ts): e(f"v_mov_b32 v{t}, v{x}")
            if len(xs) < 3: e("s_nop 1")
            for k, (x, t) in enumerate(zip(xs, ts)): e(f"{sw} v{t}, v{x}")
            for x, t in zip(xs, ts): e(f"{op} v{x}, v{x}, v{t}")

    def head_epilogue(self, h):
        e = self.e
        O = lambda j, dt: vO + (j*8 + dt) * 4
        self.xlane([vL + j for j in range(5)], [vS + j for j in range(5)], "v_add_f32")
        e(f"v_add_f32 v10, v{vL}, v{vL+1}", f"v_add_f32 v11, v{vL+2}, v{vL+3}",
          f"v_add_f32 v10, v10, v{vL+4}", "v_add_f32 v10, v10, v11",
          f"v_cmp_nge_f32 vcc, s{sTHR}, v10", "s_cmp_lg_u64 vcc, 0", f"s_cselect_b32 s3, 1, 0",
          f"v_mov_b32 v12, s3", f"s_lshl_b32 s3, s{sW}, 2", f"s_add_u32 s3, s3, {MISC + 2048}", "v_mov_b32 v13, s3",
          I("ds_write_b32 v13, v12", id=("fw", h)))
        e(f"v_add_u32 v9, {SCR}, v{vDMA}")
        e(f"v_xor_b32 v10, 4096, v{vDMA}", f"v_add_u32 v10, {SCR}, v10")
        e(f"v_lshrrev_b32 v11, 1, v{vDMA}", "v_and_b32 v11, 0x1f8, v11", f"s_lshl_b32 s3, s{sW}, 9", f"s_add_u32 s3, s3, {MISC}",
          "v_add_u32 v11, s3, v11", f"v_mov_b32 v12, v{vL+4}", f"v_mov_b32 v13, v{vNM+16}",
          I("ds_write_b64 v11, v[12:13]", id=("lw", h)), "v_xor_b32 v11, 512, v11")
        e(f"s_cmp_eq_u32 s{sPI}, 1", f"s_cbranch_scc1 L_he1_{h}")
        st = (dict((k, list(v)) for k, v in self.ws.q.items()), dict(self.ws.done), dict(self.ws.pos))
        for pi in range(2):
            if pi == 1:
                e(f"L_he1_{h}:")
                self.ws.q, self.ws.done, self.ws.pos = st
            for k in range(4):
                e(I(f"ds_write_b128 v10, {R('v', O(4, 4*(1-pi) + k), 4)} offset:{k*1024}", id=("ow", h, k)))
            if pi == 1:
                e("s_nop 1")
                for r in range(16): e(f"v_mov_b32 v{O(4, 0) + r}, v{O(4, 4) + r}")
            if pi == 0: e("s_branch L_he2_%d" % h)
        e(f"L_he2_{h}:")
        for j in range(4): e(f"v_rcp_f32 v{vL+j}, v{vL+j}")
        full_o = (h == 1 and self.c.stop_after != "A")
        e(I("s_barrier", needs=[("ow", h, 3)] + ([("V", 34, 3)] if full_o else [])))
        e(f"v_mov_b32 v14, {MISC + 2048}")
        e(I(f"ds_read_b128 v[{vS}:{vS+3}], v14", id=("fr", h)))
        e(I(f"ds_read_b64 v[14:15], v11", id=("lr", h)))
        for k in range(4):
            e(I(f"ds_read_b128 {R('v', O(4, 4 + k), 4)}, v9 offset:{k*1024}", id=("or", h, k)))
        e(I(f"v_or3_b32 v{vS}, v{vS}, v{vS+1}, v{vS+2}", needs=[("fr", h)]), f"v_or_b32 v{vS}, v{vS}, v{vS+3}", "s_nop 0",
          f"v_readfirstlane_b32 s3, v{vS}", f"s_andn2_b32 s3, s3, s{sREDO}", f"s_cbranch_scc1 L_redo{h}",
          f"s_mov_b32 s{sREDO}, 0")
        if full_o: self.o_start()
        e(I("v_min_f32 v11, v13, v15", needs=[("lr", h)]), "v_sub_f32 v13, v11, v13", "v_sub_f32 v15, v11, v15",
          "v_exp_f32 v13, v13", "v_exp_f32 v15, v15", "s_nop 0", "v_mul_f32 v12, v12, v13", "v_fmac_f32 v12, v14, v15",
          "v_rcp_f32 v12, v12", "s_nop 0", "v_mul_f32 v14, v12, v15", "v_mul_f32 v12, v12, v13")
        b0, b1 = O(4, 0), O(4, 4)
        for r in range(0, 16, 2):
            e(f"v_pk_mul_f32 v[{b0+r}:{b0+r+1}], v[{b0+r}:{b0+r+1}], v[12:13] op_sel_hi:[1,0]")
        for r in range(0, 16, 2):
            e(I(f"v_pk_fma_f32 v[{b0+r}:{b0+r+1}], v[{b1+r}:{b1+r+1}], v[14:15], v[{b0+r}:{b0+r+1}] op_sel_hi:[1,0,1]", needs=[("or", h, r // 4)]))
        for r in range(8): e(f"v_cvt_pk_bf16_f32 v{b0+r}, v{b0+2*r}, v{b0+2*r+1}")
        e(f"v_and_b32 v13, 0x3ff, v{vDMA}", f"s_lshl_b32 s3, s{sPI}, 11", f"s_add_u32 s3, s3, s{sOS}")
        if h: e(f"s_add_u32 s3, s3, 73728")
        for k in range(2):
            e(I(f"ds_write_b128 v9, v[{b0+4*k}:{b0+4*k+3}] offset:{k*1024}", id=("pw", h, k)))
            e(I(f"buffer_store_dwordx4 v[{b0+4*k}:{b0+4*k+3}], v13, {srd(SWS)}, s3 offen offset:{k*1024} sc1", id=("os", h, 4, k)))
        for j in range(4):
            e(f"s_add_u32 s3, s{sOB}, {h*73728 + j*4096}")
            for s in range(4):
                b = O(j, 2*s)
                p = (vL + j) & ~1
                sel = "op_sel:[0,1] op_sel_hi:[1,1]" if (vL + j) & 1 else "op_sel_hi:[1,0]"
                for r in range(0, 8, 2):
                    e(f"v_pk_mul_f32 v[{b+r}:{b+r+1}], v[{b+r}:{b+r+1}], v[{p}:{p+1}] {sel}")
                d = 16 + (j*4 + s) * 4
                for r in range(4): e(f"v_cvt_pk_bf16_f32 v{d+r}, v{b+2*r}, v{b+2*r+1}")
                e(I(f"buffer_store_dwordx4 v[{d}:{d+3}], v13, {srd(SWS)}, s3 offen offset:{s*1024} sc1", id=("os", h, j, s)))
                if h == 0:
                    for r in range(4): e(f"v_accvgpr_write_b32 a{(j*4+s)*4 + r}, v{d+r}")
        e(I("s_barrier", needs=[("pw", h, 1)]))
        e(f"s_lshl_b32 s3, s{sPI}, 12", "v_subrev_u32 v9, s3, v9")
        for s in range(4):
            dst = R("a", 64 + 4*s, 4) if h == 0 else R("v", 80 + 4*s, 4)
            e(I(f"ds_read_b128 {dst}, v9 offset:{(s >> 1)*4096 + (s & 1)*1024}", id=("pr", h, s)))
        if h == 0:
            e("s_nop 1")
            for j in range(5): e(f"v_mov_b32 v{vNM+4*j}, 0xff800000")

    def redo(self, h):
        e = self.e
        save = self.ws; self.ws = WaitState()
        e(f"L_redo{h}:", "s_waitcnt vmcnt(0) lgkmcnt(0)", "s_barrier", f"s_mov_b32 s{sREDO}, 1")
        self.kv_addr_init()
        for j in range(5): e(f"v_mov_b32 v{vNM+4*j}, 0xff800000")
        e(f"s_mov_b32 s{sOFF}, {16*h*16384}", f"s_mov_b32 s{sD}, s{sH}", f"L_rl{h}:")
        for i in range(4):
            e(f"s_add_u32 m0, s{sKVW}, {32*i}", "s_nop 0",
              f"buffer_load_dwordx4 v{vDMA}, {srd(SK)}, s{sOFF} offen offset:{i*1024} lds")
        e("s_waitcnt vmcnt(0)", "s_barrier")
        for half in range(2):
            for T in range(2):
                for s in range(4): e(self.kread(h, 0, T, s))
            e("s_waitcnt lgkmcnt(0)", f"v_add_u32 v{vKA}, s{sD}, v{vKA}", f"s_sub_u32 s{sD}, 0, s{sD}")
            for j in range(5):
                for T in range(2):
                    for s in range(4):
                        e(mfma(("v", vO + (j*2+T)*4), ("a", aK + 16*T + 4*s), ("a", aQ[h] + (j*4+s)*4), 0 if s == 0 else None))
            e("s_nop 7")
            for j in range(5):
                b = vO + j*8
                for r in range(0, 8, 2): e(f"v_max3_f32 v{vNM+4*j}, v{b+r}, v{b+r+1}, v{vNM+4*j}")
        e("s_barrier", f"s_add_u32 s{sOFF}, s{sOFF}, 16384", f"s_cmp_lg_u32 s{sOFF}, {16*(h+1)*16384}", f"s_cbranch_scc1 L_rl{h}")
        for M in range(16*h, 16*h + 3):
            self.emit_dma_straight(self.dma_kv_static("K", M) + self.dma_kv_static("V", M))
        e(f"s_mov_b32 s{sOFF}, {(16*h+3)*16384}", f"s_add_u32 s{sM0}, s{sKVW}, {3*PITCH}", f"s_mov_b32 s{sD}, s{sDA}")
        e("s_waitcnt vmcnt(0)", "s_barrier", f"s_branch L_head{h}")
        self.ws = save

    def wo_hh(self, i):
        return [(0, 0), (0, 1), (1, 0), (2, 0), (3, 0), (1, 1), (2, 1), (3, 1)][i]
    def dma_wo(self, i, vbase):
        p, par = self.wo_hh(i)
        ops = []
        for t in range(9):
            pre = [I(f"s_add_u32 m0, s{sOM0}, {(i % 4)*OST + t*1024}")] if t % 4 == 0 else []
            same = [I(f"s_add_u32 s{sT3}, s{sWR+p}, {par*128*1152}")] if t == 0 else []
            ops.append((pre, same, I(f"buffer_load_dwordx4 v{vbase+t}, {srd(SWO)}, s{sT3} offen offset:{(t % 4)*1024} {self.c.wo_flags} lds", id=("wo", i, t)), []))
        return ops
    def o_start(self):
        e = self.e
        vb = vS + 4
        for t in range(9):
            e(f"v_add_u32 v{vb+t}, {64*t}, v0", f"v_mul_u32_u24 v{vb+t}, 3641, v{vb+t}", f"v_lshrrev_b32 v{vb+t}, 16, v{vb+t}",
              f"v_mul_u32_u24 v{vb+t}, 864, v{vb+t}", f"v_lshl_add_u32 v{vb+t}, v0, 4, v{vb+t}")
            if t >= 4: e(f"v_add_u32 v{vb+t}, {1024*(t - t % 4)}, v{vb+t}")
        for i in range(3):
            for pre, same, vm, post in self.dma_wo(i, vb):
                e(*pre); e(*same)
                if pre and not same: e("s_nop 0")
                e(vm)
        for t in range(9): e(f"v_accvgpr_write_b32 a{240+t}, v{vb+t}")

    def oacc(self, j, i):
        if j < 4: return ("v", 96 + (j*9 + i) * 4)
        return ("v", 240 + 4*i) if i < 4 else ("a", 160)

    def phase_o(self):
        e = self.e; c = self.c
        vLN, vA1, vPL = 1, 2, 3
        vA0 = 12
        vA0 = [13, 14, 0, 12]
        vWO = 4
        vWO, vPL = 3, 15
        aA, NR = 164, 8
        e(f"v_lshrrev_b32 v12, 2, v0", "v_mul_u32_u24 v12, 288, v12", "v_and_b32 v14, 3, v0", "v_lshl_add_u32 v12, v14, 3, v12",
          f"v_lshlrev_b32 v{vLN}, 4, v0",
          f"s_lshl_b32 s3, s{sPI}, 7", "s_xor_b32 s3, s3, 128", f"v_add_u32 v{vA1}, s3, v12", f"s_mul_i32 s{sT}, s{sPI}, 160")
        for i in range(4):
            e(f"s_xor_b32 s3, s{sKQ}, {i}", "s_lshl_b32 s3, s3, 5", f"s_add_u32 s3, s3, s{sT}", f"v_add_u32 v{vA0[i]}, s3, v12")
        for t in range(9): e(f"v_accvgpr_read_b32 v{vWO+t}, a{240+t}")
        Bbuf = lambda i: ("v", 16) if i == 1 else (("a", 0) if (i == 0 or i % 2 == 1) else ("a", 80))
        ms = []; start = {}; last = {}
        for i in range(8):
            for s in range(4):
                for n in range(9):
                    f = 36*i + 9*s + n
                    start[f] = len(ms)
                    for j in range(5 if n <= 4 else 4):
                        k, b = Bbuf(i)
                        nd = [("oa", f, 0), ("oa", f, 1)]
                        if i >= 2: nd.append(("ob", i, s, j))
                        elif j == 4: nd.append(("pr", i, s))
                        ms.append(I(mfma(self.oacc(j, n), ("a", aA + 4*(f % NR)), (k, b + (j*4+s)*4), 0 if (i == 0 and s == 0) else None), needs=nd))
                    last[f] = len(ms) - 1
        G = Gaps(ms)
        def aread(f, v):
            i, r = divmod(f, 36); s, n = divmod(r, 9)
            va, off = (vA0[n], 0) if n < 4 else (vA1, 32*(n-4))
            return I(f"ds_read_b64_tr_b16 {R('a', aA + 4*(f % NR) + 2*v, 2)}, v{va} offset:{s*9216 + v*4608 + off}", id=("oa", f, v))
        pre = [I("s_barrier", needs=[("wo", 0, 8), ("pr", 1, 3)])]
        for i in range(8):
            for r in range(36):
                for v in range(2):
                    f = 36*i + r
                    g = 164*i - 13 + ((2*r + v) * 152) // 72
                    if g < 0: pre.append(aread(f, v)); continue
                    assert g <= start[f] - 8, (f, g, start[f])
                    assert f < NR or g >= last[f - NR], (f, g)
                    G.mem[g].append(aread(f, v))
        seq = []
        for i in range(8):
            g0 = 164 * i
            if i < 7:
                d = OST if i % 4 != 3 else -3 * OST
                for k, va in enumerate(vA0 + [vA1]):
                    G.val[g0 + 140 + k].append(I(f"v_add_u32 v{va}, {d & 0xffffffff:#x}, v{va}"))
                G.waitneeds[g0 + 148] += [("oa", 36*i + 35, 1), ("wo", i + 1, 8)]
                if i == 1: G.waitneeds[g0 + 148] += [("os", 1, 3, 3)]
                G.sal[g0 + 149].append(I("s_barrier"))
                self.stamp_gap(G, g0 + 149)
                if i == 1: G.val[g0 + 150] += self.publish(2)
            ops = []
            lo = g0 + 2
            if i + 3 < 8: wo = self.dma_wo(i + 3, vWO)
            else: wo = []
            ob = []
            if 1 <= i < 7:
                p, par = self.wo_hh(i + 1)
                k, b = Bbuf(i + 1)
                for s in range(4):
                    for j in range(5):
                        same = [I(f"s_add_u32 s{sT2}, s{sT}, {j*4096}")] if j < 4 else [I(f"s_add_u32 s{sT2}, s3, 0")]
                        ob.append(([], same, I(f"buffer_load_dwordx4 {R(k, b + (j*4+s)*4, 4)}, v{vLN}, {srd(SWS)}, s{sT2} offen offset:{s*1024} sc1", id=("ob", i + 1, s, j)), []))
                need = 1 + par
                load = f"buffer_load_dword v{vPL}, off, {srd(SWS)}, s{sFP+p-1} sc1"
                test = [f"v_readfirstlane_b32 s{sT2}, v{vPL}", f"s_cmp_ge_u32 s{sT2}, {need}"]
                gp = g0 - 164 + 90
                while G.mem[gp]: gp += 1
                G.mem[gp].append(I(load, id=("poll", i)))
                G.val[g0] += [I(test[0], needs=[("poll", i)]), I(test[1]), I(f"s_cbranch_scc0 L_sp_o{i}"), I(f"L_sb_o{i}:"),
                              I(f"s_add_u32 s{sT}, s{sOB}, s{sOP+p-1}"), I(f"s_add_u32 s3, s{sOS}, s{sOP+p-1}")]
                if par: G.val[g0] += [I(f"s_add_u32 s{sT}, s{sT}, 73728"), I(f"s_add_u32 s3, s3, 73728")]
                self.spin(f"o{i}", [load], test)
            tim = [(g0 + 3 + k * 7, o) for k, o in enumerate(ob)] + [(g0 + 6 + k * 14, o) for k, o in enumerate(wo)]
            tim.sort(key=lambda t: t[0])
            g = g0
            for t, (p_, same, vm, post) in tim:
                g = max(g + 2, t)
                while G.mem[g]: g += 1
                assert g < g0 + 147
                G.mem[g].append(vm)
                for x in p_: seq.append((x, g - 1, g - 1))
                for x in same: seq.append((x, g - 1, g))
        self.e(*pre)
        pre2 = []
        G.place_waits(self.ws, pre2)
        G.place_salu(seq)
        self.raw(pre2)
        self.raw(G.flat())
        print("phase O est cycles", G.cost(), file=sys.stderr)
        self.stamp()
        def pk(dst, t):
            return [f"v_cvt_pk_bf16_f32 v{dst}, v{t}, v{t+1}", f"v_cvt_pk_bf16_f32 v{dst+1}, v{t+2}, v{t+3}"]
        e(f"s_mul_i32 s{sT}, s{sKQ}, {4*5120}", f"s_add_u32 s{sT}, s{sT}, s{sPB}")
        for j in range(1, 4):
            e(f"s_xor_b32 s3, s{sKQ}, {j}", f"s_mul_i32 s3, s3, {16*5120}", f"s_add_u32 s3, s3, s{sT}")
            tl = [self.oacc(4, j)[1]] + [self.oacc(j, n)[1] for n in range(9)]
            for k in range(5):
                d = 16 + ((j-1)*5 + k) * 4
                e(*pk(d, tl[2*k]), *pk(d + 2, tl[2*k+1]))
                if k == 4: e("s_add_u32 s3, s3, 4096")
                e(I(f"buffer_store_dwordx4 v[{d}:{d+3}], v{vLN}, {srd(SWS)}, s3 offen offset:{(k % 4)*1024} sc1", id=("ps", j, k)))
        for r in range(4): e(f"v_accvgpr_read_b32 v{76+r}, a{160+r}")
        e(f"v_lshrrev_b32 v2, 1, v{vLN}")
        e(*pk(80, 76))
        e(f"s_lshr_b32 s3, s{sG}, 3", f"s_lshl_b32 s{sT2}, s{sBR}, 5", f"s_add_u32 s3, s3, s{sT2}", "s_lshl_b32 s3, s3, 13",
          f"s_lshl_b32 s{sT2}, s{sW}, 9", f"s_add_u32 s3, s3, s{sT2}", f"s_add_u32 s{sT3}, s3, {WS_SH}",
          f"s_lshl_b32 s3, s{sKQ}, 11", f"s_add_u32 s3, s3, s{sT3}")
        e(I(f"buffer_store_dwordx2 v[80:81], v2, {srd(SWS)}, s3 offen sc1", id=("ps", 4, 0)))
        e(f"v_lshrrev_b32 v3, 4, v{vLN}", "v_lshrrev_b32 v4, 4, v3", "v_bfe_u32 v5, v3, 2, 2", "v_cmp_eq_u32 vcc, v4, v5",
          "v_and_b32 v6, 1, v3", "v_lshlrev_b32 v6, 4, v6", "v_mov_b32 v7, 0x3f80", "v_lshlrev_b32 v6, v6, v7",
          "v_cndmask_b32 v6, 0, v6, vcc", "v_and_b32 v7, 2, v3", "v_cmp_eq_u32 vcc, 0, v7",
          "v_mov_b32 v84, 0", "v_mov_b32 v85, 0", "v_cndmask_b32 v86, 0, v6, vcc", "v_sub_u32 v87, v6, v86",
          "v_mov_b32 v88, 0", "v_mov_b32 v89, 0")
        e("v_and_b32 v5, 15, v3", "v_mul_u32_u24 v5, 2304, v5", "v_lshl_add_u32 v5, v4, 3, v5")
        e(f"v_mov_b32 v8, s{sFQ}", f"v_writelane_b32 v8, s{sFQ+1}, 1", f"v_writelane_b32 v8, s{sFQ+2}, 2")
        e(I("s_barrier", needs=[("ps", 4, 0)]))
        self.raw(self.publish(3))
        self.stamp()
        load = f"buffer_load_dword v9, v8, {srd(SWS)}, 0 offen sc1"
        test = ["v_cmp_gt_u32 vcc, 3, v9", "s_cmp_eq_u64 vcc, 0"]
        e(load, "s_waitcnt vmcnt(0)", *test, "s_cbranch_scc0 L_sp_fin", "L_sb_fin:")
        self.spin("fin", [load], test)
        self.stamp()
        e(f"s_mul_i32 s{sT}, s{sKQ}, {16*5120}", f"s_add_u32 s{sT}, s{sT}, s{sPB}")
        for j in range(1, 4):
            e(f"s_xor_b32 s{sT2}, s{sKQ}, {j}", f"s_mul_i32 s3, s{sT2}, {4*5120}", f"s_add_u32 s3, s3, s{sT}")
            for k in range(5):
                d = 16 + ((j-1)*5 + k) * 4
                if k == 4: e("s_add_u32 s3, s3, 4096")
                e(I(f"buffer_load_dwordx4 v[{d}:{d+3}], v{vLN}, {srd(SWS)}, s3 offen offset:{(k % 4)*1024} sc1", id=("pl", j, k)))
            e(f"s_lshl_b32 s3, s{sT2}, 11", f"s_add_u32 s3, s3, s{sT3}")
            e(I(f"buffer_load_dwordx2 v[{132+4*j}:{133+4*j}], v2, {srd(SWS)}, s3 offen sc1", id=("pl", j, 5)))
            e(f"v_mov_b32 v{134+4*j}, 0", f"v_mov_b32 v{135+4*j}, 0")
        for j in range(1, 4):
            tl = [self.oacc(4, 0)] + [self.oacc(0, (n ^ j) if n < 4 else n) for n in range(9)]
            for k in range(5):
                d = 16 + ((j-1)*5 + k) * 4
                e(I(mfma(tl[2*k], ("v", 86), ("v", d)), needs=[("pl", j, k)]), mfma(tl[2*k+1], ("v", 84), ("v", d)))
            e(I(mfma(("v", 76), ("v", 86), ("v", 132 + 4*j)), needs=[("pl", j, 5)]))
        e(f"s_mul_i32 s{sT}, s{sBR}, 1152", f"s_mul_i32 s3, s{sHP}, 288", f"s_add_u32 s{sT}, s{sT}, s3",
          f"s_mul_i32 s3, s{sB}, {288*2304}", f"s_add_u32 s{sT}, s{sT}, s3",
          f"s_lshl_b32 s3, s{sROW+4}, 1", f"s_add_u32 s{sT3}, s{sT}, s3",
          f"s_lshl_b32 s3, s{sROW}, 1", f"s_add_u32 s{sT}, s{sT}, s3", f"s_mul_i32 s{sD}, s{sPI}, 160")
        t = self.oacc(4, 0)[1]
        e(*pk(t, t), f"s_lshl_b32 s3, s{sKQ}, 5", f"s_add_u32 s3, s3, s{sD}", f"s_add_u32 s3, s3, s{sT3}",
          f"buffer_store_dwordx2 v[{t}:{t+1}], v5, {srd(SOUT)}, s3 offen")
        for n in range(9):
            t = self.oacc(0, n)[1]
            e(*pk(t, t))
            if n < 4:
                e(f"s_xor_b32 s3, s{sKQ}, {n}", "s_lshl_b32 s3, s3, 5", f"s_add_u32 s3, s3, s{sD}", f"s_add_u32 s3, s3, s{sT}")
                off = 0
            else:
                if n == 4: e(f"s_lshl_b32 s3, s{sPI}, 7", "s_xor_b32 s3, s3, 128", f"s_add_u32 s3, s3, s{sT}")
                off = 32 * (n - 4)
            e(f"buffer_store_dwordx2 v[{t}:{t+1}], v5, {srd(SOUT)}, s3 offen offset:{off}")
        e(f"s_cmp_eq_u32 s{sPI}, 1", "s_cbranch_scc1 L_fin", *pk(76, 76), f"v_cmp_eq_u32 vcc, s{sKQ}, v4",
          "s_and_saveexec_b64 s[90:91], vcc", f"buffer_store_dwordx2 v[76:77], v5, {srd(SOUT)}, s{sT3} offen offset:128",
          "s_mov_b64 exec, s[90:91]", "L_fin:")

    def build(self):
        self.setup()
        self.phase_q()
        self.attn_schedule()
        self.head(0)
        self.head(1)
        self.stamp()
        if self.c.stop_after != "A":
            self.phase_o()
        self.e("s_waitcnt vmcnt(0) lgkmcnt(0)")
        self.stamp()
        self.e("s_endpgm")
        self.raw(self.tailcode)
        self.redo(0)
        self.redo(1)
        self.e("L_end:")
        probs = check_hazards(self.out, "main")
        for nm, seq in self.checks: probs += check_hazards(seq, nm)
        for p in probs: print(p, file=sys.stderr)
        assert not probs
        hdr = open("cdna_kernels/" + NAME[:-7] + ".s.ref").read().split("; Override launch")[0]
        txt = hdr + f"; @launch grid=(256,1,1) block=(256,1,1) lds={LDS_BYTES}\n"
        txt += f""".amdgcn_target "amdgcn-amd-amdhsa--gfx950"
.text
.globl {NAME}
.p2align 8
.type {NAME},@function
{NAME}:
"""
        for x in self.out:
            if self.c.no_vmwait and "vmcnt(12)" in x.t: x = I(x.t.replace("vmcnt(12)", "vmcnt(40)"))
            if self.c.no_dma and x.k == "vm" and f"s{sOFF} offen" in x.t: continue
            txt += (x.t if x.k == "l" else "    " + " ".join(x.t.split())) + "\n"
        txt += f"""    s_endpgm
.section .rodata,"a"
.p2align 6
.amdhsa_kernel {NAME}
  .amdhsa_next_free_vgpr 512
  .amdhsa_next_free_sgpr 102
  .amdhsa_accum_offset 256
  .amdhsa_group_segment_fixed_size 0
  .amdhsa_kernarg_size 104
  .amdhsa_user_sgpr_count 2
  .amdhsa_user_sgpr_kernarg_segment_ptr 1
  .amdhsa_system_sgpr_workgroup_id_x 1
.end_amdhsa_kernel
"""
        return txt

def make(**kw):
    c = Cfg()
    for k, v in kw.items():
        assert hasattr(c, k), k
        setattr(c, k, v)
    return Gen(c).build()

if __name__ == "__main__":
    kw = {}
    out = sys.argv[1]
    for a in sys.argv[2:]:
        k, v = a.split("=", 1)
        try: v = eval(v)
        except Exception: pass
        kw[k] = v
    open(out, "w").write(make(**kw))
```

```python
import sys, struct, math
from asmlib import *

NAME = "concat_heads__mha_block_cached__gqa_block_cached__near_ridge_kernel"
def f2u(x): return struct.unpack("<I", struct.pack("<f", x))[0]

class Cfg:
    stamps = False
    stop_after = None
    kv_flags = "nt"
    x_flags = ""
    wq_flags = ""
    wo_flags = ""
    thr = 2.0 ** 30
    backlog = 10
    rot = False
    code_prefetch = True
    wo_touch = 4
    nfirst = 18
    amp = None
    no_vmwait = False
    kv_same = False
    no_dma = False

SX, SWQ, SK, SV, SWO, SWS, SOUT, SDBG = 4, 8, 12, 16, 20, 24, 28, 32
sW, sPI, sKQ, sB, sHP, sBR = 36, 37, 38, 39, 40, 41
sROW = 42
sH, sDA, sDB, sD, sM0, sOFF, sT, sT2 = 47, 48, 49, 50, 51, 52, 53, 54
sWM0 = 55
sC = 56
sTHR, sXK, sWK, sXM0, sREDO, sKVW = 58, 59, 60, 61, 62, 63
sOB = 64
sOS = 65
sG = 66
sST = 68
sSTO = 70
sFL = 71
sFP = 72
sFQ = 75
sOP = 78
sWR = 81
sPB = 85
sOM0 = 86
sT3 = 87
sSPIN = 88
PITCH = 17408
VBASE = 4 * PITCH
XB = (115712, 69632)
SCR = 8 * PITCH
MISC = 9 * PITCH
LDS_BYTES = 163840
HALF = 8448
WS_O = 0
WS_PART = 0x2800000
WS_SH = 0x3e00000
WS_FLAG = 0x3f00000
WS_STAMP = 0x4000000
OST = 36864
WS_BYTES = 292618240
vDMA, vKA, vVA = 1, 2, 3
vL = 4
vT = 9
vNM = 16
vS = 36
NS = 6
vP = (60, 80)
vO = 96
vXD, vWD, vXR, vWR0, vWR1 = 4, 5, 6, 7, 8
aQ = (0, 80)
aK = 160
aV = 192
NV = 4

def srd(n): return f"s[{n}:{n+3}]"

class Gen:
    def __init__(self, cfg):
        self.c = cfg
        self.out = []
        self.ws = WaitState()
        self.nstamp = 0
        self.tailcode = []
        self.checks = []
    def e(self, *ts):
        for t in ts:
            for line in (t.split("\n") if isinstance(t, str) else [t]):
                if isinstance(line, str):
                    line = line.strip()
                    if not line: continue
                    line = I(line)
                self.out += linear_waits([line], self.ws)
    def raw(self, ins):
        self.out += ins
    def stamp_ins(self):
        k = self.nstamp; self.nstamp += 1
        return [I(x) for x in (f"s_memtime s[{sST}:{sST+1}]", "s_memrealtime s[96:97]", "s_waitcnt lgkmcnt(0)",
               f"v_accvgpr_write_b32 a252, s{sST}", f"v_accvgpr_write_b32 a253, s96",
               f"buffer_store_dwordx2 a[252:253], off, {srd(SWS)}, s{sSTO} offset:{k*8}")]
    def stamp(self):
        if self.c.amp is not None:
            k = self.nstamp; self.nstamp += 1
            if k == self.c.amp[0]: self.e("s_memrealtime s[96:97]", "s_waitcnt lgkmcnt(0)")
        if self.c.stamps: self.e(*self.stamp_ins())
    def stamp_gap(self, G, g):
        if not self.c.stamps: return
        x = self.stamp_ins()
        G.val[g] += x[:-1]
        G.mem[g + 1].insert(0, x[-1])

    def setup(self):
        c = self.c; e = self.e
        e(f"""
        s_cmp_ge_u32 s2, 256
        s_cbranch_scc1 L_end
        {"s_memtime s[96:97]" if c.stamps else ""}
        {"s_memrealtime s[98:99]" if (c.stamps or c.amp) else ""}
        s_load_dwordx16 s[64:79], s[0:1], 0
        s_load_dwordx8 s[80:87], s[0:1], 64
        s_load_dwordx2 s[88:89], s[0:1], 96
        v_lshrrev_b32 v9, 6, v0
        v_and_b32 v0, 63, v0
        s_and_b32 s3, s2, 7
        v_readfirstlane_b32 s{sW}, v9
        s_lshr_b32 s{sBR}, s3, 2
        s_and_b32 s{sKQ}, s3, 3
        s_lshr_b32 s3, s2, 3
        s_lshr_b32 s{sB}, s3, 2
        s_and_b32 s{sHP}, s3, 3
        s_and_b32 s{sPI}, s{sW}, 1
        """)
        if c.code_prefetch:
            e(f"""
            s_getpc_b64 s[90:91]
            L_pc:
            v_lshlrev_b32 v10, 7, v0
            s_lshl_b32 s3, s{sW}, 13
            v_add_u32 v10, s3, v10
            s_mov_b32 s92, s90
            s_mov_b32 s93, s91
            s_mov_b32 s94, L_end-L_pc
            s_mov_b32 s95, 0x20000
            buffer_load_dword v15, v10, s[92:95], 0 offen
            s_mov_b32 s3, 0x8000
            buffer_load_dword v12, v10, s[92:95], s3 offen
            s_mov_b32 s3, 0x10000
            buffer_load_dword v13, v10, s[92:95], s3 offen
            """)
        e(f"""
        v_lshrrev_b32 v9, 2, v0
        v_mul_u32_u24 v{vXD}, 1152, v9
        v_lshrrev_b32 v9, 4, v0
        v_and_b32 v9, 2, v9
        v_xor_b32 v9, v9, v0
        v_and_b32 v9, 3, v9
        v_lshl_add_u32 v{vXD}, v9, 4, v{vXD}
        v_lshrrev_b32 v9, 5, v0
        v_lshlrev_b32 v9, 15, v9
        v_and_b32 v14, 31, v0
        v_lshl_add_u32 v9, v14, 4, v9
        s_lshl_b32 s3, s{sW}, 16
        v_add_u32 v{vWD}, s3, v9
        v_lshrrev_b32 v9, 2, v0
        v_and_b32 v9, 2, v9
        v_lshrrev_b32 v14, 4, v0
        v_xor_b32 v9, v9, v14
        v_and_b32 v14, 15, v0
        v_lshl_add_u32 v9, v14, 2, v9
        s_mul_i32 s{sXM0}, s{sW}, 10240
        s_add_u32 s{sXM0}, s{sXM0}, {XB[1]}
        v_lshlrev_b32 v9, 4, v9
        v_add_u32 v{vXR}, s{sXM0}, v9
        v_lshrrev_b32 v9, 2, v0
        v_mul_u32_u24 v9, 1088, v9
        v_and_b32 v14, 3, v0
        v_lshl_add_u32 v9, v14, 4, v9
        s_lshl_b32 s3, s{sPI}, 8
        v_add_u32 v{vWR0}, s3, v9
        s_xor_b32 s3, s3, 256
        v_add_u32 v{vWR1}, s3, v9
        s_lshl_b32 s3, s{sW}, 12
        v_lshlrev_b32 v9, 4, v0
        v_add_u32 v{vDMA}, s3, v9
        s_mul_i32 s{sWM0}, s{sW}, 4352
        s_mul_i32 s{sKVW}, s{sW}, 4224
        s_lshr_b32 s3, s{sW}, 1
        s_mul_i32 s3, s3, 144
        s_add_u32 s{sROW+4}, s3, 128
        s_mul_i32 s{sROW+4}, s{sROW+4}, 1152
        s_lshl_b32 s{sT}, s{sPI}, 6
        s_add_u32 s3, s3, s{sT}
        """)
        for j in range(4):
            e(f"s_xor_b32 s{sT}, s{sKQ}, {j}", f"s_lshl_b32 s{sT}, s{sT}, 4", f"s_add_u32 s{sT}, s{sT}, s3",
              f"s_mul_i32 s{sROW+j}, s{sT}, 1152")
        if c.rot:
            e(f"s_lshl_b32 s3, s{sHP}, 1", f"s_add_u32 s3, s3, s{sB}", f"s_sub_u32 s{sT}, s3, 9", "s_cmp_ge_u32 s3, 9",
              f"s_cselect_b32 s3, s{sT}, s3")
        else:
            e("s_mov_b32 s3, 0")
        e(f"s_lshl_b32 s{sXK}, s3, 7", f"s_lshl_b32 s{sWK}, s3, 19")
        cc = f2u(math.log2(math.e) / math.sqrt(128.0))
        e(f"""
        s_mov_b32 s{sC}, {cc:#x}
        s_mov_b32 s{sC+1}, {cc:#x}
        s_mov_b32 s{sTHR}, {f2u(c.thr):#x}
        s_mul_i32 s{sH}, s{sPI}, {-2*HALF}
        s_add_u32 s{sH}, s{sH}, {HALF}
        s_sub_u32 s{sDA}, {PITCH}, s{sH}
        s_sub_u32 s{sDB}, {-3*PITCH}, s{sH}
        s_waitcnt lgkmcnt(0)
        s_cmp_eq_u32 s{sBR}, 0
        s_cselect_b64 s[{SX}:{SX+1}], s[64:65], s[74:75]
        s_cselect_b64 s[{SK}:{SK+1}], s[66:67], s[76:77]
        s_cselect_b64 s[{SV}:{SV+1}], s[68:69], s[78:79]
        s_cselect_b64 s[{SWQ}:{SWQ+1}], s[70:71], s[80:81]
        s_cselect_b64 s[{SWO}:{SWO+1}], s[72:73], s[82:83]
        s_mul_i32 s3, s{sB}, 331776
        s_add_u32 s{SX}, s{SX}, s3
        s_addc_u32 s{SX+1}, s{SX+1}, 0
        s_mov_b32 s{SX+2}, 331776
        s_mov_b32 s{SX+3}, 0x20000
        s_lshl_b32 s{sT}, s{sKQ}, 2
        s_add_u32 s{sT}, s{sT}, s{sHP}
        s_lshl_b32 s3, s{sT}, 9
        s_add_u32 s{SWQ}, s{SWQ}, s3
        s_addc_u32 s{SWQ+1}, s{SWQ+1}, 0
        s_sub_u32 s{SWQ+2}, {576*8192}, s3
        s_mov_b32 s{SWQ+3}, 0x20000
        """)

    def setup2(self):
        e = self.e
        e(f"""
        s_lshl_b32 s{sT}, s{sKQ}, 2
        s_add_u32 s{sT}, s{sT}, s{sHP}
        s_lshl_b32 s3, s{sB}, 4
        s_add_u32 s{sT}, s{sT}, s3
        s_lshl_b32 s3, s{sT}, 19
        {"s_mov_b32 s3, 0" if self.c.kv_same else ""}
        s_add_u32 s{SK}, s{SK}, s3
        s_addc_u32 s{SK+1}, s{SK+1}, 0
        s_mov_b32 s{SK+2}, 524288
        s_mov_b32 s{SK+3}, 0x20000
        s_add_u32 s{SV}, s{SV}, s3
        s_addc_u32 s{SV+1}, s{SV+1}, 0
        s_mov_b32 s{SV+2}, 524288
        s_mov_b32 s{SV+3}, 0x20000
        s_mov_b32 s{SWO+2}, {4096*1152}
        s_mov_b32 s{SWO+3}, 0x20000
        s_mov_b32 s{SOUT}, s84
        s_mov_b32 s{SOUT+1}, s85
        s_mov_b32 s{SOUT+2}, {8*288*1152*2}
        s_mov_b32 s{SOUT+3}, 0x20000
        s_mov_b32 s{SDBG}, s86
        s_mov_b32 s{SDBG+1}, s87
        s_mov_b32 s{SDBG+2}, 256
        s_mov_b32 s{SDBG+3}, 0x20000
        s_mov_b32 s{SWS}, s88
        s_mov_b32 s{SWS+1}, s89
        s_mov_b32 s{SWS+2}, {WS_BYTES}
        s_mov_b32 s{SWS+3}, 0x20000
        s_lshl_b32 s3, s{sBR}, 7
        s_add_u32 s{sT}, s{sT}, s3
        s_mul_i32 s{sOB}, s{sT}, 147456
        s_lshr_b32 s3, s{sW}, 1
        s_mul_i32 s3, s3, 36864
        s_add_u32 s{sOB}, s{sOB}, s3
        s_add_u32 s{sOS}, s{sOB}, 32768
        s_lshl_b32 s3, s{sPI}, 14
        s_add_u32 s{sOB}, s{sOB}, s3
        s_mov_b32 s{sG}, s2
        s_lshl_b32 s3, s2, 2
        s_add_u32 s3, s3, s{sW}
        s_lshl_b32 s3, s3, 8
        s_add_u32 s{sSTO}, s3, {WS_STAMP}
        s_mov_b32 s{sREDO}, 0
        s_mul_i32 s3, s{sKQ}, {1024*1152}
        s_mul_i32 s{sT}, s{sHP}, 288
        s_add_u32 s3, s3, s{sT}
        s_add_u32 s{SWO}, s{SWO}, s3
        s_addc_u32 s{SWO+1}, s{SWO+1}, 0
        s_sub_u32 s{SWO+2}, s{SWO+2}, s3
        s_lshl_b32 s{sFL}, s2, 7
        s_add_u32 s{sFL}, s{sFL}, {WS_FLAG}
        s_mul_i32 s{sOM0}, s{sW}, 9216
        s_mul_i32 s{sT2}, s{sW}, {32*1152}
        """)
        for p in range(4):
            e(f"s_xor_b32 s3, s{sHP}, {p}", f"s_mul_i32 s{sT}, s3, {256*1152}", f"s_add_u32 s{sWR+p}, s{sT}, s{sT2}")
            if p:
                e(f"s_sub_u32 s3, s3, s{sHP}", f"s_mul_i32 s{sOP+p-1}, s3, 147456",
                  f"s_xor_b32 s{sFP+p-1}, s{sFL}, {p << 10}", f"s_xor_b32 s{sFQ+p-1}, s{sFL}, {p << 7}")
        e(f"""
        s_lshr_b32 s3, s2, 3
        s_lshl_b32 s{sT}, s{sBR}, 5
        s_add_u32 s3, s3, s{sT}
        s_mul_i32 s{sPB}, s3, {64*5120}
        s_mul_i32 s{sT}, s{sW}, 5120
        s_add_u32 s{sPB}, s{sPB}, s{sT}
        s_add_u32 s{sPB}, s{sPB}, {WS_PART}
        """)
        if self.c.wo_touch:
            e(f"s_lshr_b32 s3, s{sG}, 3", f"s_mul_i32 s3, s3, {32*1152}", f"s_mul_i32 s{sT}, s{sW}, {8*1152}", f"s_add_u32 s{sT3}, s3, s{sT}",
              f"v_lshlrev_b32 v10, 7, v0", f"v_and_b32 v11, 0x380, v10", "v_add_u32 v11, 8192, v11")
        if self.c.stop_after != "A":
            e("v_mov_b32 v9, 0", I(f"buffer_store_dword v9, off, {srd(SWS)}, s{sFL} sc1", id=("flclr",)))
        self.kv_addr_init()

    def dbg_addr(self, v):
        self.e(f"""
        s_and_b32 s3, s{sG}, 7
        s_lshl_b32 s3, s3, 3
        s_add_u32 s3, s3, s{sB}
        s_lshl_b32 s3, s3, 2
        s_lshr_b32 s{sT}, s{sG}, 3
        s_lshl_b32 s{sT2}, s{sBR}, 5
        s_add_u32 s{sT}, s{sT}, s{sT2}
        s_lshl_b32 s{sT}, s{sT}, 2
        v_mov_b32 v{v}, 0x1000
        v_writelane_b32 v{v}, s3, 0
        v_writelane_b32 v{v}, s{sT}, 1
        """)

    def announce_cleared(self):
        e = self.e
        e(f"s_cmp_lg_u32 s{sW}, 0", "s_cbranch_scc1 L_ann")
        self.dbg_addr(10)
        e("v_mov_b32 v11, 1", "s_mov_b32 s3, 0x10000", "v_writelane_b32 v11, s3, 1")
        self.raw([I(f"buffer_atomic_add v11, v10, {srd(SDBG)}, 0 offen sc1")])
        e("L_ann:")

    def publish(self, val):
        lab = f"L_pub{val}"
        return [I(f"s_cmp_lg_u32 s{sW}, 0"), I(f"s_cbranch_scc1 {lab}"), I(f"v_accvgpr_write_b32 a255, {val}"),
                I(f"buffer_store_dword a255, off, {srd(SWS)}, s{sFL} sc1", k="x"), I(f"{lab}:")]

    def spin(self, name, load, test):
        self.tailcode += [I(f"L_sp_{name}:"), I(f"s_mov_b32 s{sSPIN}, 0x40000"), I(f"L_spl_{name}:"), I("s_sleep 1")]
        self.tailcode += [I(x) for x in load] + [I("s_waitcnt vmcnt(0)")] + [I(x) for x in test]
        self.tailcode += [I(f"s_cbranch_scc1 L_sb_{name}"), I(f"s_sub_u32 s{sSPIN}, s{sSPIN}, 1"), I(f"s_cmp_lg_u32 s{sSPIN}, 0"),
                          I(f"s_cbranch_scc1 L_spl_{name}"), I(f"s_branch L_sb_{name}")]

    def kv_addr_init(self):
        e = self.e
        e(f"""
        v_and_b32 v9, 7, v0
        v_mul_u32_u24 v9, 1056, v9
        v_and_b32 v14, 8, v0
        v_lshl_add_u32 v9, v14, 5, v9
        v_and_b32 v14, 48, v0
        s_mul_i32 s3, s{sPI}, {HALF}
        v_add3_u32 v{vKA}, v9, v14, s3
        v_bfe_u32 v9, v0, 2, 3
        v_mul_u32_u24 v9, 1056, v9
        v_and_b32 v14, 32, v0
        v_lshl_add_u32 v9, v14, 3, v9
        v_and_b32 v14, 3, v0
        v_lshl_add_u32 v9, v14, 3, v9
        s_add_u32 s3, s3, {VBASE}
        v_add_u32 v{vVA}, s3, v9
        """)

    def dma_wq(self, i):
        slot = (i + 2) % 4
        ops = []
        for r in range(4):
            pre = [I(f"s_add_u32 m0, s{sWM0}, {slot*PITCH + r*1088}")]
            same = [I(f"s_add_u32 s{sT}, s{sWK}, {r*8192}")]
            vm = I(f"buffer_load_dwordx4 v{vWD}, {srd(SWQ)}, s{sT} offen {self.c.wq_flags} lds", id=("wq", i, r))
            post = []
            if r == 3:
                post = [I(f"s_add_u32 s{sWK}, s{sWK}, {32*8192}")]
                if i % 2 == 1:
                    post += [I(f"s_cmp_eq_u32 s{sWK}, {576*8192}"), I(f"s_cselect_b32 s{sWK}, 0, s{sWK}")]
            ops.append((pre, same, vm, post))
        return ops
    def dma_x(self, st, js):
        boff = XB[st % 2] - XB[1]
        ops = []
        for j in js:
            needs = [("xr", 2*st - 4, j), ("xr", 2*st - 3, j)] if st >= 2 else []
            ops.append(([I(f"s_add_u32 m0, s{sXM0}, {boff + j*1024}")], [I(f"s_add_u32 s{sT2}, s{sROW+j}, s{sXK}")],
                        I(f"buffer_load_dwordx4 v{vXD}, {srd(SX)}, s{sT2} offen {self.c.x_flags} lds", id=("x", 2*st, j), needs=needs), []))
            post = []
            if j == 4:
                post = [I(f"s_add_u32 s{sXK}, s{sXK}, 128"), I(f"s_cmp_eq_u32 s{sXK}, 1152"), I(f"s_cselect_b32 s{sXK}, 0, s{sXK}")]
            ops.append(([I(f"s_add_u32 m0, s{sXM0}, {boff + 5120 + j*1024 - 64}")], [],
                        I(f"buffer_load_dwordx4 v{vXD}, {srd(SX)}, s{sT2} offen offset:64 {self.c.x_flags} lds", id=("x", 2*st+1, j)), post))
        return ops
    def dma_kv_static(self, which, M):
        base = (M % 4) * PITCH + (VBASE if which == "V" else 0)
        ops = []
        for i in range(4):
            same = [I(f"s_mov_b32 s{sT}, {M*16384}")] if i == 0 else []
            ops.append(([I(f"s_add_u32 m0, s{sKVW}, {base + 32*i}")], same,
                        I(f"buffer_load_dwordx4 v{vDMA}, {srd(SK if which == 'K' else SV)}, s{sT} offen offset:{i*1024} {self.c.kv_flags} lds", id=(which, M, i)), []))
        return ops
    def emit_dma_straight(self, ops):
        for pre, same, vm, post in ops:
            self.e(*pre)
            self.e(*(same or [I("s_nop 0")]))
            self.e(vm, *post)

    def qacc(self, tp, j):
        idn = tp * 4 + j if j < 4 else 64 + tp
        return ("v", 16 + 4 * idn) if idn < 60 else ("a", 200 + 4 * (idn - 60))

    def phase_q(self):
        e = self.e
        NR = 8
        aB, aA = 0, 40
        first = self.dma_wq(0) + self.dma_x(0, range(5)) + self.dma_wq(1) + self.dma_x(1, range(5)) + self.dma_wq(2) + self.dma_wq(3)
        self.emit_dma_straight(first[:self.c.nfirst])
        self.setup2()
        if self.c.stamps:
            self.nstamp = 1
            e("v_mov_b32 v15, s96", f"buffer_store_dword v15, off, {srd(SWS)}, s{sSTO}", "v_mov_b32 v15, s98", f"buffer_store_dword v15, off, {srd(SWS)}, s{sSTO} offset:4")
        self.stamp()
        ms = []; start = {}; last = {}
        for i in range(18):
            for tp in range(16):
                f = 16 * i + tp
                start[f] = len(ms)
                for j in range(5 if tp < 8 else 4):
                    ms.append(I(mfma(self.qacc(tp, j), ("a", aA + 4 * (f % NR)), ("a", aB + 20 * (i % 2) + 4 * j), 0 if i == 0 else None),
                                needs=[("ar", f, 0), ("ar", f, 1), ("xr", i, j)]))
                last[f] = len(ms) - 1
        G = Gaps(ms)
        pre = []
        def aread(f, v):
            i, tp = divmod(f, 16)
            t = tp % 8
            off = ((i + 2) % 4) * PITCH + 512 * v + 64 * (t >> 1) + 8 * (t & 1)
            return I(f"ds_read_b64_tr_b16 {R('a', aA + 4*(f % NR) + 2*v, 2)}, v{vWR0 if tp < 8 else vWR1} offset:{off}", id=("ar", f, v))
        def xread(i, j):
            off = XB[(i // 2) % 2] - XB[1] + 5120 * (i % 2) + 1024 * j
            return I(f"ds_read_b128 {R('a', aB + 20*(i % 2) + 4*j, 4)}, v{vXR} offset:{off}", id=("xr", i, j), needs=[("x", i, j)])
        for j in range(5): pre.append(xread(0, j))
        pre.append(I("s_barrier", needs=[("wq", 0, r) for r in range(4)]))
        for i in range(18):
            for tp in range(16):
                for v in range(2):
                    f = 16 * i + tp
                    g = 72 * i - 13 + ((2 * tp + v) * 58) // 32
                    if g < 0: pre.append(aread(f, v)); continue
                    assert g <= start[f] - 8
                    assert f < NR or g >= last[f - NR], (f, g)
                    G.mem[g].append(aread(f, v))
            if i < 17:
                for j in range(5): G.mem[72 * i + 46 + 2 * j].append(xread(i + 1, j))
        sal = []
        for i in range(18):
            g = 72 * i + 56
            G.waitneeds[g] += [("ar", 16 * i + 15, 1)]
            if i < 17: G.waitneeds[g] += [("wq", i + 1, r) for r in range(4)]
            G.sal[g + 1].append(I("s_barrier"))
            if i in (0, 3, 8): self.stamp_gap(G, g + 1)
        seq = []
        for i in range(0, 19):
            lo = max(2, 72 * (i - 1) + 59); hi = min(72 * i + 55, len(ms) - 1)
            ops = []
            if i == 0: ops = [(o, lo) for o in first[self.c.nfirst:]]
            elif i + 3 < 18: ops += [(o, lo) for o in self.dma_wq(i + 3)]
            if i % 2 == 1 and (i + 3) // 2 < 9: ops += [(o, 72 * i + 5) for o in self.dma_x((i + 3) // 2, range(3))]
            if i > 0 and i % 2 == 0 and (i + 2) // 2 < 9: ops = [(o, lo) for o in self.dma_x((i + 2) // 2, range(3, 5))] + ops
            if i == self.c.wo_touch:
                ops += [(([], [], I(f"buffer_load_dword v13, v10, {srd(SWO)}, s{sT3} offen"), []), lo),
                        (([], [], I(f"buffer_load_dword v14, v11, {srd(SWO)}, s{sT3} offen"), []), lo)]
            if i == 15: ops += [(o, lo) for o in self.dma_kv_static("K", 0)]
            if i == 16: ops += [(o, lo) for o in self.dma_kv_static("V", 0) + self.dma_kv_static("K", 1) + self.dma_kv_static("V", 1)]
            if i == 17: ops += [(o, lo) for o in self.dma_kv_static("K", 2)]
            if i == 18: ops += [(o, lo) for o in self.dma_kv_static("V", 2)]
            step = 5 if 0 < i < 18 else (3 if i else 2)
            g = lo - step + 1
            for (p, same, vm, post), l in ops:
                prev = g
                g = max(g + step, l)
                while G.mem[g]: g += 1
                assert g <= hi, (i, g, hi)
                G.mem[g].append(vm)
                for x in p: seq.append((x, max(prev + 1, g - 2), g - 1))
                for x in same: seq.append((x, g - 1, g))
                for x in post: seq.append((x, g + 1, min(g + step - 1 - (step > 2), len(ms) - 1)))
        self.e(*pre)
        pre2 = []
        G.place_waits(self.ws, pre2)
        G.place_salu(seq)
        self.raw(pre2)
        self.raw(G.flat())
        print("phase Q est cycles", G.cost(), file=sys.stderr)
        self.stamp()
        def pack(src0, src1, tmp):
            o = []
            for k, (kind, b) in enumerate((src0, src1)):
                if kind == "a":
                    for r in range(4): o.append(f"v_accvgpr_read_b32 v{12+r}, a{b+r}")
                    b = 12
                o.append(f"v_pk_mul_f32 v[{b}:{b+1}], v[{b}:{b+1}], s[{sC}:{sC+1}]")
                o.append(f"v_pk_mul_f32 v[{b+2}:{b+3}], v[{b+2}:{b+3}], s[{sC}:{sC+1}]")
                o.append(f"v_cvt_pk_bf16_f32 v{tmp+2*k}, v{b}, v{b+1}")
                o.append(f"v_cvt_pk_bf16_f32 v{tmp+2*k+1}, v{b+2}, v{b+3}")
            return o
        e(f"v_add_u32 v9, {SCR}, v{vDMA}")
        for s in range(4):
            e(*pack(self.qacc(2*s, 4), self.qacc(2*s+1, 4), 4))
            e(I(f"ds_write_b128 v9, v[4:7] offset:{s*1024}", id=("qsw", s)))
        e(f"s_cmp_eq_u32 s{sPI}, 1", "s_cbranch_scc1 L_qe1")
        base = len(self.out)
        for pi in range(2):
            if pi == 1: e("L_qe1:")
            for hh in range(2):
                h = hh ^ pi
                for j in range(4):
                    for s in range(4):
                        t0 = self.qacc(8*hh + 2*s, j); t1 = self.qacc(8*hh + 2*s + 1, j)
                        assert t0[0] == "v"
                        e(*pack(t0, t1, t0[1]))
                        for r in range(4): e(f"v_accvgpr_write_b32 a{aQ[h] + (j*4+s)*4 + r}, v{t0[1]+r}")
            if pi == 0: e("s_branch L_qe2")
        e("L_qe2:")
        e(I("s_barrier", needs=[("qsw", 3)] + [(k, 0, i) for k in "KV" for i in range(4)]))
        if self.c.stop_after != "A": self.announce_cleared()
        e(f"s_lshl_b32 s3, s{sPI}, 12", "v_subrev_u32 v9, s3, v9")
        for h in range(2):
            for s in range(4):
                e(I(f"ds_read_b128 {R('a', aQ[h] + (16+s)*4, 4)}, v9 offset:{h*4096 + s*1024}", id=("qsr", h, s)))
        e(f"s_mov_b32 s{sOFF}, {3*16384}", f"s_add_u32 s{sM0}, s{sKVW}, {3*PITCH}", f"s_mov_b32 s{sD}, s{sDA}")
        for j in range(5): e(f"v_mov_b32 v{vNM+4*j}, 0xff800000")

    def attn_mfmas(self, h, nwin, first=True, lastw=True):
        ms = []; cstart = {}; cend = {}; pv = {}; wstart = []
        tcount = [0]; sslot = {}
        def chain(n, T, j):
            sl = tcount[0] % NS; tcount[0] += 1
            sslot[(n, T, j)] = sl
            cstart[(n, T, j)] = len(ms)
            for s in range(4):
                ms.append(I(mfma(("v", vS + 4*sl), ("a", aK + 16*T + 4*s), ("a", aQ[h] + (j*4+s)*4), ("v", vNM + 4*j) if s == 0 else None),
                            needs=[("kr", h, n, T, s)]))
            cend[(n, T, j)] = len(ms) - 1
        def pvm(n, dt, j):
            f = 8*n + dt
            pv[(n, dt, j)] = len(ms)
            ms.append(I(mfma(("v", vO + (j*8+dt)*4), ("a", aV + 4*(f % NV)), ("v", vP[n % 2] + 4*j), 0 if (n == 0 and first) else None),
                        needs=[("vr", h, f, 0), ("vr", h, f, 1)]))
        for m in range(nwin):
            wstart.append(len(ms))
            for c in range(8):
                chain(2*m+1, c >> 2, c & 3)
                for j in range(5): pvm(2*m, c, j)
            lst = [(dt, j) for dt in range(8) for j in range(4)]
            cnt = [3, 3, 3, 3, 4, 3, 3, 3, 3, 4]
            for c in range(10):
                if not (lastw and m == nwin - 1): chain(2*m+2, c // 5, c % 5)
                for _ in range(cnt[c]):
                    dt, j = lst.pop(0); pvm(2*m+1, dt, j)
        wstart.append(len(ms))
        return ms, cstart, cend, pv, sslot, wstart

    def kread(self, h, n, T, s):
        return I(f"ds_read_b128 {R('a', aK + 16*T + 4*s, 4)}, v{vKA} offset:{512*T + 64*s}", id=("kr", h, n, T, s))
    def vread(self, h, f, v):
        return I(f"ds_read_b64_tr_b16 {R('a', aV + 4*(f % NV) + 2*v, 2)}, v{vVA} offset:{512*v + 32*(f % 8)}", id=("vr", h, f, v))

    def attn_schedule(self):
        NW = 8
        ms, cstart, cend, pv, sslot, wstart = self.attn_mfmas(0, NW, first=False, lastw=False)
        n = len(ms)
        mem = {}
        def put(g, key):
            while g in mem: g += 1
            mem[g] = key; return g
        rel = {}
        for i, g in enumerate((3, 12, 21, 30)): rel[("dK", i)] = put(g, 1)
        for i, g in enumerate((44, 52, 60, 68)): rel[("dV", i)] = put(g, 1)
        first = {f: pv[(2 + f // 8, f % 8, 0)] - 144 for f in range(-4, 16)}
        lastu = {f: pv[(2 + f // 8, f % 8, 4 if (f // 8) % 2 == 0 else 3)] - 144 for f in range(-4, 16)}
        for f in range(16):
            g = max(first[f - 2], lastu[f - 4] + 1)
            for v in range(2):
                gg = g % 144
                g2 = put(gg, 1)
                rel[("vr", f, v)] = g + (g2 - gg)
                g = rel[("vr", f, v)] + 2
                assert rel[("vr", f, v)] <= first[f] - 7, (f, v, rel[("vr", f, v)], first[f])
        for (dn, T), g0 in (((1, 1), 1), ((2, 0), 42), ((2, 1), 73), ((3, 0), 109)):
            for s in range(4):
                rel[("kr", dn, T, s)] = put(g0 + 6 * s, 1)
        rel["bar"] = 39
        rel[("ka", 0)] = rel[("kr", 1, 1, 3)] + 1
        rel[("ka", 1)] = rel[("kr", 2, 1, 3)] + 1
        rel[("va", 0)] = rel[("vr", 7, 1)]
        rel[("va", 1)] = rel[("vr", 15, 1)]
        assert rel[("vr", 8, 0)] > rel[("va", 0)] and rel[("vr", 0, 0)] + 144 > rel[("va", 1)]
        used = [0] * 144
        for k, g in rel.items():
            if k == "bar": continue
            used[g % 144] += 2 if k[0] in ("dK", "dV") else 1
        used[143] += 2
        tiles = sorted(cend, key=lambda t: cend[t])
        place = {}
        eq = []
        sm = []
        ti = 0
        for g in range(n):
            while ti < len(tiles) and cend[tiles[ti]] + 3 <= g:
                eq += [(tiles[ti], r) for r in range(4)]; ti += 1
            u = used[g % 144]
            rdy = [x for x in sm if x[1] <= g]
            backlog = 3.5 * len(eq) + len(sm)
            budget = 3 if (backlog > self.c.backlog and g % 144 != 143) else 2
            def take_small():
                rdy.sort(); x = rdy.pop(0); sm.remove(x); place[x[2]] = g
            def take_e():
                t, r = eq.pop(0); place[("e", t, r)] = g
                sm.append(((cend[t], 1, r), g + 1, ("a", t, r)))
                if r % 2: sm.append(((cend[t], 0, r), g + 1, ("c", t, r // 2)))
            if u == 0 and eq and len(rdy) < 4:
                take_e(); u += 2
            elif u == 1 and budget == 3 and eq and len(rdy) < 2:
                take_e(); u += 2
            while u < budget and rdy:
                take_small(); u += 1
        def wrel(m):
            d = {}
            for k, g in place.items():
                nn, T, j = k[1]
                if nn in (2*m+1, 2*m+2): d[(k[0], nn - 2*m, T, j, k[2])] = g - 144 * m
            return d
        a, b = wrel(4), wrel(5)
        assert a == b, "VALU schedule not periodic"
        assert len(a) == 180
        rel.update(a)
        self.rel = rel

    def head(self, h):
        e = self.e; rel = self.rel; c = self.c
        e(f"L_head{h}:")
        self.stamp()
        for T in range(2):
            for s in range(4): e(self.kread(h, 0, T, s))
        e(f"v_add_u32 v{vKA}, s{sH}, v{vKA}")
        tS = lambda T, j: vO + (j*2 + T) * 4
        for j in range(5):
            for T in range(2):
                for s in range(4):
                    nd = [("kr", h, 0, T, s)] + ([("qsr", 1, 3)] if (h == 0 and j == 4) else [])
                    e(I(mfma(("v", tS(T, j)), ("a", aK + 16*T + 4*s), ("a", aQ[h] + (j*4+s)*4), 0 if s == 0 else None), needs=nd))
        ms, cstart, cend, pv, sslot, wstart = self.attn_mfmas(h, 16)
        G = Gaps(ms)
        early = []
        lastw = 15
        full, fcs, fce, fpv, _, _ = self.attn_mfmas(h, 16, lastw=False)
        dropped = set()
        for k, st in fcs.items():
            if k[0] == 32: dropped.update(range(st, st + 4))
        amap = []; a = -1
        for g in range(len(full)):
            if g not in dropped: a += 1
            amap.append(a)
        def at(m, g):
            p = 144 * m + g
            if p < 0: return None
            return amap[p]
        seq = []
        for m in range(-1, 16):
            items = []
            for k, g in rel.items():
                if k == "bar": continue
                kind = k[0]
                if kind == "kr":
                    n = 2*m + k[1]
                    if n < 1 or n > 31: continue
                    items.append((g, "mem", self.kread(h, n, k[2], k[3])))
                elif kind == "vr":
                    if m < 0: continue
                    items.append((g, "mem", self.vread(h, 16*m + k[1], k[2])))
                elif kind in ("dK", "dV"):
                    if m < 0: continue
                    M = 16*h + m + 3; i = k[1]
                    items.append((g, "mem", I(f"buffer_load_dwordx4 v{vDMA}, {srd(SK if kind == 'dK' else SV)}, s{sOFF} offen offset:{i*1024} {c.kv_flags} lds", id=(kind[1], M, i))))
                elif kind == "ka":
                    if m < 0 or (m == 15 and k[1] == 1): continue
                    items.append((g, "val", I(f"v_add_u32 v{vKA}, s{sD if k[1] == 0 else sH}, v{vKA}")))
                elif kind == "va":
                    if m < 0: continue
                    items.append((g, "val", I(f"v_add_u32 v{vVA}, s{sH if k[1] == 0 else sD}, v{vVA}")))
                else:
                    n = 2*m + k[1]
                    if n < 1 or n > 31: continue
                    T, j, r = k[2], k[3], k[4]
                    S = vS + 4 * sslot[(n, T, j)]
                    if kind == "e": x = I(f"v_exp_f32 v{S+r}, v{S+r}")
                    elif kind == "a": x = I(f"v_add_f32 v{vL+j}, v{vL+j}, v{S+r}")
                    else:
                        x = I(f"v_cvt_pk_bf16_f32 v{vP[n % 2] + 4*j + 2*T + r}, v{S+2*r}, v{S+2*r+1}")
                        assert at(m, g) <= pv[(n, 0, j)] - 2, ("late cvt", n, T, j)
                    x.key = (144*m + g, cend[(n, T, j)], {"e": 2, "c": 0, "a": 1}[kind], r)
                    nxt = [t for t in cstart if cstart[t] > cstart[(n, T, j)] and sslot[t] == sslot[(n, T, j)]]
                    if nxt: assert at(m, g) < min(cstart[t] for t in nxt), ("S slot reuse", n, T, j)
                    items.append((g, "val", x))
            items.sort(key=lambda t: t[0])
            for g, where, x in items:
                p = at(m, g)
                if p is None: early.append(x)
                else: getattr(G, where)[p].append(x)
            if m >= 0:
                M = 16*h + m
                g = at(m, rel["bar"])
                G.waitneeds[g] += [("kr", h, 2*m+1, 1, 3)] + [(k, M+1, i) for k in "KV" for i in range(4)]
                G.sal[g + 1].append(I("s_barrier"))
                for i in range(4):
                    g = rel[("dK", i)]
                    seq.append((I(f"s_mov_b32 m0, s{sM0}" if i == 0 else "s_add_u32 m0, m0, 32"), at(m, max(0, g - 4)), at(m, g - 1)))
                for i in range(4):
                    g = rel[("dV", i)]
                    seq.append((I(f"s_add_u32 m0, s{sM0}, {VBASE}" if i == 0 else "s_add_u32 m0, m0, 32"), at(m, g - 4), at(m, g - 1)))
                g = rel[("dV", 3)] + 1
                for t in (f"s_add_u32 s{sOFF}, s{sOFF}, 16384",
                          f"s_add_u32 s{sM0}, s{sM0}, {PITCH}", f"s_sub_u32 s{sT}, s{sM0}, {4*PITCH}",
                          f"s_cmp_ge_u32 s{sM0}, {4*PITCH}", f"s_cselect_b32 s{sM0}, s{sT}, s{sM0}"):
                    seq.append((I(t), at(m, g), at(m, 125)))
                g1 = at(m, rel[("va", 1)]) + 1
                for t in (f"s_and_b32 s{sT}, s{sOFF}, 0xc000",):
                    seq.append((I(t), at(m, 100), at(m, 141)))
                for t in (f"s_cmp_eq_u32 s{sT}, 0x8000", ):
                    seq.append((I(t), at(m, 100), at(m, 141)))
                seq.append((I(f"s_cselect_b32 s{sD}, s{sDB}, s{sDA}"), g1, at(m, 142)))
                if 1 <= m <= 14:
                    seq.append((I(f"s_cmp_lg_u32 s{sOFF}, {(16*h + 18)*16384}"), g1, at(m, 142)))
        e(*[x for x in early if x.k == "ds"])
        assert all(x.k == "ds" for x in early)
        tm = lambda j: vS + j
        tt = lambda j: vS + 8 + j
        for j in range(5):
            b = tS(0, j)
            e(f"v_max3_f32 v{tm(j)}, v{b}, v{b+1}, v{vNM+4*j}", f"v_max3_f32 v{tt(j)}, v{b+2}, v{b+3}, v{b+4}",
              f"v_max3_f32 v{tm(j)}, v{b+5}, v{b+6}, v{tm(j)}", f"v_max3_f32 v{tm(j)}, v{b+7}, v{tt(j)}, v{tm(j)}")
        self.xlane([tm(j) for j in range(5)], [tt(j) for j in range(5)], "v_max_f32")
        for j in range(5):
            for r in range(4): e(f"v_sub_f32 v{vNM+4*j+r}, 0, v{tm(j)}")
        for j in range(5):
            b = tS(0, j)
            for r in range(0, 8, 2): e(f"v_pk_add_f32 v[{b+r}:{b+r+1}], v[{b+r}:{b+r+1}], v[{vNM+4*j}:{vNM+4*j+1}]")
            for r in range(8): e(f"v_exp_f32 v{b+r}, v{b+r}")
        for j in range(5):
            b = tS(0, j)
            for r in range(4): e(f"v_cvt_pk_bf16_f32 v{vP[0]+4*j+r}, v{b+2*r}, v{b+2*r+1}")
            e(f"v_pk_add_f32 v[{b}:{b+1}], v[{b}:{b+1}], v[{b+2}:{b+3}]", f"v_pk_add_f32 v[{b+4}:{b+5}], v[{b+4}:{b+5}], v[{b+6}:{b+7}]",
              f"v_pk_add_f32 v[{b}:{b+1}], v[{b}:{b+1}], v[{b+4}:{b+5}]", f"v_add_f32 v{vL+j}, v{b}, v{b+1}")
        full_o = (h == 1 and c.stop_after != "A")
        if full_o:
            self.dbg_addr(10)
            dload = f"buffer_load_dword v11, v10, {srd(SDBG)}, 0 offen sc1"
            e(I(dload, id=("dbgp",)))
        self.stamp()
        for g in range(len(ms)):
            G.val[g].sort(key=lambda x: x.key or (0, 0, 0, 0))
        pre = []
        G.place_waits(self.ws, pre)
        G.place_salu(seq)
        self.raw(pre)
        win = [[x.t for x in G.flat(wstart[m], wstart[m+1])] for m in range(16)]
        import re
        for m in range(1, 14):
            assert len(win[m]) == len(win[14]), f"window {m} differs"
            for x, y in zip(win[m], win[14]):
                if x == y: continue
                nx, ny = re.search(r"vmcnt\((\d+)\)", x), re.search(r"vmcnt\((\d+)\)", y)
                assert nx and ny and int(nx.group(1)) >= int(ny.group(1)) and re.sub(r"vmcnt\(\d+\)", "", x) == re.sub(r"vmcnt\(\d+\)", "", y), (m, x, y)
        print(f"head {h}: window est cycles", G.cost(wstart[1], wstart[2]), "instrs", len(win[1]), file=sys.stderr)
        self.raw(G.flat(0, wstart[1]))
        self.raw([I(".p2align 6"), I(f"L_loop{h}:")])
        body = G.flat(wstart[14], wstart[15])
        assert body[-1].k == "m", body[-3:]
        self.raw(body)
        self.raw([I(f"s_cbranch_scc1 L_loop{h}")])
        self.checks.append((f"loop{h}", body + body))
        if full_o:
            test = ["v_readlane_b32 s3, v11, 0", f"v_readlane_b32 s{sT2}, v11, 1", "s_and_b32 s3, s3, 0xffff",
                    f"s_lshr_b32 s{sT2}, s{sT2}, 16", f"s_min_u32 s3, s3, s{sT2}", "s_cmp_ge_u32 s3, 4"]
            self.raw(self.publish(1))
            self.raw([I(x) for x in test] + [I("s_cbranch_scc0 L_sp_dbg"), I("L_sb_dbg:")])
            self.spin("dbg", [dload], test)
        self.raw(fix_hazards(G.flat(wstart[15], wstart[16])))
        self.stamp()
        self.head_epilogue(h)

    def xlane(self, xs, ts, op):
        e = self.e
        for sw in ("v_permlane32_swap_b32", "v_permlane16_swap_b32"):
            for x, t in zip(xs, ts): e(f"v_mov_b32 v{t}, v{x}")
            if len(xs) < 3: e("s_nop 1")
            for k, (x, t) in enumerate(zip(xs, ts)): e(f"{sw} v{t}, v{x}")
            for x, t in zip(xs, ts): e(f"{op} v{x}, v{x}, v{t}")

    def head_epilogue(self, h):
        e = self.e
        O = lambda j, dt: vO + (j*8 + dt) * 4
        self.xlane([vL + j for j in range(5)], [vS + j for j in range(5)], "v_add_f32")
        e(f"v_add_f32 v10, v{vL}, v{vL+1}", f"v_add_f32 v11, v{vL+2}, v{vL+3}",
          f"v_add_f32 v10, v10, v{vL+4}", "v_add_f32 v10, v10, v11",
          f"v_cmp_nge_f32 vcc, s{sTHR}, v10", "s_cmp_lg_u64 vcc, 0", f"s_cselect_b32 s3, 1, 0",
          f"v_mov_b32 v12, s3", f"s_lshl_b32 s3, s{sW}, 2", f"s_add_u32 s3, s3, {MISC + 2048}", "v_mov_b32 v13, s3",
          I("ds_write_b32 v13, v12", id=("fw", h)))
        e(f"v_add_u32 v9, {SCR}, v{vDMA}")
        e(f"v_xor_b32 v10, 4096, v{vDMA}", f"v_add_u32 v10, {SCR}, v10")
        e(f"v_lshrrev_b32 v11, 1, v{vDMA}", "v_and_b32 v11, 0x1f8, v11", f"s_lshl_b32 s3, s{sW}, 9", f"s_add_u32 s3, s3, {MISC}",
          "v_add_u32 v11, s3, v11", f"v_mov_b32 v12, v{vL+4}", f"v_mov_b32 v13, v{vNM+16}",
          I("ds_write_b64 v11, v[12:13]", id=("lw", h)), "v_xor_b32 v11, 512, v11")
        e(f"s_cmp_eq_u32 s{sPI}, 1", f"s_cbranch_scc1 L_he1_{h}")
        st = (dict((k, list(v)) for k, v in self.ws.q.items()), dict(self.ws.done), dict(self.ws.pos))
        for pi in range(2):
            if pi == 1:
                e(f"L_he1_{h}:")
                self.ws.q, self.ws.done, self.ws.pos = st
            for k in range(4):
                e(I(f"ds_write_b128 v10, {R('v', O(4, 4*(1-pi) + k), 4)} offset:{k*1024}", id=("ow", h, k)))
            if pi == 1:
                e("s_nop 1")
                for r in range(16): e(f"v_mov_b32 v{O(4, 0) + r}, v{O(4, 4) + r}")
            if pi == 0: e("s_branch L_he2_%d" % h)
        e(f"L_he2_{h}:")
        for j in range(4): e(f"v_rcp_f32 v{vL+j}, v{vL+j}")
        full_o = (h == 1 and self.c.stop_after != "A")
        e(I("s_barrier", needs=[("ow", h, 3)] + ([("V", 34, 3)] if full_o else [])))
        e(f"v_mov_b32 v14, {MISC + 2048}")
        e(I(f"ds_read_b128 v[{vS}:{vS+3}], v14", id=("fr", h)))
        e(I(f"ds_read_b64 v[14:15], v11", id=("lr", h)))
        for k in range(4):
            e(I(f"ds_read_b128 {R('v', O(4, 4 + k), 4)}, v9 offset:{k*1024}", id=("or", h, k)))
        e(I(f"v_or3_b32 v{vS}, v{vS}, v{vS+1}, v{vS+2}", needs=[("fr", h)]), f"v_or_b32 v{vS}, v{vS}, v{vS+3}", "s_nop 0",
          f"v_readfirstlane_b32 s3, v{vS}", f"s_andn2_b32 s3, s3, s{sREDO}", f"s_cbranch_scc1 L_redo{h}",
          f"s_mov_b32 s{sREDO}, 0")
        if full_o: self.o_start()
        e(I("v_min_f32 v11, v13, v15", needs=[("lr", h)]), "v_sub_f32 v13, v11, v13", "v_sub_f32 v15, v11, v15",
          "v_exp_f32 v13, v13", "v_exp_f32 v15, v15", "s_nop 0", "v_mul_f32 v12, v12, v13", "v_fmac_f32 v12, v14, v15",
          "v_rcp_f32 v12, v12", "s_nop 0", "v_mul_f32 v14, v12, v15", "v_mul_f32 v12, v12, v13")
        b0, b1 = O(4, 0), O(4, 4)
        for r in range(0, 16, 2):
            e(f"v_pk_mul_f32 v[{b0+r}:{b0+r+1}], v[{b0+r}:{b0+r+1}], v[12:13] op_sel_hi:[1,0]")
        for r in range(0, 16, 2):
            e(I(f"v_pk_fma_f32 v[{b0+r}:{b0+r+1}], v[{b1+r}:{b1+r+1}], v[14:15], v[{b0+r}:{b0+r+1}] op_sel_hi:[1,0,1]", needs=[("or", h, r // 4)]))
        for r in range(8): e(f"v_cvt_pk_bf16_f32 v{b0+r}, v{b0+2*r}, v{b0+2*r+1}")
        e(f"v_and_b32 v13, 0x3ff, v{vDMA}", f"s_lshl_b32 s3, s{sPI}, 11", f"s_add_u32 s3, s3, s{sOS}")
        if h: e(f"s_add_u32 s3, s3, 73728")
        for k in range(2):
            e(I(f"ds_write_b128 v9, v[{b0+4*k}:{b0+4*k+3}] offset:{k*1024}", id=("pw", h, k)))
            e(I(f"buffer_store_dwordx4 v[{b0+4*k}:{b0+4*k+3}], v13, {srd(SWS)}, s3 offen offset:{k*1024} sc1", id=("os", h, 4, k)))
        for j in range(4):
            e(f"s_add_u32 s3, s{sOB}, {h*73728 + j*4096}")
            for s in range(4):
                b = O(j, 2*s)
                p = (vL + j) & ~1
                sel = "op_sel:[0,1] op_sel_hi:[1,1]" if (vL + j) & 1 else "op_sel_hi:[1,0]"
                for r in range(0, 8, 2):
                    e(f"v_pk_mul_f32 v[{b+r}:{b+r+1}], v[{b+r}:{b+r+1}], v[{p}:{p+1}] {sel}")
                d = 16 + (j*4 + s) * 4
                for r in range(4): e(f"v_cvt_pk_bf16_f32 v{d+r}, v{b+2*r}, v{b+2*r+1}")
                e(I(f"buffer_store_dwordx4 v[{d}:{d+3}], v13, {srd(SWS)}, s3 offen offset:{s*1024} sc1", id=("os", h, j, s)))
                if h == 0:
                    for r in range(4): e(f"v_accvgpr_write_b32 a{(j*4+s)*4 + r}, v{d+r}")
        e(I("s_barrier", needs=[("pw", h, 1)]))
        e(f"s_lshl_b32 s3, s{sPI}, 12", "v_subrev_u32 v9, s3, v9")
        for s in range(4):
            dst = R("a", 64 + 4*s, 4) if h == 0 else R("v", 80 + 4*s, 4)
            e(I(f"ds_read_b128 {dst}, v9 offset:{(s >> 1)*4096 + (s & 1)*1024}", id=("pr", h, s)))
        if h == 0:
            e("s_nop 1")
            for j in range(5): e(f"v_mov_b32 v{vNM+4*j}, 0xff800000")

    def redo(self, h):
        e = self.e
        save = self.ws; self.ws = WaitState()
        e(f"L_redo{h}:", "s_waitcnt vmcnt(0) lgkmcnt(0)", "s_barrier", f"s_mov_b32 s{sREDO}, 1")
        self.kv_addr_init()
        for j in range(5): e(f"v_mov_b32 v{vNM+4*j}, 0xff800000")
        e(f"s_mov_b32 s{sOFF}, {16*h*16384}", f"s_mov_b32 s{sD}, s{sH}", f"L_rl{h}:")
        for i in range(4):
            e(f"s_add_u32 m0, s{sKVW}, {32*i}", "s_nop 0",
              f"buffer_load_dwordx4 v{vDMA}, {srd(SK)}, s{sOFF} offen offset:{i*1024} lds")
        e("s_waitcnt vmcnt(0)", "s_barrier")
        for half in range(2):
            for T in range(2):
                for s in range(4): e(self.kread(h, 0, T, s))
            e("s_waitcnt lgkmcnt(0)", f"v_add_u32 v{vKA}, s{sD}, v{vKA}", f"s_sub_u32 s{sD}, 0, s{sD}")
            for j in range(5):
                for T in range(2):
                    for s in range(4):
                        e(mfma(("v", vO + (j*2+T)*4), ("a", aK + 16*T + 4*s), ("a", aQ[h] + (j*4+s)*4), 0 if s == 0 else None))
            e("s_nop 7")
            for j in range(5):
                b = vO + j*8
                for r in range(0, 8, 2): e(f"v_max3_f32 v{vNM+4*j}, v{b+r}, v{b+r+1}, v{vNM+4*j}")
        e("s_barrier", f"s_add_u32 s{sOFF}, s{sOFF}, 16384", f"s_cmp_lg_u32 s{sOFF}, {16*(h+1)*16384}", f"s_cbranch_scc1 L_rl{h}")
        for M in range(16*h, 16*h + 3):
            self.emit_dma_straight(self.dma_kv_static("K", M) + self.dma_kv_static("V", M))
        e(f"s_mov_b32 s{sOFF}, {(16*h+3)*16384}", f"s_add_u32 s{sM0}, s{sKVW}, {3*PITCH}", f"s_mov_b32 s{sD}, s{sDA}")
        e("s_waitcnt vmcnt(0)", "s_barrier", f"s_branch L_head{h}")
        self.ws = save

    def wo_hh(self, i):
        return [(0, 0), (0, 1), (1, 0), (2, 0), (3, 0), (1, 1), (2, 1), (3, 1)][i]
    def dma_wo(self, i, vbase):
        p, par = self.wo_hh(i)
        ops = []
        for t in range(9):
            pre = [I(f"s_add_u32 m0, s{sOM0}, {(i % 4)*OST + t*1024}")] if t % 4 == 0 else []
            same = [I(f"s_add_u32 s{sT3}, s{sWR+p}, {par*128*1152}")] if t == 0 else []
            ops.append((pre, same, I(f"buffer_load_dwordx4 v{vbase+t}, {srd(SWO)}, s{sT3} offen offset:{(t % 4)*1024} {self.c.wo_flags} lds", id=("wo", i, t)), []))
        return ops
    def o_start(self):
        e = self.e
        vb = vS + 4
        for t in range(9):
            e(f"v_add_u32 v{vb+t}, {64*t}, v0", f"v_mul_u32_u24 v{vb+t}, 3641, v{vb+t}", f"v_lshrrev_b32 v{vb+t}, 16, v{vb+t}",
              f"v_mul_u32_u24 v{vb+t}, 864, v{vb+t}", f"v_lshl_add_u32 v{vb+t}, v0, 4, v{vb+t}")
            if t >= 4: e(f"v_add_u32 v{vb+t}, {1024*(t - t % 4)}, v{vb+t}")
        for i in range(3):
            for pre, same, vm, post in self.dma_wo(i, vb):
                e(*pre); e(*same)
                if pre and not same: e("s_nop 0")
                e(vm)
        for t in range(9): e(f"v_accvgpr_write_b32 a{240+t}, v{vb+t}")

    def oacc(self, j, i):
        if j < 4: return ("v", 96 + (j*9 + i) * 4)
        return ("v", 240 + 4*i) if i < 4 else ("a", 160)

    def phase_o(self):
        e = self.e; c = self.c
        vLN, vA1, vPL = 1, 2, 3
        vA0 = 12
        vA0 = [13, 14, 0, 12]
        vWO = 4
        vWO, vPL = 3, 15
        aA, NR = 164, 8
        e(f"v_lshrrev_b32 v12, 2, v0", "v_mul_u32_u24 v12, 288, v12", "v_and_b32 v14, 3, v0", "v_lshl_add_u32 v12, v14, 3, v12",
          f"v_lshlrev_b32 v{vLN}, 4, v0",
          f"s_lshl_b32 s3, s{sPI}, 7", "s_xor_b32 s3, s3, 128", f"v_add_u32 v{vA1}, s3, v12", f"s_mul_i32 s{sT}, s{sPI}, 160")
        for i in range(4):
            e(f"s_xor_b32 s3, s{sKQ}, {i}", "s_lshl_b32 s3, s3, 5", f"s_add_u32 s3, s3, s{sT}", f"v_add_u32 v{vA0[i]}, s3, v12")
        for t in range(9): e(f"v_accvgpr_read_b32 v{vWO+t}, a{240+t}")
        Bbuf = lambda i: ("v", 16) if i == 1 else (("a", 0) if (i == 0 or i % 2 == 1) else ("a", 80))
        ms = []; start = {}; last = {}
        for i in range(8):
            for s in range(4):
                for n in range(9):
                    f = 36*i + 9*s + n
                    start[f] = len(ms)
                    for j in range(5 if n <= 4 else 4):
                        k, b = Bbuf(i)
                        nd = [("oa", f, 0), ("oa", f, 1)]
                        if i >= 2: nd.append(("ob", i, s, j))
                        elif j == 4: nd.append(("pr", i, s))
                        ms.append(I(mfma(self.oacc(j, n), ("a", aA + 4*(f % NR)), (k, b + (j*4+s)*4), 0 if (i == 0 and s == 0) else None), needs=nd))
                    last[f] = len(ms) - 1
        G = Gaps(ms)
        def aread(f, v):
            i, r = divmod(f, 36); s, n = divmod(r, 9)
            va, off = (vA0[n], 0) if n < 4 else (vA1, 32*(n-4))
            return I(f"ds_read_b64_tr_b16 {R('a', aA + 4*(f % NR) + 2*v, 2)}, v{va} offset:{s*9216 + v*4608 + off}", id=("oa", f, v))
        pre = [I("s_barrier", needs=[("wo", 0, 8), ("pr", 1, 3)])]
        for i in range(8):
            for r in range(36):
                for v in range(2):
                    f = 36*i + r
                    g = 164*i - 13 + ((2*r + v) * 152) // 72
                    if g < 0: pre.append(aread(f, v)); continue
                    assert g <= start[f] - 8, (f, g, start[f])
                    assert f < NR or g >= last[f - NR], (f, g)
                    G.mem[g].append(aread(f, v))
        seq = []
        for i in range(8):
            g0 = 164 * i
            if i < 7:
                d = OST if i % 4 != 3 else -3 * OST
                for k, va in enumerate(vA0 + [vA1]):
                    G.val[g0 + 140 + k].append(I(f"v_add_u32 v{va}, {d & 0xffffffff:#x}, v{va}"))
                G.waitneeds[g0 + 148] += [("oa", 36*i + 35, 1), ("wo", i + 1, 8)]
                if i == 1: G.waitneeds[g0 + 148] += [("os", 1, 3, 3)]
                G.sal[g0 + 149].append(I("s_barrier"))
                self.stamp_gap(G, g0 + 149)
                if i == 1: G.val[g0 + 150] += self.publish(2)
            ops = []
            lo = g0 + 2
            if i + 3 < 8: wo = self.dma_wo(i + 3, vWO)
            else: wo = []
            ob = []
            if 1 <= i < 7:
                p, par = self.wo_hh(i + 1)
                k, b = Bbuf(i + 1)
                for s in range(4):
                    for j in range(5):
                        same = [I(f"s_add_u32 s{sT2}, s{sT}, {j*4096}")] if j < 4 else [I(f"s_add_u32 s{sT2}, s3, 0")]
                        ob.append(([], same, I(f"buffer_load_dwordx4 {R(k, b + (j*4+s)*4, 4)}, v{vLN}, {srd(SWS)}, s{sT2} offen offset:{s*1024} sc1", id=("ob", i + 1, s, j)), []))
                need = 1 + par
                load = f"buffer_load_dword v{vPL}, off, {srd(SWS)}, s{sFP+p-1} sc1"
                test = [f"v_readfirstlane_b32 s{sT2}, v{vPL}", f"s_cmp_ge_u32 s{sT2}, {need}"]
                gp = g0 - 164 + 90
                while G.mem[gp]: gp += 1
                G.mem[gp].append(I(load, id=("poll", i)))
                G.val[g0] += [I(test[0], needs=[("poll", i)]), I(test[1]), I(f"s_cbranch_scc0 L_sp_o{i}"), I(f"L_sb_o{i}:"),
                              I(f"s_add_u32 s{sT}, s{sOB}, s{sOP+p-1}"), I(f"s_add_u32 s3, s{sOS}, s{sOP+p-1}")]
                if par: G.val[g0] += [I(f"s_add_u32 s{sT}, s{sT}, 73728"), I(f"s_add_u32 s3, s3, 73728")]
                self.spin(f"o{i}", [load], test)
            tim = [(g0 + 3 + k * 7, o) for k, o in enumerate(ob)] + [(g0 + 6 + k * 14, o) for k, o in enumerate(wo)]
            tim.sort(key=lambda t: t[0])
            g = g0
            for t, (p_, same, vm, post) in tim:
                g = max(g + 2, t)
                while G.mem[g]: g += 1
                assert g < g0 + 147
                G.mem[g].append(vm)
                for x in p_: seq.append((x, g - 1, g - 1))
                for x in same: seq.append((x, g - 1, g))
        self.e(*pre)
        pre2 = []
        G.place_waits(self.ws, pre2)
        G.place_salu(seq)
        self.raw(pre2)
        self.raw(G.flat())
        print("phase O est cycles", G.cost(), file=sys.stderr)
        self.stamp()
        def pk(dst, t):
            return [f"v_cvt_pk_bf16_f32 v{dst}, v{t}, v{t+1}", f"v_cvt_pk_bf16_f32 v{dst+1}, v{t+2}, v{t+3}"]
        e(f"s_mul_i32 s{sT}, s{sKQ}, {4*5120}", f"s_add_u32 s{sT}, s{sT}, s{sPB}")
        for j in range(1, 4):
            e(f"s_xor_b32 s3, s{sKQ}, {j}", f"s_mul_i32 s3, s3, {16*5120}", f"s_add_u32 s3, s3, s{sT}")
            tl = [self.oacc(4, j)[1]] + [self.oacc(j, n)[1] for n in range(9)]
            for k in range(5):
                d = 16 + ((j-1)*5 + k) * 4
                e(*pk(d, tl[2*k]), *pk(d + 2, tl[2*k+1]))
                if k == 4: e("s_add_u32 s3, s3, 4096")
                e(I(f"buffer_store_dwordx4 v[{d}:{d+3}], v{vLN}, {srd(SWS)}, s3 offen offset:{(k % 4)*1024} sc1", id=("ps", j, k)))
        for r in range(4): e(f"v_accvgpr_read_b32 v{76+r}, a{160+r}")
        e(f"v_lshrrev_b32 v2, 1, v{vLN}")
        e(*pk(80, 76))
        e(f"s_lshr_b32 s3, s{sG}, 3", f"s_lshl_b32 s{sT2}, s{sBR}, 5", f"s_add_u32 s3, s3, s{sT2}", "s_lshl_b32 s3, s3, 13",
          f"s_lshl_b32 s{sT2}, s{sW}, 9", f"s_add_u32 s3, s3, s{sT2}", f"s_add_u32 s{sT3}, s3, {WS_SH}",
          f"s_lshl_b32 s3, s{sKQ}, 11", f"s_add_u32 s3, s3, s{sT3}")
        e(I(f"buffer_store_dwordx2 v[80:81], v2, {srd(SWS)}, s3 offen sc1", id=("ps", 4, 0)))
        e(f"v_lshrrev_b32 v3, 4, v{vLN}", "v_lshrrev_b32 v4, 4, v3", "v_bfe_u32 v5, v3, 2, 2", "v_cmp_eq_u32 vcc, v4, v5",
          "v_and_b32 v6, 1, v3", "v_lshlrev_b32 v6, 4, v6", "v_mov_b32 v7, 0x3f80", "v_lshlrev_b32 v6, v6, v7",
          "v_cndmask_b32 v6, 0, v6, vcc", "v_and_b32 v7, 2, v3", "v_cmp_eq_u32 vcc, 0, v7",
          "v_mov_b32 v84, 0", "v_mov_b32 v85, 0", "v_cndmask_b32 v86, 0, v6, vcc", "v_sub_u32 v87, v6, v86",
          "v_mov_b32 v88, 0", "v_mov_b32 v89, 0")
        e("v_and_b32 v5, 15, v3", "v_mul_u32_u24 v5, 2304, v5", "v_lshl_add_u32 v5, v4, 3, v5")
        e(f"v_mov_b32 v8, s{sFQ}", f"v_writelane_b32 v8, s{sFQ+1}, 1", f"v_writelane_b32 v8, s{sFQ+2}, 2")
        e(I("s_barrier", needs=[("ps", 4, 0)]))
        self.raw(self.publish(3))
        self.stamp()
        load = f"buffer_load_dword v9, v8, {srd(SWS)}, 0 offen sc1"
        test = ["v_cmp_gt_u32 vcc, 3, v9", "s_cmp_eq_u64 vcc, 0"]
        e(load, "s_waitcnt vmcnt(0)", *test, "s_cbranch_scc0 L_sp_fin", "L_sb_fin:")
        self.spin("fin", [load], test)
        self.stamp()
        e(f"s_mul_i32 s{sT}, s{sKQ}, {16*5120}", f"s_add_u32 s{sT}, s{sT}, s{sPB}")
        for j in range(1, 4):
            e(f"s_xor_b32 s{sT2}, s{sKQ}, {j}", f"s_mul_i32 s3, s{sT2}, {4*5120}", f"s_add_u32 s3, s3, s{sT}")
            for k in range(5):
                d = 16 + ((j-1)*5 + k) * 4
                if k == 4: e("s_add_u32 s3, s3, 4096")
                e(I(f"buffer_load_dwordx4 v[{d}:{d+3}], v{vLN}, {srd(SWS)}, s3 offen offset:{(k % 4)*1024} sc1", id=("pl", j, k)))
            e(f"s_lshl_b32 s3, s{sT2}, 11", f"s_add_u32 s3, s3, s{sT3}")
            e(I(f"buffer_load_dwordx2 v[{132+4*j}:{133+4*j}], v2, {srd(SWS)}, s3 offen sc1", id=("pl", j, 5)))
            e(f"v_mov_b32 v{134+4*j}, 0", f"v_mov_b32 v{135+4*j}, 0")
        for j in range(1, 4):
            tl = [self.oacc(4, 0)] + [self.oacc(0, (n ^ j) if n < 4 else n) for n in range(9)]
            for k in range(5):
                d = 16 + ((j-1)*5 + k) * 4
                e(I(mfma(tl[2*k], ("v", 86), ("v", d)), needs=[("pl", j, k)]), mfma(tl[2*k+1], ("v", 84), ("v", d)))
            e(I(mfma(("v", 76), ("v", 86), ("v", 132 + 4*j)), needs=[("pl", j, 5)]))
        e(f"s_mul_i32 s{sT}, s{sBR}, 1152", f"s_mul_i32 s3, s{sHP}, 288", f"s_add_u32 s{sT}, s{sT}, s3",
          f"s_mul_i32 s3, s{sB}, {288*2304}", f"s_add_u32 s{sT}, s{sT}, s3",
          f"s_lshl_b32 s3, s{sROW+4}, 1", f"s_add_u32 s{sT3}, s{sT}, s3",
          f"s_lshl_b32 s3, s{sROW}, 1", f"s_add_u32 s{sT}, s{sT}, s3", f"s_mul_i32 s{sD}, s{sPI}, 160")
        t = self.oacc(4, 0)[1]
        e(*pk(t, t), f"s_lshl_b32 s3, s{sKQ}, 5", f"s_add_u32 s3, s3, s{sD}", f"s_add_u32 s3, s3, s{sT3}",
          f"buffer_store_dwordx2 v[{t}:{t+1}], v5, {srd(SOUT)}, s3 offen")
        for n in range(9):
            t = self.oacc(0, n)[1]
            e(*pk(t, t))
            if n < 4:
                e(f"s_xor_b32 s3, s{sKQ}, {n}", "s_lshl_b32 s3, s3, 5", f"s_add_u32 s3, s3, s{sD}", f"s_add_u32 s3, s3, s{sT}")
                off = 0
            else:
                if n == 4: e(f"s_lshl_b32 s3, s{sPI}, 7", "s_xor_b32 s3, s3, 128", f"s_add_u32 s3, s3, s{sT}")
                off = 32 * (n - 4)
            e(f"buffer_store_dwordx2 v[{t}:{t+1}], v5, {srd(SOUT)}, s3 offen offset:{off}")
        e(f"s_cmp_eq_u32 s{sPI}, 1", "s_cbranch_scc1 L_fin", *pk(76, 76), f"v_cmp_eq_u32 vcc, s{sKQ}, v4",
          "s_and_saveexec_b64 s[90:91], vcc", f"buffer_store_dwordx2 v[76:77], v5, {srd(SOUT)}, s{sT3} offen offset:128",
          "s_mov_b64 exec, s[90:91]", "L_fin:")

    def build(self):
        self.setup()
        self.phase_q()
        self.attn_schedule()
        self.head(0)
        self.head(1)
        self.stamp()
        if self.c.stop_after != "A":
            self.phase_o()
        self.e("s_waitcnt vmcnt(0) lgkmcnt(0)")
        self.stamp()
        if self.c.amp is not None:
            print("n stamps", self.nstamp, file=sys.stderr)
            if self.c.amp[0] < 0: self.e("s_mov_b32 s96, s98")
            self.e(f"s_and_b32 s3, s{sG}, {self.c.amp[1]}", f"s_cmp_lg_u32 s3, {self.c.amp[2]}", "s_cbranch_scc1 L_end",
                   "s_sub_u32 s96, s96, s98", "s_mul_i32 s96, s96, 4", "s_add_u32 s96, s96, 20000", "L_amp:", "s_memrealtime s[100:101]", "s_waitcnt lgkmcnt(0)",
                   "s_sub_u32 s100, s100, s98", "s_cmp_lt_u32 s100, s96", "s_cbranch_scc1 L_amp")
        self.e("s_endpgm")
        self.raw(self.tailcode)
        self.redo(0)
        self.redo(1)
        self.e("L_end:")
        probs = check_hazards(self.out, "main")
        for nm, seq in self.checks: probs += check_hazards(seq, nm)
        for p in probs: print(p, file=sys.stderr)
        assert not probs
        hdr = open("cdna_kernels/" + NAME[:-7] + ".s.ref").read().split("; Override launch")[0]
        txt = hdr + f"; @launch grid=(256,1,1) block=(256,1,1) lds={LDS_BYTES}\n"
        txt += f""".amdgcn_target "amdgcn-amd-amdhsa--gfx950"
.text
.globl {NAME}
.p2align 8
.type {NAME},@function
{NAME}:
"""
        for x in self.out:
            if self.c.no_vmwait and "vmcnt(12)" in x.t: x = I(x.t.replace("vmcnt(12)", "vmcnt(40)"))
            if self.c.no_dma and x.k == "vm" and f"s{sOFF} offen" in x.t: continue
            txt += (x.t if x.k == "l" else "    " + " ".join(x.t.split())) + "\n"
        txt += f"""    s_endpgm
.section .rodata,"a"
.p2align 6
.amdhsa_kernel {NAME}
  .amdhsa_next_free_vgpr 512
  .amdhsa_next_free_sgpr 102
  .amdhsa_accum_offset 256
  .amdhsa_group_segment_fixed_size 0
  .amdhsa_kernarg_size 104
  .amdhsa_user_sgpr_count 2
  .amdhsa_user_sgpr_kernarg_segment_ptr 1
  .amdhsa_system_sgpr_workgroup_id_x 1
.end_amdhsa_kernel
"""
        return txt

def make(**kw):
    c = Cfg()
    for k, v in kw.items():
        assert hasattr(c, k), k
        setattr(c, k, v)
    return Gen(c).build()

if __name__ == "__main__":
    kw = {}
    out = sys.argv[1]
    for a in sys.argv[2:]:
        k, v = a.split("=", 1)
        try: v = eval(v)
        except Exception: pass
        kw[k] = v
    open(out, "w").write(make(**kw))
```

```python
import sys, struct, math
from asmlib import *

NAME = "concat_heads__mha_block_cached__gqa_block_cached__near_ridge_kernel"
def f2u(x): return struct.unpack("<I", struct.pack("<f", x))[0]

class Cfg:
    stamps = False
    stop_after = None
    kv_flags = "nt"
    x_flags = ""
    wq_flags = ""
    wo_flags = ""
    thr = 2.0 ** 30
    backlog = 10
    rot = False
    code_prefetch = True
    wo_touch = 2
    nfirst = 18
    o_flags = 'sc1'
    amp = None
    no_vmwait = False
    kv_same = False
    no_dma = False

SX, SWQ, SK, SV, SWO, SWS, SOUT, SDBG = 4, 8, 12, 16, 20, 24, 28, 32
sW, sPI, sKQ, sB, sHP, sBR = 36, 37, 38, 39, 40, 41
sROW = 42
sH, sDA, sDB, sD, sM0, sOFF, sT, sT2 = 47, 48, 49, 50, 51, 52, 53, 54
sWM0 = 55
sC = 56
sTHR, sXK, sWK, sXM0, sREDO, sKVW = 58, 59, 60, 61, 62, 63
sOB = 64
sOS = 65
sG = 66
sST = 68
sSTO = 70
sFL = 71
sFP = 72
sFQ = 75
sOP = 78
sWR = 81
sPB = 85
sOM0 = 86
sT3 = 87
sSPIN = 88
PITCH = 17408
VBASE = 4 * PITCH
XB = (115712, 69632)
SCR = 8 * PITCH
MISC = 9 * PITCH
LDS_BYTES = 163840
HALF = 8448
WS_O = 0
WS_PART = 0x2800000
WS_SH = 0x3e00000
WS_FLAG = 0x3f00000
WS_STAMP = 0x4000000
OST = 36864
WS_BYTES = 292618240
vDMA, vKA, vVA = 1, 2, 3
vL = 4
vT = 9
vNM = 16
vS = 36
NS = 6
vP = (60, 80)
vO = 96
vXD, vWD, vXR, vWR0, vWR1 = 4, 5, 6, 7, 8
aQ = (0, 80)
aK = 160
aV = 192
NV = 4

def srd(n): return f"s[{n}:{n+3}]"

class Gen:
    def __init__(self, cfg):
        self.c = cfg
        self.out = []
        self.ws = WaitState()
        self.nstamp = 0
        self.tailcode = []
        self.checks = []
    def e(self, *ts):
        for t in ts:
            for line in (t.split("\n") if isinstance(t, str) else [t]):
                if isinstance(line, str):
                    line = line.strip()
                    if not line: continue
                    line = I(line)
                self.out += linear_waits([line], self.ws)
    def raw(self, ins):
        self.out += ins
    def stamp_ins(self):
        k = self.nstamp; self.nstamp += 1
        return [I(x) for x in (f"s_memtime s[{sST}:{sST+1}]", "s_memrealtime s[96:97]", "s_waitcnt lgkmcnt(0)",
               f"v_accvgpr_write_b32 a252, s{sST}", f"v_accvgpr_write_b32 a253, s96",
               f"buffer_store_dwordx2 a[252:253], off, {srd(SWS)}, s{sSTO} offset:{k*8}")]
    def stamp(self):
        if self.c.amp is not None:
            k = self.nstamp; self.nstamp += 1
            if k == self.c.amp[0]: self.e("s_memrealtime s[96:97]", "s_waitcnt lgkmcnt(0)")
        if self.c.stamps: self.e(*self.stamp_ins())
    def stamp_gap(self, G, g):
        if not self.c.stamps: return
        x = self.stamp_ins()
        G.val[g] += x[:-1]
        G.mem[g + 1].insert(0, x[-1])

    def setup(self):
        c = self.c; e = self.e
        e(f"""
        s_cmp_ge_u32 s2, 256
        s_cbranch_scc1 L_end
        {"s_memtime s[96:97]" if c.stamps else ""}
        {"s_memrealtime s[98:99]" if (c.stamps or c.amp) else ""}
        s_load_dwordx16 s[64:79], s[0:1], 0
        s_load_dwordx8 s[80:87], s[0:1], 64
        s_load_dwordx2 s[88:89], s[0:1], 96
        v_lshrrev_b32 v9, 6, v0
        v_and_b32 v0, 63, v0
        s_and_b32 s3, s2, 7
        v_readfirstlane_b32 s{sW}, v9
        s_lshr_b32 s{sBR}, s3, 2
        s_and_b32 s{sKQ}, s3, 3
        s_lshr_b32 s3, s2, 3
        s_lshr_b32 s{sB}, s3, 2
        s_and_b32 s{sHP}, s3, 3
        s_and_b32 s{sPI}, s{sW}, 1
        """)
        if c.code_prefetch:
            e(f"""
            s_getpc_b64 s[90:91]
            L_pc:
            v_lshlrev_b32 v10, 7, v0
            s_lshl_b32 s3, s{sW}, 13
            v_add_u32 v10, s3, v10
            s_mov_b32 s92, s90
            s_mov_b32 s93, s91
            s_mov_b32 s94, L_end-L_pc
            s_mov_b32 s95, 0x20000
            buffer_load_dword v15, v10, s[92:95], 0 offen
            s_mov_b32 s3, 0x8000
            buffer_load_dword v12, v10, s[92:95], s3 offen
            s_mov_b32 s3, 0x10000
            buffer_load_dword v13, v10, s[92:95], s3 offen
            """)
        e(f"""
        v_lshrrev_b32 v9, 2, v0
        v_mul_u32_u24 v{vXD}, 1152, v9
        v_lshrrev_b32 v9, 4, v0
        v_and_b32 v9, 2, v9
        v_xor_b32 v9, v9, v0
        v_and_b32 v9, 3, v9
        v_lshl_add_u32 v{vXD}, v9, 4, v{vXD}
        v_lshrrev_b32 v9, 5, v0
        v_lshlrev_b32 v9, 15, v9
        v_and_b32 v14, 31, v0
        v_lshl_add_u32 v9, v14, 4, v9
        s_lshl_b32 s3, s{sW}, 16
        v_add_u32 v{vWD}, s3, v9
        v_lshrrev_b32 v9, 2, v0
        v_and_b32 v9, 2, v9
        v_lshrrev_b32 v14, 4, v0
        v_xor_b32 v9, v9, v14
        v_and_b32 v14, 15, v0
        v_lshl_add_u32 v9, v14, 2, v9
        s_mul_i32 s{sXM0}, s{sW}, 10240
        s_add_u32 s{sXM0}, s{sXM0}, {XB[1]}
        v_lshlrev_b32 v9, 4, v9
        v_add_u32 v{vXR}, s{sXM0}, v9
        v_lshrrev_b32 v9, 2, v0
        v_mul_u32_u24 v9, 1088, v9
        v_and_b32 v14, 3, v0
        v_lshl_add_u32 v9, v14, 4, v9
        s_lshl_b32 s3, s{sPI}, 8
        v_add_u32 v{vWR0}, s3, v9
        s_xor_b32 s3, s3, 256
        v_add_u32 v{vWR1}, s3, v9
        s_lshl_b32 s3, s{sW}, 12
        v_lshlrev_b32 v9, 4, v0
        v_add_u32 v{vDMA}, s3, v9
        s_mul_i32 s{sWM0}, s{sW}, 4352
        s_mul_i32 s{sKVW}, s{sW}, 4224
        s_lshr_b32 s3, s{sW}, 1
        s_mul_i32 s3, s3, 144
        s_add_u32 s{sROW+4}, s3, 128
        s_mul_i32 s{sROW+4}, s{sROW+4}, 1152
        s_lshl_b32 s{sT}, s{sPI}, 6
        s_add_u32 s3, s3, s{sT}
        """)
        for j in range(4):
            e(f"s_xor_b32 s{sT}, s{sKQ}, {j}", f"s_lshl_b32 s{sT}, s{sT}, 4", f"s_add_u32 s{sT}, s{sT}, s3",
              f"s_mul_i32 s{sROW+j}, s{sT}, 1152")
        if c.rot:
            e(f"s_lshl_b32 s3, s{sHP}, 1", f"s_add_u32 s3, s3, s{sB}", f"s_sub_u32 s{sT}, s3, 9", "s_cmp_ge_u32 s3, 9",
              f"s_cselect_b32 s3, s{sT}, s3")
        else:
            e("s_mov_b32 s3, 0")
        e(f"s_lshl_b32 s{sXK}, s3, 7", f"s_lshl_b32 s{sWK}, s3, 19")
        cc = f2u(math.log2(math.e) / math.sqrt(128.0))
        e(f"""
        s_mov_b32 s{sC}, {cc:#x}
        s_mov_b32 s{sC+1}, {cc:#x}
        s_mov_b32 s{sTHR}, {f2u(c.thr):#x}
        s_mul_i32 s{sH}, s{sPI}, {-2*HALF}
        s_add_u32 s{sH}, s{sH}, {HALF}
        s_sub_u32 s{sDA}, {PITCH}, s{sH}
        s_sub_u32 s{sDB}, {-3*PITCH}, s{sH}
        s_waitcnt lgkmcnt(0)
        s_cmp_eq_u32 s{sBR}, 0
        s_cselect_b64 s[{SX}:{SX+1}], s[64:65], s[74:75]
        s_cselect_b64 s[{SK}:{SK+1}], s[66:67], s[76:77]
        s_cselect_b64 s[{SV}:{SV+1}], s[68:69], s[78:79]
        s_cselect_b64 s[{SWQ}:{SWQ+1}], s[70:71], s[80:81]
        s_cselect_b64 s[{SWO}:{SWO+1}], s[72:73], s[82:83]
        s_mul_i32 s3, s{sB}, 331776
        s_add_u32 s{SX}, s{SX}, s3
        s_addc_u32 s{SX+1}, s{SX+1}, 0
        s_mov_b32 s{SX+2}, 331776
        s_mov_b32 s{SX+3}, 0x20000
        s_lshl_b32 s{sT}, s{sKQ}, 2
        s_add_u32 s{sT}, s{sT}, s{sHP}
        s_lshl_b32 s3, s{sT}, 9
        s_add_u32 s{SWQ}, s{SWQ}, s3
        s_addc_u32 s{SWQ+1}, s{SWQ+1}, 0
        s_sub_u32 s{SWQ+2}, {576*8192}, s3
        s_mov_b32 s{SWQ+3}, 0x20000
        """)

    def setup2(self):
        e = self.e
        e(f"""
        s_lshl_b32 s{sT}, s{sKQ}, 2
        s_add_u32 s{sT}, s{sT}, s{sHP}
        s_lshl_b32 s3, s{sB}, 4
        s_add_u32 s{sT}, s{sT}, s3
        s_lshl_b32 s3, s{sT}, 19
        {"s_mov_b32 s3, 0" if self.c.kv_same else ""}
        s_add_u32 s{SK}, s{SK}, s3
        s_addc_u32 s{SK+1}, s{SK+1}, 0
        s_mov_b32 s{SK+2}, 524288
        s_mov_b32 s{SK+3}, 0x20000
        s_add_u32 s{SV}, s{SV}, s3
        s_addc_u32 s{SV+1}, s{SV+1}, 0
        s_mov_b32 s{SV+2}, 524288
        s_mov_b32 s{SV+3}, 0x20000
        s_mov_b32 s{SWO+2}, {4096*1152}
        s_mov_b32 s{SWO+3}, 0x20000
        s_mov_b32 s{SOUT}, s84
        s_mov_b32 s{SOUT+1}, s85
        s_mov_b32 s{SOUT+2}, {8*288*1152*2}
        s_mov_b32 s{SOUT+3}, 0x20000
        s_mov_b32 s{SDBG}, s86
        s_mov_b32 s{SDBG+1}, s87
        s_mov_b32 s{SDBG+2}, 256
        s_mov_b32 s{SDBG+3}, 0x20000
        s_mov_b32 s{SWS}, s88
        s_mov_b32 s{SWS+1}, s89
        s_mov_b32 s{SWS+2}, {WS_BYTES}
        s_mov_b32 s{SWS+3}, 0x20000
        s_lshl_b32 s3, s{sBR}, 7
        s_add_u32 s{sT}, s{sT}, s3
        s_mul_i32 s{sOB}, s{sT}, 147456
        s_lshr_b32 s3, s{sW}, 1
        s_mul_i32 s3, s3, 36864
        s_add_u32 s{sOB}, s{sOB}, s3
        s_add_u32 s{sOS}, s{sOB}, 32768
        s_lshl_b32 s3, s{sPI}, 14
        s_add_u32 s{sOB}, s{sOB}, s3
        s_mov_b32 s{sG}, s2
        s_lshl_b32 s3, s2, 2
        s_add_u32 s3, s3, s{sW}
        s_lshl_b32 s3, s3, 8
        s_add_u32 s{sSTO}, s3, {WS_STAMP}
        s_mov_b32 s{sREDO}, 0
        s_mul_i32 s3, s{sKQ}, {1024*1152}
        s_mul_i32 s{sT}, s{sHP}, 288
        s_add_u32 s3, s3, s{sT}
        s_add_u32 s{SWO}, s{SWO}, s3
        s_addc_u32 s{SWO+1}, s{SWO+1}, 0
        s_sub_u32 s{SWO+2}, s{SWO+2}, s3
        s_lshl_b32 s{sFL}, s2, 7
        s_add_u32 s{sFL}, s{sFL}, {WS_FLAG}
        s_mul_i32 s{sOM0}, s{sW}, 9216
        s_mul_i32 s{sT2}, s{sW}, {32*1152}
        """)
        for p in range(4):
            e(f"s_xor_b32 s3, s{sHP}, {p}", f"s_mul_i32 s{sT}, s3, {256*1152}", f"s_add_u32 s{sWR+p}, s{sT}, s{sT2}")
            if p:
                e(f"s_sub_u32 s3, s3, s{sHP}", f"s_mul_i32 s{sOP+p-1}, s3, 147456",
                  f"s_xor_b32 s{sFP+p-1}, s{sFL}, {p << 10}", f"s_xor_b32 s{sFQ+p-1}, s{sFL}, {p << 7}")
        e(f"""
        s_lshr_b32 s3, s2, 3
        s_lshl_b32 s{sT}, s{sBR}, 5
        s_add_u32 s3, s3, s{sT}
        s_mul_i32 s{sPB}, s3, {64*5120}
        s_mul_i32 s{sT}, s{sW}, 5120
        s_add_u32 s{sPB}, s{sPB}, s{sT}
        s_add_u32 s{sPB}, s{sPB}, {WS_PART}
        """)
        if self.c.wo_touch:
            e(f"s_lshr_b32 s3, s{sG}, 3", f"s_mul_i32 s3, s3, {32*1152}", f"s_mul_i32 s{sT}, s{sW}, {8*1152}", f"s_add_u32 s{sT3}, s3, s{sT}",
              "v_lshrrev_b32 v10, 3, v0", "v_lshlrev_b32 v10, 24, v10", "v_lshl_add_u32 v10, v0, 7, v10")
        for t in range(9):
            e(f"v_add_u32 v9, {64*t}, v0", "v_mul_u32_u24 v9, 3641, v9", "v_lshrrev_b32 v9, 16, v9",
              "v_mul_u32_u24 v9, 864, v9", "v_lshl_add_u32 v9, v0, 4, v9")
            if t >= 4: e(f"v_add_u32 v9, {1024*(t - t % 4)}, v9")
            e(f"v_accvgpr_write_b32 a{240+t}, v9")
        if self.c.stop_after != "A":
            e("v_mov_b32 v9, 0", I(f"buffer_store_dword v9, off, {srd(SWS)}, s{sFL} sc1", id=("flclr",)))
        self.kv_addr_init()

    def dbg_addr(self, v):
        self.e(f"""
        s_and_b32 s3, s{sG}, 7
        s_lshl_b32 s3, s3, 3
        s_add_u32 s3, s3, s{sB}
        s_lshl_b32 s3, s3, 2
        s_lshr_b32 s{sT}, s{sG}, 3
        s_lshl_b32 s{sT2}, s{sBR}, 5
        s_add_u32 s{sT}, s{sT}, s{sT2}
        s_lshl_b32 s{sT}, s{sT}, 2
        v_mov_b32 v{v}, 0x1000
        v_writelane_b32 v{v}, s3, 0
        v_writelane_b32 v{v}, s{sT}, 1
        """)

    def announce_cleared(self):
        e = self.e
        e(f"s_cmp_lg_u32 s{sW}, 0", "s_cbranch_scc1 L_ann")
        self.dbg_addr(10)
        e("v_mov_b32 v11, 1", "s_mov_b32 s3, 0x10000", "v_writelane_b32 v11, s3, 1")
        self.raw([I(f"buffer_atomic_add v11, v10, {srd(SDBG)}, 0 offen sc1")])
        e("L_ann:")

    def publish(self, val):
        lab = f"L_pub{val}"
        return [I(f"s_cmp_lg_u32 s{sW}, 0"), I(f"s_cbranch_scc1 {lab}"), I(f"v_accvgpr_write_b32 a255, {val}"),
                I(f"buffer_store_dword a255, off, {srd(SWS)}, s{sFL} sc1", k="x"), I(f"{lab}:")]

    def spin(self, name, load, test):
        self.tailcode += [I(f"L_sp_{name}:"), I(f"s_mov_b32 s{sSPIN}, 0x40000"), I(f"L_spl_{name}:"), I("s_sleep 1")]
        self.tailcode += [I(x) for x in load] + [I("s_waitcnt vmcnt(0)")] + [I(x) for x in test]
        self.tailcode += [I(f"s_cbranch_scc1 L_sb_{name}"), I(f"s_sub_u32 s{sSPIN}, s{sSPIN}, 1"), I(f"s_cmp_lg_u32 s{sSPIN}, 0"),
                          I(f"s_cbranch_scc1 L_spl_{name}"), I(f"s_branch L_sb_{name}")]

    def kv_addr_init(self):
        e = self.e
        e(f"""
        v_and_b32 v9, 7, v0
        v_mul_u32_u24 v9, 1056, v9
        v_and_b32 v14, 8, v0
        v_lshl_add_u32 v9, v14, 5, v9
        v_and_b32 v14, 48, v0
        s_mul_i32 s3, s{sPI}, {HALF}
        v_add3_u32 v{vKA}, v9, v14, s3
        v_bfe_u32 v9, v0, 2, 3
        v_mul_u32_u24 v9, 1056, v9
        v_and_b32 v14, 32, v0
        v_lshl_add_u32 v9, v14, 3, v9
        v_and_b32 v14, 3, v0
        v_lshl_add_u32 v9, v14, 3, v9
        s_add_u32 s3, s3, {VBASE}
        v_add_u32 v{vVA}, s3, v9
        """)

    def dma_wq(self, i):
        slot = (i + 2) % 4
        ops = []
        for r in range(4):
            pre = [I(f"s_add_u32 m0, s{sWM0}, {slot*PITCH + r*1088}")]
            same = [I(f"s_add_u32 s{sT}, s{sWK}, {r*8192}")]
            vm = I(f"buffer_load_dwordx4 v{vWD}, {srd(SWQ)}, s{sT} offen {self.c.wq_flags} lds", id=("wq", i, r))
            post = []
            if r == 3:
                post = [I(f"s_add_u32 s{sWK}, s{sWK}, {32*8192}")]
                if i % 2 == 1:
                    post += [I(f"s_cmp_eq_u32 s{sWK}, {576*8192}"), I(f"s_cselect_b32 s{sWK}, 0, s{sWK}")]
            ops.append((pre, same, vm, post))
        return ops
    def dma_x(self, st, js):
        boff = XB[st % 2] - XB[1]
        ops = []
        for j in js:
            needs = [("xr", 2*st - 4, j), ("xr", 2*st - 3, j)] if st >= 2 else []
            ops.append(([I(f"s_add_u32 m0, s{sXM0}, {boff + j*1024}")], [I(f"s_add_u32 s{sT2}, s{sROW+j}, s{sXK}")],
                        I(f"buffer_load_dwordx4 v{vXD}, {srd(SX)}, s{sT2} offen {self.c.x_flags} lds", id=("x", 2*st, j), needs=needs), []))
            post = []
            if j == 4:
                post = [I(f"s_add_u32 s{sXK}, s{sXK}, 128"), I(f"s_cmp_eq_u32 s{sXK}, 1152"), I(f"s_cselect_b32 s{sXK}, 0, s{sXK}")]
            ops.append(([I(f"s_add_u32 m0, s{sXM0}, {boff + 5120 + j*1024 - 64}")], [],
                        I(f"buffer_load_dwordx4 v{vXD}, {srd(SX)}, s{sT2} offen offset:64 {self.c.x_flags} lds", id=("x", 2*st+1, j)), post))
        return ops
    def dma_kv_static(self, which, M):
        base = (M % 4) * PITCH + (VBASE if which == "V" else 0)
        ops = []
        for i in range(4):
            same = [I(f"s_mov_b32 s{sT}, {M*16384}")] if i == 0 else []
            ops.append(([I(f"s_add_u32 m0, s{sKVW}, {base + 32*i}")], same,
                        I(f"buffer_load_dwordx4 v{vDMA}, {srd(SK if which == 'K' else SV)}, s{sT} offen offset:{i*1024} {self.c.kv_flags} lds", id=(which, M, i)), []))
        return ops
    def emit_dma_straight(self, ops):
        for pre, same, vm, post in ops:
            self.e(*pre)
            self.e(*(same or [I("s_nop 0")]))
            self.e(vm, *post)

    def qacc(self, tp, j):
        idn = tp * 4 + j if j < 4 else 64 + tp
        return ("v", 16 + 4 * idn) if idn < 60 else ("a", 160 + 4 * (idn - 60))

    def phase_q(self):
        e = self.e
        NR = 8
        aB, aA = 0, 40
        first = self.dma_wq(0) + self.dma_x(0, range(5)) + self.dma_wq(1) + self.dma_x(1, range(5)) + self.dma_wq(2) + self.dma_wq(3)
        self.emit_dma_straight(first[:self.c.nfirst])
        self.setup2()
        if self.c.stamps:
            self.nstamp = 1
            e("v_mov_b32 v15, s96", f"buffer_store_dword v15, off, {srd(SWS)}, s{sSTO}", "v_mov_b32 v15, s98", f"buffer_store_dword v15, off, {srd(SWS)}, s{sSTO} offset:4")
        self.stamp()
        ms = []; start = {}; last = {}
        for i in range(18):
            for tp in range(16):
                f = 16 * i + tp
                start[f] = len(ms)
                for j in range(5 if tp < 8 else 4):
                    ms.append(I(mfma(self.qacc(tp, j), ("a", aA + 4 * (f % NR)), ("a", aB + 20 * (i % 2) + 4 * j), 0 if i == 0 else None),
                                needs=[("ar", f, 0), ("ar", f, 1), ("xr", i, j)]))
                last[f] = len(ms) - 1
        G = Gaps(ms)
        pre = []
        def aread(f, v):
            i, tp = divmod(f, 16)
            t = tp % 8
            off = ((i + 2) % 4) * PITCH + 512 * v + 64 * (t >> 1) + 8 * (t & 1)
            return I(f"ds_read_b64_tr_b16 {R('a', aA + 4*(f % NR) + 2*v, 2)}, v{vWR0 if tp < 8 else vWR1} offset:{off}", id=("ar", f, v))
        def xread(i, j):
            off = XB[(i // 2) % 2] - XB[1] + 5120 * (i % 2) + 1024 * j
            return I(f"ds_read_b128 {R('a', aB + 20*(i % 2) + 4*j, 4)}, v{vXR} offset:{off}", id=("xr", i, j), needs=[("x", i, j)])
        for j in range(5): pre.append(xread(0, j))
        pre.append(I("s_barrier", needs=[("wq", 0, r) for r in range(4)]))
        for i in range(18):
            for tp in range(16):
                for v in range(2):
                    f = 16 * i + tp
                    g = 72 * i - 13 + ((2 * tp + v) * 58) // 32
                    if g < 0: pre.append(aread(f, v)); continue
                    assert g <= start[f] - 8
                    assert f < NR or g >= last[f - NR], (f, g)
                    G.mem[g].append(aread(f, v))
            if i < 17:
                for j in range(5): G.mem[72 * i + 46 + 2 * j].append(xread(i + 1, j))
        sal = []
        for i in range(18):
            g = 72 * i + 56
            G.waitneeds[g] += [("ar", 16 * i + 15, 1)]
            if i < 17: G.waitneeds[g] += [("wq", i + 1, r) for r in range(4)]
            G.sal[g + 1].append(I("s_barrier"))
            if i in (0, 3, 8): self.stamp_gap(G, g + 1)
        seq = []
        for i in range(0, 19):
            lo = max(2, 72 * (i - 1) + 59); hi = min(72 * i + 55, len(ms) - 1)
            ops = []
            if i == 0: ops = [(o, lo) for o in first[self.c.nfirst:]]
            elif i + 3 < 18: ops += [(o, lo) for o in self.dma_wq(i + 3)]
            if i % 2 == 1 and (i + 3) // 2 < 9: ops += [(o, 72 * i + 5) for o in self.dma_x((i + 3) // 2, range(3))]
            if i > 0 and i % 2 == 0 and (i + 2) // 2 < 9: ops = [(o, lo) for o in self.dma_x((i + 2) // 2, range(3, 5))] + ops
            if self.c.wo_touch and 0 <= i - self.c.wo_touch < 9:
                ops += [(([], [], I(f"buffer_load_dword v11, v10, {srd(SWO)}, s{sT3} offen"), [I(f"s_add_u32 s{sT3}, s{sT3}, 1024")]), lo)]
            if i == 15: ops += [(o, lo) for o in self.dma_kv_static("K", 0)]
            if i == 16: ops += [(o, lo) for o in self.dma_kv_static("V", 0) + self.dma_kv_static("K", 1) + self.dma_kv_static("V", 1)]
            if i == 17: ops += [(o, lo) for o in self.dma_kv_static("K", 2)]
            if i == 18: ops += [(o, lo) for o in self.dma_kv_static("V", 2)]
            step = 5 if 0 < i < 18 else (3 if i else 2)
            g = lo - step + 1
            for (p, same, vm, post), l in ops:
                prev = g
                g = max(g + step, l)
                while G.mem[g]: g += 1
                assert g <= hi, (i, g, hi)
                G.mem[g].append(vm)
                for x in p: seq.append((x, max(prev + 1, g - 2), g - 1))
                for x in same: seq.append((x, g - 1, g))
                for x in post: seq.append((x, g + 1, min(g + step - 1 - (step > 2), len(ms) - 1)))
        self.e(*pre)
        pre2 = []
        G.place_waits(self.ws, pre2)
        G.place_salu(seq)
        self.raw(pre2)
        self.raw(G.flat())
        print("phase Q est cycles", G.cost(), file=sys.stderr)
        self.stamp()
        def pack(src0, src1, tmp):
            o = []
            for k, (kind, b) in enumerate((src0, src1)):
                if kind == "a":
                    for r in range(4): o.append(f"v_accvgpr_read_b32 v{12+r}, a{b+r}")
                    b = 12
                o.append(f"v_pk_mul_f32 v[{b}:{b+1}], v[{b}:{b+1}], s[{sC}:{sC+1}]")
                o.append(f"v_pk_mul_f32 v[{b+2}:{b+3}], v[{b+2}:{b+3}], s[{sC}:{sC+1}]")
                o.append(f"v_cvt_pk_bf16_f32 v{tmp+2*k}, v{b}, v{b+1}")
                o.append(f"v_cvt_pk_bf16_f32 v{tmp+2*k+1}, v{b+2}, v{b+3}")
            return o
        e(f"v_add_u32 v9, {SCR}, v{vDMA}")
        for s in range(4):
            e(*pack(self.qacc(2*s, 4), self.qacc(2*s+1, 4), 4))
            e(I(f"ds_write_b128 v9, v[4:7] offset:{s*1024}", id=("qsw", s)))
        e(f"s_cmp_eq_u32 s{sPI}, 1", "s_cbranch_scc1 L_qe1")
        base = len(self.out)
        for pi in range(2):
            if pi == 1: e("L_qe1:")
            for hh in range(2):
                h = hh ^ pi
                for j in range(4):
                    for s in range(4):
                        t0 = self.qacc(8*hh + 2*s, j); t1 = self.qacc(8*hh + 2*s + 1, j)
                        assert t0[0] == "v"
                        e(*pack(t0, t1, t0[1]))
                        for r in range(4): e(f"v_accvgpr_write_b32 a{aQ[h] + (j*4+s)*4 + r}, v{t0[1]+r}")
            if pi == 0: e("s_branch L_qe2")
        e("L_qe2:")
        self.stamp()
        e(I("s_barrier", needs=[("qsw", 3)] + [(k, 0, i) for k in "KV" for i in range(4)]))
        if self.c.stop_after != "A": self.announce_cleared()
        e(f"s_lshl_b32 s3, s{sPI}, 12", "v_subrev_u32 v9, s3, v9")
        for h in range(2):
            for s in range(4):
                e(I(f"ds_read_b128 {R('a', aQ[h] + (16+s)*4, 4)}, v9 offset:{h*4096 + s*1024}", id=("qsr", h, s)))
        e(f"s_mov_b32 s{sOFF}, {3*16384}", f"s_add_u32 s{sM0}, s{sKVW}, {3*PITCH}", f"s_mov_b32 s{sD}, s{sDA}")
        for j in range(5): e(f"v_mov_b32 v{vNM+4*j}, 0xff800000")

    def attn_mfmas(self, h, nwin, first=True, lastw=True):
        ms = []; cstart = {}; cend = {}; pv = {}; wstart = []
        tcount = [0]; sslot = {}
        def chain(n, T, j):
            sl = tcount[0] % NS; tcount[0] += 1
            sslot[(n, T, j)] = sl
            cstart[(n, T, j)] = len(ms)
            for s in range(4):
                ms.append(I(mfma(("v", vS + 4*sl), ("a", aK + 16*T + 4*s), ("a", aQ[h] + (j*4+s)*4), ("v", vNM + 4*j) if s == 0 else None),
                            needs=[("kr", h, n, T, s)]))
            cend[(n, T, j)] = len(ms) - 1
        def pvm(n, dt, j):
            f = 8*n + dt
            pv[(n, dt, j)] = len(ms)
            ms.append(I(mfma(("v", vO + (j*8+dt)*4), ("a", aV + 4*(f % NV)), ("v", vP[n % 2] + 4*j), 0 if (n == 0 and first) else None),
                        needs=[("vr", h, f, 0), ("vr", h, f, 1)]))
        for m in range(nwin):
            wstart.append(len(ms))
            for c in range(8):
                chain(2*m+1, c >> 2, c & 3)
                for j in range(5): pvm(2*m, c, j)
            lst = [(dt, j) for dt in range(8) for j in range(4)]
            cnt = [3, 3, 3, 3, 4, 3, 3, 3, 3, 4]
            for c in range(10):
                if not (lastw and m == nwin - 1): chain(2*m+2, c // 5, c % 5)
                for _ in range(cnt[c]):
                    dt, j = lst.pop(0); pvm(2*m+1, dt, j)
        wstart.append(len(ms))
        return ms, cstart, cend, pv, sslot, wstart

    def o_stores(self, h, vaddr):
        ops = []
        for j in range(4):
            for s in range(4):
                src = R("a", (j*4+s)*4, 4) if h == 0 else R("v", 16 + (j*4+s)*4, 4)
                ops.append(([], [], I(f"buffer_store_dwordx4 {src}, v{vaddr}, {srd(SWS)}, s{90+j} offen offset:{s*1024} {self.c.o_flags}", id=("os", h, j, s)), []))
        return ops

    def kread(self, h, n, T, s):
        return I(f"ds_read_b128 {R('a', aK + 16*T + 4*s, 4)}, v{vKA} offset:{512*T + 64*s}", id=("kr", h, n, T, s))
    def vread(self, h, f, v):
        return I(f"ds_read_b64_tr_b16 {R('a', aV + 4*(f % NV) + 2*v, 2)}, v{vVA} offset:{512*v + 32*(f % 8)}", id=("vr", h, f, v))

    def attn_schedule(self):
        NW = 8
        ms, cstart, cend, pv, sslot, wstart = self.attn_mfmas(0, NW, first=False, lastw=False)
        n = len(ms)
        mem = {}
        def put(g, key):
            while g in mem: g += 1
            mem[g] = key; return g
        rel = {}
        for i, g in enumerate((3, 12, 21, 30)): rel[("dK", i)] = put(g, 1)
        for i, g in enumerate((44, 52, 60, 68)): rel[("dV", i)] = put(g, 1)
        first = {f: pv[(2 + f // 8, f % 8, 0)] - 144 for f in range(-4, 16)}
        lastu = {f: pv[(2 + f // 8, f % 8, 4 if (f // 8) % 2 == 0 else 3)] - 144 for f in range(-4, 16)}
        for f in range(16):
            g = max(first[f - 2], lastu[f - 4] + 1)
            for v in range(2):
                gg = g % 144
                g2 = put(gg, 1)
                rel[("vr", f, v)] = g + (g2 - gg)
                g = rel[("vr", f, v)] + 2
                assert rel[("vr", f, v)] <= first[f] - 7, (f, v, rel[("vr", f, v)], first[f])
        for (dn, T), g0 in (((1, 1), 1), ((2, 0), 42), ((2, 1), 73), ((3, 0), 109)):
            for s in range(4):
                rel[("kr", dn, T, s)] = put(g0 + 6 * s, 1)
        rel["bar"] = 39
        rel[("ka", 0)] = rel[("kr", 1, 1, 3)] + 1
        rel[("ka", 1)] = rel[("kr", 2, 1, 3)] + 1
        rel[("va", 0)] = rel[("vr", 7, 1)]
        rel[("va", 1)] = rel[("vr", 15, 1)]
        assert rel[("vr", 8, 0)] > rel[("va", 0)] and rel[("vr", 0, 0)] + 144 > rel[("va", 1)]
        used = [0] * 144
        for k, g in rel.items():
            if k == "bar": continue
            used[g % 144] += 2 if k[0] in ("dK", "dV") else 1
        used[143] += 2
        tiles = sorted(cend, key=lambda t: cend[t])
        place = {}
        eq = []
        sm = []
        ti = 0
        for g in range(n):
            while ti < len(tiles) and cend[tiles[ti]] + 3 <= g:
                eq += [(tiles[ti], r) for r in range(4)]; ti += 1
            u = used[g % 144]
            rdy = [x for x in sm if x[1] <= g]
            backlog = 3.5 * len(eq) + len(sm)
            budget = 3 if (backlog > self.c.backlog and g % 144 != 143) else 2
            def take_small():
                rdy.sort(); x = rdy.pop(0); sm.remove(x); place[x[2]] = g
            def take_e():
                t, r = eq.pop(0); place[("e", t, r)] = g
                sm.append(((cend[t], 1, r), g + 1, ("a", t, r)))
                if r % 2: sm.append(((cend[t], 0, r), g + 1, ("c", t, r // 2)))
            if u == 0 and eq and len(rdy) < 4:
                take_e(); u += 2
            elif u == 1 and budget == 3 and eq and len(rdy) < 2:
                take_e(); u += 2
            while u < budget and rdy:
                take_small(); u += 1
        def wrel(m):
            d = {}
            for k, g in place.items():
                nn, T, j = k[1]
                if nn in (2*m+1, 2*m+2): d[(k[0], nn - 2*m, T, j, k[2])] = g - 144 * m
            return d
        a, b = wrel(4), wrel(5)
        assert a == b, "VALU schedule not periodic"
        assert len(a) == 180
        rel.update(a)
        self.rel = rel

    def head(self, h):
        e = self.e; rel = self.rel; c = self.c
        e(f"L_head{h}:")
        self.stamp()
        for T in range(2):
            for s in range(4): e(self.kread(h, 0, T, s))
        e(f"v_add_u32 v{vKA}, s{sH}, v{vKA}")
        tS = lambda T, j: vO + (j*2 + T) * 4
        for j in range(5):
            for T in range(2):
                for s in range(4):
                    nd = [("kr", h, 0, T, s)] + ([("qsr", 1, 3)] if (h == 0 and j == 4) else [])
                    e(I(mfma(("v", tS(T, j)), ("a", aK + 16*T + 4*s), ("a", aQ[h] + (j*4+s)*4), 0 if s == 0 else None), needs=nd))
        ms, cstart, cend, pv, sslot, wstart = self.attn_mfmas(h, 16)
        G = Gaps(ms)
        early = []
        lastw = 15
        full, fcs, fce, fpv, _, _ = self.attn_mfmas(h, 16, lastw=False)
        dropped = set()
        for k, st in fcs.items():
            if k[0] == 32: dropped.update(range(st, st + 4))
        amap = []; a = -1
        for g in range(len(full)):
            if g not in dropped: a += 1
            amap.append(a)
        def at(m, g):
            p = 144 * m + g
            if p < 0: return None
            return amap[p]
        seq = []
        for m in range(-1, 16):
            items = []
            for k, g in rel.items():
                if k == "bar": continue
                kind = k[0]
                if kind == "kr":
                    n = 2*m + k[1]
                    if n < 1 or n > 31: continue
                    items.append((g, "mem", self.kread(h, n, k[2], k[3])))
                elif kind == "vr":
                    if m < 0: continue
                    items.append((g, "mem", self.vread(h, 16*m + k[1], k[2])))
                elif kind in ("dK", "dV"):
                    if m < 0 or (h == 1 and m == 15): continue
                    M = 16*h + m + 3; i = k[1]
                    items.append((g, "mem", I(f"buffer_load_dwordx4 v{vDMA}, {srd(SK if kind == 'dK' else SV)}, s{sOFF} offen offset:{i*1024} {c.kv_flags} lds", id=(kind[1], M, i))))
                elif kind == "ka":
                    if m < 0 or (m == 15 and k[1] == 1): continue
                    items.append((g, "val", I(f"v_add_u32 v{vKA}, s{sD if k[1] == 0 else sH}, v{vKA}")))
                elif kind == "va":
                    if m < 0: continue
                    items.append((g, "val", I(f"v_add_u32 v{vVA}, s{sH if k[1] == 0 else sD}, v{vVA}")))
                else:
                    n = 2*m + k[1]
                    if n < 1 or n > 31: continue
                    T, j, r = k[2], k[3], k[4]
                    S = vS + 4 * sslot[(n, T, j)]
                    if kind == "e": x = I(f"v_exp_f32 v{S+r}, v{S+r}")
                    elif kind == "a": x = I(f"v_add_f32 v{vL+j}, v{vL+j}, v{S+r}")
                    else:
                        x = I(f"v_cvt_pk_bf16_f32 v{vP[n % 2] + 4*j + 2*T + r}, v{S+2*r}, v{S+2*r+1}")
                        assert at(m, g) <= pv[(n, 0, j)] - 2, ("late cvt", n, T, j)
                    x.key = (144*m + g, cend[(n, T, j)], {"e": 2, "c": 0, "a": 1}[kind], r)
                    nxt = [t for t in cstart if cstart[t] > cstart[(n, T, j)] and sslot[t] == sslot[(n, T, j)]]
                    if nxt: assert at(m, g) < min(cstart[t] for t in nxt), ("S slot reuse", n, T, j)
                    items.append((g, "val", x))
            items.sort(key=lambda t: t[0])
            for g, where, x in items:
                p = at(m, g)
                if p is None: early.append(x)
                else: getattr(G, where)[p].append(x)
            if m >= 0:
                M = 16*h + m
                g = at(m, rel["bar"])
                G.waitneeds[g] += [("kr", h, 2*m+1, 1, 3)] + [(k, M+1, i) for k in "KV" for i in range(4)]
                G.sal[g + 1].append(I("s_barrier"))
                if h == 1 and m == 15:
                    G.waitneeds[g] += [("V", 33, 3)]
                    if c.stop_after != "A":
                        vt = [9, 10, 11, 12, 13, 14, 15, vKA, vDMA]
                        for t in range(9):
                            if t < 8: G.val[g + 2 + t].append(I(f"v_accvgpr_read_b32 v{vt[t]}, a{240+t}"))
                        vt[8] = vP[0]
                        G.val[at(m, 72)].append(I(f"v_accvgpr_read_b32 v{vt[8]}, a248"))
                        gg = g + 4
                        for p_, same, vm, post in self.dma_wo(0, vt) + self.dma_wo(1, vt):
                            gg += 3 if vm.id[1] == 0 else 2
                            if vm.id[2] == 8: gg = max(gg, at(m, 72) + 2)
                            while G.mem[gg]: gg += 1
                            G.mem[gg].append(vm)
                            for x in p_: seq.append((x, gg - 1, gg - 1))
                            for x in same: seq.append((x, gg - 1, gg))
                    continue
                if h == 1 and m == 0:
                    gg = 0
                    for p_, same, vm, post in self.o_stores(0, 13):
                        gg += 8
                        while G.mem[gg]: gg += 1
                        G.mem[gg].append(vm)
                for i in range(4):
                    g = rel[("dK", i)]
                    seq.append((I(f"s_mov_b32 m0, s{sM0}" if i == 0 else "s_add_u32 m0, m0, 32"), at(m, max(0, g - 4)), at(m, g - 1)))
                for i in range(4):
                    g = rel[("dV", i)]
                    seq.append((I(f"s_add_u32 m0, s{sM0}, {VBASE}" if i == 0 else "s_add_u32 m0, m0, 32"), at(m, g - 4), at(m, g - 1)))
                g = rel[("dV", 3)] + 1
                for t in (f"s_add_u32 s{sOFF}, s{sOFF}, 16384",
                          f"s_add_u32 s{sM0}, s{sM0}, {PITCH}", f"s_sub_u32 s{sT}, s{sM0}, {4*PITCH}",
                          f"s_cmp_ge_u32 s{sM0}, {4*PITCH}", f"s_cselect_b32 s{sM0}, s{sT}, s{sM0}"):
                    seq.append((I(t), at(m, g), at(m, 125)))
                g1 = at(m, rel[("va", 1)]) + 1
                for t in (f"s_and_b32 s{sT}, s{sOFF}, 0xc000",):
                    seq.append((I(t), at(m, 100), at(m, 141)))
                for t in (f"s_cmp_eq_u32 s{sT}, 0x8000", ):
                    seq.append((I(t), at(m, 100), at(m, 141)))
                seq.append((I(f"s_cselect_b32 s{sD}, s{sDB}, s{sDA}"), g1, at(m, 142)))
                if 1 <= m <= 14:
                    seq.append((I(f"s_cmp_lg_u32 s{sOFF}, {(16*h + 18)*16384}"), g1, at(m, 142)))
        e(*[x for x in early if x.k == "ds"])
        assert all(x.k == "ds" for x in early)
        tm = lambda j: vS + j
        tt = lambda j: vS + 8 + j
        for j in range(5):
            b = tS(0, j)
            e(f"v_max3_f32 v{tm(j)}, v{b}, v{b+1}, v{vNM+4*j}", f"v_max3_f32 v{tt(j)}, v{b+2}, v{b+3}, v{b+4}",
              f"v_max3_f32 v{tm(j)}, v{b+5}, v{b+6}, v{tm(j)}", f"v_max3_f32 v{tm(j)}, v{b+7}, v{tt(j)}, v{tm(j)}")
        self.xlane([tm(j) for j in range(5)], [tt(j) for j in range(5)], "v_max_f32")
        for j in range(5):
            for r in range(4): e(f"v_sub_f32 v{vNM+4*j+r}, 0, v{tm(j)}")
        for j in range(5):
            b = tS(0, j)
            for r in range(0, 8, 2): e(f"v_pk_add_f32 v[{b+r}:{b+r+1}], v[{b+r}:{b+r+1}], v[{vNM+4*j}:{vNM+4*j+1}]")
            for r in range(8): e(f"v_exp_f32 v{b+r}, v{b+r}")
        for j in range(5):
            b = tS(0, j)
            for r in range(4): e(f"v_cvt_pk_bf16_f32 v{vP[0]+4*j+r}, v{b+2*r}, v{b+2*r+1}")
            e(f"v_pk_add_f32 v[{b}:{b+1}], v[{b}:{b+1}], v[{b+2}:{b+3}]", f"v_pk_add_f32 v[{b+4}:{b+5}], v[{b+4}:{b+5}], v[{b+6}:{b+7}]",
              f"v_pk_add_f32 v[{b}:{b+1}], v[{b}:{b+1}], v[{b+4}:{b+5}]", f"v_add_f32 v{vL+j}, v{b}, v{b+1}")
        full_o = (h == 1 and c.stop_after != "A")
        if h == 1:
            e("v_lshlrev_b32 v13, 4, v0")
            for j in range(4): e(f"s_add_u32 s{90+j}, s{sOB}, {j*4096}")
        if full_o:
            self.dbg_addr(10)
            dload = f"buffer_load_dword v11, v10, {srd(SDBG)}, 0 offen sc1"
            e(I(dload, id=("dbgp",)))
        self.stamp()
        for g in range(len(ms)):
            G.val[g].sort(key=lambda x: x.key or (0, 0, 0, 0))
        if full_o:
            test = ["v_readlane_b32 s3, v11, 0", f"v_readlane_b32 s{sT2}, v11, 1", "s_and_b32 s3, s3, 0xffff",
                    f"s_lshr_b32 s{sT2}, s{sT2}, 16", f"s_min_u32 s3, s3, s{sT2}", "s_cmp_ge_u32 s3, 4"]
            g = wstart[15] + rel[("dK", 0)]
            G.val[g] += [I(test[0], needs=[("dbgp",)]), I(test[1])]
            G.val[g + 9] += [I(x) for x in test[2:5]]
            G.val[g + 18] += [I(test[5]), I("s_cbranch_scc0 L_sp_dbg"), I("L_sb_dbg:")]
            self.spin("dbg", [dload], test)
            G.val[wstart[15] + rel["bar"] + 1] += self.publish(1)
        pre = []
        G.place_waits(self.ws, pre)
        G.place_salu(seq)
        self.raw(pre)
        win = [[x.t for x in G.flat(wstart[m], wstart[m+1])] for m in range(16)]
        import re
        for m in range(1, 14):
            assert len(win[m]) == len(win[14]), f"window {m} differs"
            for x, y in zip(win[m], win[14]):
                if x == y: continue
                nx, ny = re.search(r"vmcnt\((\d+)\)", x), re.search(r"vmcnt\((\d+)\)", y)
                assert nx and ny and int(nx.group(1)) >= int(ny.group(1)) and re.sub(r"vmcnt\(\d+\)", "", x) == re.sub(r"vmcnt\(\d+\)", "", y), (m, x, y)
        print(f"head {h}: window est cycles", G.cost(wstart[1], wstart[2]), "instrs", len(win[1]), file=sys.stderr)
        self.raw(G.flat(0, wstart[1]))
        self.raw([I(".p2align 6"), I(f"L_loop{h}:")])
        body = G.flat(wstart[14], wstart[15])
        assert body[-1].k == "m", body[-3:]
        self.raw(body)
        self.raw([I(f"s_cbranch_scc1 L_loop{h}")])
        self.checks.append((f"loop{h}", body + body))
        self.raw(fix_hazards(G.flat(wstart[15], wstart[16])))
        self.stamp()
        self.head_epilogue(h)

    def xlane(self, xs, ts, op):
        e = self.e
        for sw in ("v_permlane32_swap_b32", "v_permlane16_swap_b32"):
            for x, t in zip(xs, ts): e(f"v_mov_b32 v{t}, v{x}")
            if len(xs) < 3: e("s_nop 1")
            for k, (x, t) in enumerate(zip(xs, ts)): e(f"{sw} v{t}, v{x}")
            for x, t in zip(xs, ts): e(f"{op} v{x}, v{x}, v{t}")

    def head_epilogue(self, h):
        e = self.e
        O = lambda j, dt: vO + (j*8 + dt) * 4
        self.xlane([vL + j for j in range(5)], [vS + j for j in range(5)], "v_add_f32")
        e(f"v_add_f32 v10, v{vL}, v{vL+1}", f"v_add_f32 v11, v{vL+2}, v{vL+3}",
          f"v_add_f32 v10, v10, v{vL+4}", "v_add_f32 v10, v10, v11",
          f"v_cmp_nge_f32 vcc, s{sTHR}, v10", "s_cmp_lg_u64 vcc, 0", f"s_cselect_b32 s3, 1, 0",
          f"v_mov_b32 v12, s3", f"s_lshl_b32 s3, s{sW}, 2", f"s_add_u32 s3, s3, {MISC + 2048}", "v_mov_b32 v13, s3",
          I("ds_write_b32 v13, v12", id=("fw", h)))
        e(f"v_add_u32 v9, {SCR}, v{vDMA}")
        e(f"v_xor_b32 v10, 4096, v{vDMA}", f"v_add_u32 v10, {SCR}, v10")
        e(f"v_lshrrev_b32 v11, 1, v{vDMA}", "v_and_b32 v11, 0x1f8, v11", f"s_lshl_b32 s3, s{sW}, 9", f"s_add_u32 s3, s3, {MISC}",
          "v_add_u32 v11, s3, v11", f"v_mov_b32 v12, v{vL+4}", f"v_mov_b32 v13, v{vNM+16}",
          I("ds_write_b64 v11, v[12:13]", id=("lw", h)), "v_xor_b32 v11, 512, v11")
        e(f"s_cmp_eq_u32 s{sPI}, 1", f"s_cbranch_scc1 L_he1_{h}")
        st = (dict((k, list(v)) for k, v in self.ws.q.items()), dict(self.ws.done), dict(self.ws.pos))
        for pi in range(2):
            if pi == 1:
                e(f"L_he1_{h}:")
                self.ws.q, self.ws.done, self.ws.pos = st
            for k in range(4):
                e(I(f"ds_write_b128 v10, {R('v', O(4, 4*(1-pi) + k), 4)} offset:{k*1024}", id=("ow", h, k)))
            if pi == 1:
                e("s_nop 1")
                for r in range(16): e(f"v_mov_b32 v{O(4, 0) + r}, v{O(4, 4) + r}")
            if pi == 0: e("s_branch L_he2_%d" % h)
        e(f"L_he2_{h}:")
        for j in range(4): e(f"v_rcp_f32 v{vL+j}, v{vL+j}")
        e(I("s_barrier", needs=[("ow", h, 3)]))
        e(f"v_mov_b32 v14, {MISC + 2048}")
        e(I(f"ds_read_b128 v[{vS}:{vS+3}], v14", id=("fr", h)))
        e(I(f"ds_read_b64 v[14:15], v11", id=("lr", h)))
        for k in range(4):
            e(I(f"ds_read_b128 {R('v', O(4, 4 + k), 4)}, v9 offset:{k*1024}", id=("or", h, k)))
        e(I(f"v_or3_b32 v{vS}, v{vS}, v{vS+1}, v{vS+2}", needs=[("fr", h)]), f"v_or_b32 v{vS}, v{vS}, v{vS+3}", "s_nop 0",
          f"v_readfirstlane_b32 s3, v{vS}", f"s_andn2_b32 s3, s3, s{sREDO}", f"s_cbranch_scc1 L_redo{h}",
          f"s_mov_b32 s{sREDO}, 0")
        e(I("v_min_f32 v11, v13, v15", needs=[("lr", h)]), "v_sub_f32 v13, v11, v13", "v_sub_f32 v15, v11, v15",
          "v_exp_f32 v13, v13", "v_exp_f32 v15, v15", "s_nop 0", "v_mul_f32 v12, v12, v13", "v_fmac_f32 v12, v14, v15",
          "v_rcp_f32 v12, v12", "s_nop 0", "v_mul_f32 v14, v12, v15", "v_mul_f32 v12, v12, v13")
        b0, b1 = O(4, 0), O(4, 4)
        for r in range(0, 16, 2):
            e(f"v_pk_mul_f32 v[{b0+r}:{b0+r+1}], v[{b0+r}:{b0+r+1}], v[12:13] op_sel_hi:[1,0]")
        for r in range(0, 16, 2):
            e(I(f"v_pk_fma_f32 v[{b0+r}:{b0+r+1}], v[{b1+r}:{b1+r+1}], v[14:15], v[{b0+r}:{b0+r+1}] op_sel_hi:[1,0,1]", needs=[("or", h, r // 4)]))
        for r in range(8): e(f"v_cvt_pk_bf16_f32 v{b0+r}, v{b0+2*r}, v{b0+2*r+1}")
        e(f"v_and_b32 v13, 0x3ff, v{vDMA}", f"s_lshl_b32 s3, s{sPI}, 11", f"s_add_u32 s3, s3, s{sOS}")
        if h: e(f"s_add_u32 s3, s3, 73728")
        for k in range(2):
            e(I(f"ds_write_b128 v9, v[{b0+4*k}:{b0+4*k+3}] offset:{k*1024}", id=("pw", h, k)))
            e(I(f"buffer_store_dwordx4 v[{b0+4*k}:{b0+4*k+3}], v13, {srd(SWS)}, s3 offen offset:{k*1024} sc1", id=("os", h, 4, k)))
        for j in range(4):
            e(f"s_add_u32 s3, s{sOB}, {h*73728 + j*4096}")
            for s in range(4):
                b = O(j, 2*s)
                p = (vL + j) & ~1
                sel = "op_sel:[0,1] op_sel_hi:[1,1]" if (vL + j) & 1 else "op_sel_hi:[1,0]"
                for r in range(0, 8, 2):
                    e(f"v_pk_mul_f32 v[{b+r}:{b+r+1}], v[{b+r}:{b+r+1}], v[{p}:{p+1}] {sel}")
                d = 16 + (j*4 + s) * 4
                for r in range(4): e(f"v_cvt_pk_bf16_f32 v{d+r}, v{b+2*r}, v{b+2*r+1}")
                if self.c.stop_after == "A" and h == 1:
                    e(I(f"buffer_store_dwordx4 v[{d}:{d+3}], v13, {srd(SWS)}, s3 offen offset:{s*1024} sc1", id=("os", h, j, s)))
                if h == 0:
                    for r in range(4): e(f"v_accvgpr_write_b32 a{(j*4+s)*4 + r}, v{d+r}")
        e(I("s_barrier", needs=[("pw", h, 1)]))
        e(f"s_lshl_b32 s3, s{sPI}, 12", "v_subrev_u32 v9, s3, v9")
        for s in range(4):
            dst = R("a", 64 + 4*s, 4) if h == 0 else R("v", 80 + 4*s, 4)
            e(I(f"ds_read_b128 {dst}, v9 offset:{(s >> 1)*4096 + (s & 1)*1024}", id=("pr", h, s)))
        if h == 0:
            e("s_nop 1")
            for j in range(5): e(f"v_mov_b32 v{vNM+4*j}, 0xff800000")

    def redo(self, h):
        e = self.e
        save = self.ws; self.ws = WaitState()
        e(f"L_redo{h}:", "s_waitcnt vmcnt(0) lgkmcnt(0)", "s_barrier", f"s_mov_b32 s{sREDO}, 1")
        self.kv_addr_init()
        for j in range(5): e(f"v_mov_b32 v{vNM+4*j}, 0xff800000")
        e(f"s_mov_b32 s{sOFF}, {16*h*16384}", f"s_mov_b32 s{sD}, s{sH}", f"L_rl{h}:")
        for i in range(4):
            e(f"s_add_u32 m0, s{sKVW}, {32*i}", "s_nop 0",
              f"buffer_load_dwordx4 v{vDMA}, {srd(SK)}, s{sOFF} offen offset:{i*1024} lds")
        e("s_waitcnt vmcnt(0)", "s_barrier")
        for half in range(2):
            for T in range(2):
                for s in range(4): e(self.kread(h, 0, T, s))
            e("s_waitcnt lgkmcnt(0)", f"v_add_u32 v{vKA}, s{sD}, v{vKA}", f"s_sub_u32 s{sD}, 0, s{sD}")
            for j in range(5):
                for T in range(2):
                    for s in range(4):
                        e(mfma(("v", vO + (j*2+T)*4), ("a", aK + 16*T + 4*s), ("a", aQ[h] + (j*4+s)*4), 0 if s == 0 else None))
            e("s_nop 7")
            for j in range(5):
                b = vO + j*8
                for r in range(0, 8, 2): e(f"v_max3_f32 v{vNM+4*j}, v{b+r}, v{b+r+1}, v{vNM+4*j}")
        e("s_barrier", f"s_add_u32 s{sOFF}, s{sOFF}, 16384", f"s_cmp_lg_u32 s{sOFF}, {16*(h+1)*16384}", f"s_cbranch_scc1 L_rl{h}")
        for M in range(16*h, 16*h + 3):
            self.emit_dma_straight(self.dma_kv_static("K", M) + self.dma_kv_static("V", M))
        e(f"s_mov_b32 s{sOFF}, {(16*h+3)*16384}", f"s_add_u32 s{sM0}, s{sKVW}, {3*PITCH}", f"s_mov_b32 s{sD}, s{sDA}")
        e("s_waitcnt vmcnt(0)", "s_barrier", f"s_branch L_head{h}")
        self.ws = save

    def wo_hh(self, i):
        return [(0, 0), (0, 1), (1, 0), (2, 0), (3, 0), (1, 1), (2, 1), (3, 1)][i]
    def dma_wo(self, i, vbase):
        p, par = self.wo_hh(i)
        ops = []
        for t in range(9):
            pre = [I(f"s_add_u32 m0, s{sOM0}, {(i % 4)*OST + t*1024}")] if t % 4 == 0 else []
            same = [I(f"s_add_u32 s{sT3}, s{sWR+p}, {par*128*1152}")] if t == 0 else []
            ops.append((pre, same, I(f"buffer_load_dwordx4 v{vbase[t]}, {srd(SWO)}, s{sT3} offen offset:{(t % 4)*1024} {self.c.wo_flags} lds", id=("wo", i, t)), []))
        return ops
    def oacc(self, j, i):
        if j < 4: return ("v", 96 + (j*9 + i) * 4)
        return ("v", 240 + 4*i) if i < 4 else ("a", 160)

    def phase_o(self):
        e = self.e; c = self.c
        vLN, vA1, vPL = 1, 2, 3
        vA0 = 12
        vA0 = [13, 14, 0, 12]
        vWO = 4
        vWO, vPL = 3, 15
        aA, NR = 164, 8
        e(f"v_lshrrev_b32 v12, 2, v0", "v_mul_u32_u24 v12, 288, v12", "v_and_b32 v14, 3, v0", "v_lshl_add_u32 v12, v14, 3, v12",
          f"v_lshlrev_b32 v{vLN}, 4, v0",
          f"s_lshl_b32 s3, s{sPI}, 7", "s_xor_b32 s3, s3, 128", f"v_add_u32 v{vA1}, s3, v12", f"s_mul_i32 s{sT}, s{sPI}, 160")
        for i in range(4):
            e(f"s_xor_b32 s3, s{sKQ}, {i}", "s_lshl_b32 s3, s3, 5", f"s_add_u32 s3, s3, s{sT}", f"v_add_u32 v{vA0[i]}, s3, v12")
        for t in range(9): e(f"v_accvgpr_read_b32 v{vWO+t}, a{240+t}")
        for j in range(4): e(f"s_add_u32 s{90+j}, s{sOB}, {73728 + j*4096}")
        Bbuf = lambda i: ("v", 16) if i == 1 else (("a", 0) if (i == 0 or i % 2 == 1) else ("a", 80))
        ms = []; start = {}; last = {}
        for i in range(8):
            for s in range(4):
                for n in range(9):
                    f = 36*i + 9*s + n
                    start[f] = len(ms)
                    for j in range(5 if n <= 4 else 4):
                        k, b = Bbuf(i)
                        nd = [("oa", f, 0), ("oa", f, 1)]
                        if i >= 2: nd.append(("ob", i, s, j))
                        elif j == 4: nd.append(("pr", i, s))
                        ms.append(I(mfma(self.oacc(j, n), ("a", aA + 4*(f % NR)), (k, b + (j*4+s)*4), 0 if (i == 0 and s == 0) else None), needs=nd))
                    last[f] = len(ms) - 1
        G = Gaps(ms)
        def aread(f, v):
            i, r = divmod(f, 36); s, n = divmod(r, 9)
            va, off = (vA0[n], 0) if n < 4 else (vA1, 32*(n-4))
            return I(f"ds_read_b64_tr_b16 {R('a', aA + 4*(f % NR) + 2*v, 2)}, v{va} offset:{s*9216 + v*4608 + off}", id=("oa", f, v))
        pre = [I("s_barrier", needs=[("wo", 0, 8), ("pr", 1, 3)])]
        for i in range(8):
            for r in range(36):
                for v in range(2):
                    f = 36*i + r
                    g = 164*i - 13 + ((2*r + v) * 152) // 72
                    if g < 0: pre.append(aread(f, v)); continue
                    assert g <= start[f] - 8, (f, g, start[f])
                    assert f < NR or g >= last[f - NR], (f, g)
                    G.mem[g].append(aread(f, v))
        seq = []
        for i in range(8):
            g0 = 164 * i
            if i < 7:
                d = OST if i % 4 != 3 else -3 * OST
                for k, va in enumerate(vA0 + [vA1]):
                    G.val[g0 + 140 + k].append(I(f"v_add_u32 v{va}, {d & 0xffffffff:#x}, v{va}"))
                G.waitneeds[g0 + 148] += [("oa", 36*i + 35, 1), ("wo", i + 1, 8)]
                if i == 1: G.waitneeds[g0 + 148] += [("os", 1, 3, 3)]
                G.sal[g0 + 149].append(I("s_barrier"))
                self.stamp_gap(G, g0 + 149)
                if i == 1: G.val[g0 + 150] += self.publish(2)
            ops = []
            lo = g0 + 2
            vW = [vWO + t for t in range(9)]
            wo = self.dma_wo(i + 3, vW) if i + 3 < 8 else []
            if i == 0: wo = self.dma_wo(2, vW) + wo
            ob = self.o_stores(1, vLN) if i == 0 else []
            if 1 <= i < 7:
                p, par = self.wo_hh(i + 1)
                k, b = Bbuf(i + 1)
                for s in range(4):
                    for j in range(5):
                        same = [I(f"s_add_u32 s{sT2}, s{sT}, {j*4096}")] if j < 4 else [I(f"s_add_u32 s{sT2}, s3, 0")]
                        ob.append(([], same, I(f"buffer_load_dwordx4 {R(k, b + (j*4+s)*4, 4)}, v{vLN}, {srd(SWS)}, s{sT2} offen offset:{s*1024} sc1", id=("ob", i + 1, s, j)), []))
                need = 1 + par
                load = f"buffer_load_dword v{vPL}, off, {srd(SWS)}, s{sFP+p-1} sc1"
                test = [f"v_readfirstlane_b32 s{sT2}, v{vPL}", f"s_cmp_ge_u32 s{sT2}, {need}"]
                gp = g0 - 164 + 90
                while G.mem[gp]: gp += 1
                G.mem[gp].append(I(load, id=("poll", i)))
                G.val[g0] += [I(test[0], needs=[("poll", i)]), I(test[1]), I(f"s_cbranch_scc0 L_sp_o{i}"), I(f"L_sb_o{i}:"),
                              I(f"s_add_u32 s{sT}, s{sOB}, s{sOP+p-1}"), I(f"s_add_u32 s3, s{sOS}, s{sOP+p-1}")]
                if par: G.val[g0] += [I(f"s_add_u32 s{sT}, s{sT}, 73728"), I(f"s_add_u32 s3, s3, 73728")]
                self.spin(f"o{i}", [load], test)
            tim = [(g0 + 3 + k * 7, o) for k, o in enumerate(ob)] + [(g0 + 6 + k * (14 if i else 7), o) for k, o in enumerate(wo)]
            tim.sort(key=lambda t: t[0])
            g = g0
            for t, (p_, same, vm, post) in tim:
                g = max(g + 2, t)
                while G.mem[g]: g += 1
                assert g < g0 + 147
                G.mem[g].append(vm)
                for x in p_: seq.append((x, g - 1, g - 1))
                for x in same: seq.append((x, g - 1, g))
        self.e(*pre)
        pre2 = []
        G.place_waits(self.ws, pre2)
        G.place_salu(seq)
        self.raw(pre2)
        self.raw(G.flat())
        print("phase O est cycles", G.cost(), file=sys.stderr)
        self.stamp()
        def pk(dst, t):
            return [f"v_cvt_pk_bf16_f32 v{dst}, v{t}, v{t+1}", f"v_cvt_pk_bf16_f32 v{dst+1}, v{t+2}, v{t+3}"]
        e(f"s_mul_i32 s{sT}, s{sKQ}, {4*5120}", f"s_add_u32 s{sT}, s{sT}, s{sPB}")
        for j in range(1, 4):
            e(f"s_xor_b32 s3, s{sKQ}, {j}", f"s_mul_i32 s3, s3, {16*5120}", f"s_add_u32 s3, s3, s{sT}")
            tl = [self.oacc(4, j)[1]] + [self.oacc(j, n)[1] for n in range(9)]
            for k in range(5):
                d = 16 + ((j-1)*5 + k) * 4
                e(*pk(d, tl[2*k]), *pk(d + 2, tl[2*k+1]))
                if k == 4: e("s_add_u32 s3, s3, 4096")
                e(I(f"buffer_store_dwordx4 v[{d}:{d+3}], v{vLN}, {srd(SWS)}, s3 offen offset:{(k % 4)*1024} sc1", id=("ps", j, k)))
        for r in range(4): e(f"v_accvgpr_read_b32 v{76+r}, a{160+r}")
        e(f"v_lshrrev_b32 v2, 1, v{vLN}")
        e(*pk(80, 76))
        e(f"s_lshr_b32 s3, s{sG}, 3", f"s_lshl_b32 s{sT2}, s{sBR}, 5", f"s_add_u32 s3, s3, s{sT2}", "s_lshl_b32 s3, s3, 13",
          f"s_lshl_b32 s{sT2}, s{sW}, 9", f"s_add_u32 s3, s3, s{sT2}", f"s_add_u32 s{sT3}, s3, {WS_SH}",
          f"s_lshl_b32 s3, s{sKQ}, 11", f"s_add_u32 s3, s3, s{sT3}")
        e(I(f"buffer_store_dwordx2 v[80:81], v2, {srd(SWS)}, s3 offen sc1", id=("ps", 4, 0)))
        e(f"v_lshrrev_b32 v3, 4, v{vLN}", "v_lshrrev_b32 v4, 4, v3", "v_bfe_u32 v5, v3, 2, 2", "v_cmp_eq_u32 vcc, v4, v5",
          "v_and_b32 v6, 1, v3", "v_lshlrev_b32 v6, 4, v6", "v_mov_b32 v7, 0x3f80", "v_lshlrev_b32 v6, v6, v7",
          "v_cndmask_b32 v6, 0, v6, vcc", "v_and_b32 v7, 2, v3", "v_cmp_eq_u32 vcc, 0, v7",
          "v_mov_b32 v84, 0", "v_mov_b32 v85, 0", "v_cndmask_b32 v86, 0, v6, vcc", "v_sub_u32 v87, v6, v86",
          "v_mov_b32 v88, 0", "v_mov_b32 v89, 0")
        e("v_and_b32 v5, 15, v3", "v_mul_u32_u24 v5, 2304, v5", "v_lshl_add_u32 v5, v4, 3, v5")
        e(f"v_mov_b32 v8, s{sFQ}", f"v_writelane_b32 v8, s{sFQ+1}, 1", f"v_writelane_b32 v8, s{sFQ+2}, 2")
        e(I("s_barrier", needs=[("ps", 4, 0)]))
        self.raw(self.publish(3))
        self.stamp()
        load = f"buffer_load_dword v9, v8, {srd(SWS)}, 0 offen sc1"
        test = ["v_cmp_gt_u32 vcc, 3, v9", "s_cmp_eq_u64 vcc, 0"]
        e(load, "s_waitcnt vmcnt(0)", *test, "s_cbranch_scc0 L_sp_fin", "L_sb_fin:")
        self.spin("fin", [load], test)
        self.stamp()
        e(f"s_mul_i32 s{sT}, s{sKQ}, {16*5120}", f"s_add_u32 s{sT}, s{sT}, s{sPB}")
        for j in range(1, 4):
            e(f"s_xor_b32 s{sT2}, s{sKQ}, {j}", f"s_mul_i32 s3, s{sT2}, {4*5120}", f"s_add_u32 s3, s3, s{sT}")
            for k in range(5):
                d = 16 + ((j-1)*5 + k) * 4
                if k == 4: e("s_add_u32 s3, s3, 4096")
                e(I(f"buffer_load_dwordx4 v[{d}:{d+3}], v{vLN}, {srd(SWS)}, s3 offen offset:{(k % 4)*1024} sc1", id=("pl", j, k)))
            e(f"s_lshl_b32 s3, s{sT2}, 11", f"s_add_u32 s3, s3, s{sT3}")
            e(I(f"buffer_load_dwordx2 v[{132+4*j}:{133+4*j}], v2, {srd(SWS)}, s3 offen sc1", id=("pl", j, 5)))
            e(f"v_mov_b32 v{134+4*j}, 0", f"v_mov_b32 v{135+4*j}, 0")
        for j in range(1, 4):
            tl = [self.oacc(4, 0)] + [self.oacc(0, (n ^ j) if n < 4 else n) for n in range(9)]
            for k in range(5):
                d = 16 + ((j-1)*5 + k) * 4
                e(I(mfma(tl[2*k], ("v", 86), ("v", d)), needs=[("pl", j, k)]), mfma(tl[2*k+1], ("v", 84), ("v", d)))
            e(I(mfma(("v", 76), ("v", 86), ("v", 132 + 4*j)), needs=[("pl", j, 5)]))
        e(f"s_mul_i32 s{sT}, s{sBR}, 1152", f"s_mul_i32 s3, s{sHP}, 288", f"s_add_u32 s{sT}, s{sT}, s3",
          f"s_mul_i32 s3, s{sB}, {288*2304}", f"s_add_u32 s{sT}, s{sT}, s3",
          f"s_lshl_b32 s3, s{sROW+4}, 1", f"s_add_u32 s{sT3}, s{sT}, s3",
          f"s_lshl_b32 s3, s{sROW}, 1", f"s_add_u32 s{sT}, s{sT}, s3", f"s_mul_i32 s{sD}, s{sPI}, 160")
        t = self.oacc(4, 0)[1]
        e(*pk(t, t), f"s_lshl_b32 s3, s{sKQ}, 5", f"s_add_u32 s3, s3, s{sD}", f"s_add_u32 s3, s3, s{sT3}",
          f"buffer_store_dwordx2 v[{t}:{t+1}], v5, {srd(SOUT)}, s3 offen")
        for n in range(9):
            t = self.oacc(0, n)[1]
            e(*pk(t, t))
            if n < 4:
                e(f"s_xor_b32 s3, s{sKQ}, {n}", "s_lshl_b32 s3, s3, 5", f"s_add_u32 s3, s3, s{sD}", f"s_add_u32 s3, s3, s{sT}")
                off = 0
            else:
                if n == 4: e(f"s_lshl_b32 s3, s{sPI}, 7", "s_xor_b32 s3, s3, 128", f"s_add_u32 s3, s3, s{sT}")
                off = 32 * (n - 4)
            e(f"buffer_store_dwordx2 v[{t}:{t+1}], v5, {srd(SOUT)}, s3 offen offset:{off}")
        e(f"s_cmp_eq_u32 s{sPI}, 1", "s_cbranch_scc1 L_fin", *pk(76, 76), f"v_cmp_eq_u32 vcc, s{sKQ}, v4",
          "s_and_saveexec_b64 s[90:91], vcc", f"buffer_store_dwordx2 v[76:77], v5, {srd(SOUT)}, s{sT3} offen offset:128",
          "s_mov_b64 exec, s[90:91]", "L_fin:")

    def build(self):
        self.setup()
        self.phase_q()
        self.attn_schedule()
        self.head(0)
        self.head(1)
        self.stamp()
        if self.c.stop_after != "A":
            self.phase_o()
        self.e("s_waitcnt vmcnt(0) lgkmcnt(0)")
        self.stamp()
        if self.c.amp is not None:
            print("n stamps", self.nstamp, file=sys.stderr)
            if self.c.amp[0] < 0: self.e("s_mov_b32 s96, s98")
            self.e(f"s_and_b32 s3, s{sG}, {self.c.amp[1]}", f"s_cmp_lg_u32 s3, {self.c.amp[2]}", "s_cbranch_scc1 L_end",
                   "s_sub_u32 s96, s96, s98", "s_mul_i32 s96, s96, 4", "s_add_u32 s96, s96, 20000", "L_amp:", "s_memrealtime s[100:101]", "s_waitcnt lgkmcnt(0)",
                   "s_sub_u32 s100, s100, s98", "s_cmp_lt_u32 s100, s96", "s_cbranch_scc1 L_amp")
        self.e("s_endpgm")
        self.raw(self.tailcode)
        self.redo(0)
        self.redo(1)
        self.e("L_end:")
        probs = check_hazards(self.out, "main")
        for nm, seq in self.checks: probs += check_hazards(seq, nm)
        for p in probs: print(p, file=sys.stderr)
        assert not probs
        hdr = open("cdna_kernels/" + NAME[:-7] + ".s.ref").read().split("; Override launch")[0]
        txt = hdr + f"; @launch grid=(256,1,1) block=(256,1,1) lds={LDS_BYTES}\n"
        txt += f""".amdgcn_target "amdgcn-amd-amdhsa--gfx950"
.text
.globl {NAME}
.p2align 8
.type {NAME},@function
{NAME}:
"""
        for x in self.out:
            if self.c.no_vmwait and "vmcnt(12)" in x.t: x = I(x.t.replace("vmcnt(12)", "vmcnt(40)"))
            if self.c.no_dma and x.k == "vm" and f"s{sOFF} offen" in x.t: continue
            txt += (x.t if x.k == "l" else "    " + " ".join(x.t.split())) + "\n"
        txt += f"""    s_endpgm
.section .rodata,"a"
.p2align 6
.amdhsa_kernel {NAME}
  .amdhsa_next_free_vgpr 512
  .amdhsa_next_free_sgpr 102
  .amdhsa_accum_offset 256
  .amdhsa_group_segment_fixed_size 0
  .amdhsa_kernarg_size 104
  .amdhsa_user_sgpr_count 2
  .amdhsa_user_sgpr_kernarg_segment_ptr 1
  .amdhsa_system_sgpr_workgroup_id_x 1
.end_amdhsa_kernel
"""
        return txt

def make(**kw):
    c = Cfg()
    for k, v in kw.items():
        assert hasattr(c, k), k
        setattr(c, k, v)
    return Gen(c).build()

if __name__ == "__main__":
    kw = {}
    out = sys.argv[1]
    for a in sys.argv[2:]:
        k, v = a.split("=", 1)
        try: v = eval(v)
        except Exception: pass
        kw[k] = v
    open(out, "w").write(make(**kw))
```

```python
import re

class I:
    __slots__ = ("t", "k", "id", "needs", "key")
    def __init__(self, t, k=None, id=None, needs=None, key=None):
        self.t = t
        self.k = k or kind_of(t)
        self.id = id
        self.needs = list(needs) if needs else []
        self.key = key
    def __repr__(self):
        return self.t

TRANS = ("v_exp_f32", "v_log_f32", "v_rcp_f32", "v_rsq_f32", "v_sqrt_f32")
def kind_of(t):
    op = t.split()[0]
    if op.endswith(":"): return "l"
    if op.startswith("."): return "x"
    if op.startswith(";"): return "x"
    if op.startswith("v_mfma"): return "m"
    if op in TRANS: return "e"
    if op.startswith("v_"): return "v"
    if op.startswith("ds_"): return "ds"
    if op.startswith("buffer_") or op.startswith("global_"): return "vm"
    if op == "s_waitcnt": return "w"
    if op == "s_barrier": return "b"
    if op.startswith("s_cbranch") or op == "s_branch": return "br"
    if op.startswith("s_"): return "s"
    raise ValueError(t)

def R(k, a, n=1):
    return f"{k}{a}" if n == 1 else f"{k}[{a}:{a+n-1}]"

def mfma(d, a, b, c=None):
    cs = R(d[0], d[1], 4) if c is None else ("0" if c == 0 else R(c[0], c[1], 4))
    return f"v_mfma_f32_16x16x32_bf16 {R(d[0], d[1], 4)}, {R(a[0], a[1], 4)}, {R(b[0], b[1], 4)}, {cs}"

class WaitState:
    def __init__(self):
        self.q = {"ds": [], "vm": []}
        self.done = {"ds": 0, "vm": 0}
        self.pos = {}
    def issue(self, ins):
        q = self.q[ins.k]
        q.append(ins.id)
        if ins.id is not None:
            self.pos[ins.id] = (ins.k, len(q))
    def need(self, ids):
        want = {}
        for i in ids:
            if i not in self.pos:
                raise KeyError(f"need of un-issued op {i}")
            k, p = self.pos[i]
            if p > self.done[k]:
                want[k] = max(want.get(k, 0), p)
        if not want: return None
        parts = []
        for k, nm, mx in (("vm", "vmcnt", 63), ("ds", "lgkmcnt", 15)):
            if k in want:
                n = min(len(self.q[k]) - want[k], mx)
                self.done[k] = len(self.q[k]) - n
                parts.append(f"{nm}({n})")
        return "s_waitcnt " + " ".join(parts)
    def explicit(self, text):
        for k, nm in (("vm", "vmcnt"), ("ds", "lgkmcnt")):
            m = re.search(nm + r"\((\d+)\)", text)
            if m:
                self.done[k] = max(self.done[k], len(self.q[k]) - int(m.group(1)))

def linear_waits(ins, ws):
    out = []
    for x in ins:
        if x.needs:
            w = ws.need(x.needs)
            if w: out.append(I(w))
        if x.k == "w": ws.explicit(x.t)
        if x.k in ("ds", "vm"): ws.issue(x)
        out.append(x)
    return out

class Gaps:
    def __init__(self, ms):
        self.ms = ms
        n = len(ms)
        self.sal = [[] for _ in range(n)]
        self.mem = [[] for _ in range(n)]
        self.val = [[] for _ in range(n)]
        self.waitneeds = [[] for _ in range(n)]
    def place_waits(self, ws, pre):
        n = len(self.ms)
        w = ws.need(self.ms[0].needs)
        if w: pre.append(I(w))
        for g in range(n):
            needs = list(self.waitneeds[g])
            for x in self.mem[g]: needs += x.needs
            for x in self.val[g]: needs += x.needs
            if g + 1 < n: needs += self.ms[g + 1].needs
            w = ws.need(needs)
            if w: self.sal[g].insert(0, I(w))
            for x in self.mem[g]: ws.issue(x)
    def unify_waits(self, starts, n):
        for r in range(n):
            cnt = {}
            for a in starts:
                for x in self.sal[a + r]:
                    if x.k == "w":
                        for nm, v in re.findall(r"(vmcnt|lgkmcnt)\((\d+)\)", x.t): cnt[nm] = min(cnt.get(nm, 99), int(v))
            if not cnt: continue
            t = "s_waitcnt " + " ".join(f"{nm}({cnt[nm]})" for nm in ("vmcnt", "lgkmcnt") if nm in cnt)
            for a in starts:
                self.sal[a + r] = [I(t)] + [x for x in self.sal[a + r] if x.k != "w"]
    def place_salu(self, seq):
        last = -1
        for x, lo, hi in seq:
            g0 = max(lo, last)
            g = g0
            while g <= hi and self.sal[g]: g += 1
            if g > hi:
                g = g0
                assert g <= hi, (x, lo, hi, last)
            self.sal[g].append(x)
            last = g
    def flat(self, a=0, b=None):
        out = []
        for g in range(a, len(self.ms) if b is None else b):
            out.append(self.ms[g])
            out += self.sal[g] + self.mem[g] + self.val[g]
        return out
    def cost(self, a=0, b=None):
        tot = 0
        for g in range(a, len(self.ms) if b is None else b):
            c = 8 + 4 * max(0, len(self.sal[g]) - 1)
            for x in self.mem[g]: c += 8 if x.k == "vm" else 4
            for x in self.val[g]: c += 8 if x.k == "e" else 4
            tot += max(16, c)
        return tot

_reg = re.compile(r"\b([vas])(?:(\d+)|\[(\d+):(\d+)\])")
def regs(tok):
    out = set()
    for m in _reg.finditer(tok):
        k = m.group(1)
        if m.group(2) is not None: out.add((k, int(m.group(2))))
        else: out.update((k, i) for i in range(int(m.group(3)), int(m.group(4)) + 1))
    if re.search(r"\bvcc\b", tok): out.add(("s", "vcc"))
    if re.search(r"\bm0\b", tok): out.add(("s", "m0"))
    if re.search(r"\bexec\b", tok): out.add(("s", "exec"))
    return out

def rw(x):
    t = x.t.split(";")[0].strip()
    op, _, rest = t.partition(" ")
    ops = [o.strip() for o in rest.split(",")] if rest else []
    k = x.k
    if k in ("l", "x", "w", "b", "br"): return set(), set(), {}
    if k == "m":
        return regs(ops[0]), regs(ops[1]) | regs(ops[2]) | regs(ops[3]), {"A": regs(ops[1]) | regs(ops[2]), "C": regs(ops[3])}
    if k == "ds":
        if op.startswith("ds_read"): return regs(ops[0]), regs(ops[1]), {}
        return set(), set().union(*[regs(o) for o in ops]), {}
    if k == "vm":
        if not ops: return set(), set(), {}
        if " lds" in t: return set(), set().union(*[regs(o) for o in ops]) | {("s", "m0")}, {}
        if "load" in op: return regs(ops[0]), set().union(*[regs(o) for o in ops[1:]]), {}
        if op.startswith("global_store"):
            return set(), set().union(*[regs(o) for o in ops]), {"data": regs(ops[1])}
        return set(), set().union(*[regs(o) for o in ops]), {"data": regs(ops[0])}
    if k == "s":
        if op.startswith("s_cmp") or op in ("s_nop", "s_sleep", "s_endpgm", "s_setprio"):
            return set(), set().union(set(), *[regs(o) for o in ops]), {}
        w = regs(ops[0])
        if "saveexec" in op: w |= {("s", "exec")}
        return w, set().union(set(), *[regs(o) for o in ops[1:]]), {}
    if "permlane" in op:
        a = regs(ops[0]) | regs(ops[1]); return a, a, {}
    w = regs(ops[0]); r = set().union(set(), *[regs(o) for o in ops[1:]])
    if op.startswith("v_fmac") or op.startswith("v_writelane"): r |= w
    return w, r, {}

def fix_hazards(ins):
    ins = list(ins)
    while True:
        p = check_hazards(ins, raw=True)
        if not p: return ins
        x, short = p[0]
        k = next(i for i, y in enumerate(ins) if y is x)
        ins.insert(k, I(f"s_nop {short-1}"))

def check_hazards(ins, name="", raw=False):
    seq = [x for x in ins if x.k not in ("l", "x")]
    info = [rw(x) for x in seq]
    probs = []
    for i, x in enumerate(seq):
        w, r, ex = info[i]
        op = x.t.split()[0]
        dist = 0
        for j in range(i - 1, max(-1, i - 24), -1):
            y = seq[j]; yw, yr, yex = info[j]
            yop = y.t.split()[0]
            need = 0
            isv = x.k in ("v", "e")
            if y.k in ("v", "e"):
                if x.k == "m" and yw & r: need = 2
                if isv and "permlane" in op and yw & r: need = 2
                if isv and "dpp" in x.t and yw & r: need = 2
                if op in ("v_readfirstlane_b32", "v_readlane_b32") and yw & r: need = max(need, 1)
                if y.k == "e" and x.k == "v" and yw & r: need = max(need, 1)
                ysg = {q for q in yw if q[0] == "s"}
                if ysg & r:
                    if x.k == "vm": need = max(need, 5)
                    elif isv: need = max(need, 2)
            if y.k == "m":
                if x.k == "m":
                    if yw & ex["A"]: need = 8
                    elif yw & ex["C"] and yw != ex["C"]: need = 6
                    elif yw & w and yw != ex["C"]: need = 6
                elif x.k in ("v", "e", "ds", "vm"):
                    if yw & (r | w): need = 8
                    if isv and yex["C"] & w: need = max(need, 3)
            if y.k == "vm" and "data" in yex and ("x4" in yop or "x3" in yop) and yex["data"] & w:
                need = max(need, 2 if isv else 1)
            if y.k == "s" and ("s", "m0") in yw and x.k == "vm" and " lds" in x.t: need = max(need, 1)
            if need > dist:
                probs.append((x, need - dist) if raw else f"{name}: hazard need {need} have {dist}: [{y.t}] -> [{x.t}]")
            dist += (int(y.t.split()[1]) + 1) if yop == "s_nop" else 1
            if dist >= 12: break
    return probs
```

```python
import sys, struct, math
from asmlib import *

NAME = "concat_heads__mha_block_cached__gqa_block_cached__near_ridge_kernel"
def f2u(x): return struct.unpack("<I", struct.pack("<f", x))[0]

class Cfg:
    stamps = False
    stop_after = None
    kv_flags = "nt"
    x_flags = ""
    wq_flags = ""
    wo_flags = ""
    thr = 2.0 ** 30
    backlog = 30
    code_prefetch = True
    nfirst = 22
    touch13 = True
    o1_split = (10, 0, 0)
    wo_lead = 2
    touch_flags = ''
    o1_epi = 6
    wo_even = (0, 6, 8, 8, 8, 8, 7, 0)
    st_span = 136
    o0_pos = (80, 14)
    ob_flags = 'sc1'
    p_flags = 'sc1'
    out_flags = ''
    wo_pre = 3
    nx0 = True
    chain_o = True
    bstep = 6
    pub2 = 1
    kskip = 1
    dstep = 8
    dstart = 5
    kstag = 3
    kfirst = False
    ones = (0, 1, 2, 3, 4)
    edelay = 5
    cnt = [3, 3, 3, 3, 3, 3, 3, 3, 3, 5]
    onepos = (2, 5, 9, 9)
    wtrace = False
    fill = {15: 'K0', 16: 'K1', 17: 'K2 V3'}
    loop_q = True
    fill2 = ''
    o_flags = 'sc1'
    amp = None
    kv_same = False
    no_dma = False

SX, SWQ, SK, SV, SWO, SWS, SOUT, SDBG = 4, 8, 12, 16, 20, 24, 28, 32
sW, sPI, sKQ, sB, sHP, sBR = 36, 37, 38, 39, 40, 41
sROW = 42
sH, sDA, sDB, sD, sM0, sOFF, sT, sT2 = 47, 48, 49, 50, 51, 52, 53, 54
sWM0 = 55
sC = 56
sTHR, sXK, sWK, sXM0, sREDO, sKVW = 58, 59, 60, 61, 62, 63
sOB = 64
sOS = 65
sG = 66
sST = 68
sSTO = 70
sFL = 71
sFP = 72
sFQ = 75
sOP = 78
sWR = 81
sPB = 85
sOM0 = 86
sT3 = 87
sSPIN = 88
sKO, sWIN, sDUM, sCUR = 89, 94, 95, 67
PITCH = 17408
VBASE = 4 * PITCH
XB = (121856, 80896)
SCR = 8 * PITCH
MISC = 9 * PITCH
LDS_BYTES = 163840
HALF = 8448
WS_O = 0
WS_PART = 0x2800000
WS_SH = 0x3e00000
WS_FLAG = 0x3f00000
WS_STAMP = 0x4000000
OST = 36864
WS_BYTES = 292618240
vDMA, vKA, vVA = 1, 2, 3
vL = 4
vT = 9
vNM = 16
vS = 36
NS = 6
vP = (60, 80)
vO = 96
vXD, vWD, vXR, vWR0, vWR1 = 4, 5, 6, 7, 8
aQ = (0, 80)
aK = 160
aV = 192
NV = 4
aL = 208
aONE = 228

def srd(n): return f"s[{n}:{n+3}]"

class Gen:
    def __init__(self, cfg):
        self.c = cfg
        self.out = []
        self.ws = WaitState()
        self.nstamp = 0
        self.tailcode = []
        self.checks = []
    def e(self, *ts):
        for t in ts:
            for line in (t.split("\n") if isinstance(t, str) else [t]):
                if isinstance(line, str):
                    line = line.strip()
                    if not line: continue
                    line = I(line)
                self.out += linear_waits([line], self.ws)
    def raw(self, ins):
        self.out += ins
    def stamp_ins(self):
        k = self.nstamp; self.nstamp += 1
        return [I(x) for x in (f"s_memtime s[{sST}:{sST+1}]", "s_memrealtime s[96:97]", "s_waitcnt lgkmcnt(0)",
               f"v_accvgpr_write_b32 a252, s{sST}", f"v_accvgpr_write_b32 a253, s96",
               f"buffer_store_dwordx2 a[252:253], off, {srd(SWS)}, s{sSTO} offset:{k*8}")]
    def stamp(self):
        if self.c.amp is not None:
            k = self.nstamp; self.nstamp += 1
            if k == self.c.amp[0]: self.e("s_memrealtime s[96:97]", "s_waitcnt lgkmcnt(0)")
        if self.c.stamps: self.e(*self.stamp_ins())
    def stamp_gap(self, G, g):
        if not self.c.stamps: return
        x = self.stamp_ins()
        G.val[g] += x[:-1]
        G.mem[g + 1].insert(0, x[-1])

    def setup(self):
        c = self.c; e = self.e
        e(f"""
        s_cmp_ge_u32 s2, 256
        s_cbranch_scc1 L_end
        {"s_memtime s[96:97]" if c.stamps else ""}
        {"s_memrealtime s[98:99]" if (c.stamps or c.amp) else ""}
        s_load_dwordx16 s[64:79], s[0:1], 0
        s_load_dwordx8 s[80:87], s[0:1], 64
        s_load_dwordx2 s[88:89], s[0:1], 96
        v_lshrrev_b32 v9, 6, v0
        v_and_b32 v0, 63, v0
        s_and_b32 s3, s2, 7
        v_readfirstlane_b32 s{sW}, v9
        s_lshr_b32 s{sBR}, s3, 2
        s_and_b32 s{sKQ}, s3, 3
        s_lshr_b32 s3, s2, 3
        s_lshr_b32 s{sB}, s3, 2
        s_and_b32 s{sHP}, s3, 3
        s_and_b32 s{sPI}, s{sW}, 1
        """)
        if c.code_prefetch:
            e(f"""
            s_getpc_b64 s[90:91]
            L_pc:
            v_lshlrev_b32 v10, 7, v0
            s_lshl_b32 s3, s{sW}, 13
            v_add_u32 v10, s3, v10
            s_mov_b32 s92, s90
            s_mov_b32 s93, s91
            s_mov_b32 s94, L_end-L_pc
            s_mov_b32 s95, 0x20000
            buffer_load_dword v15, v10, s[92:95], 0 offen
            s_mov_b32 s3, 0x8000
            buffer_load_dword v15, v10, s[92:95], s3 offen
            s_mov_b32 s3, 0x10000
            buffer_load_dword v15, v10, s[92:95], s3 offen
            """)
        e(f"""
        v_lshrrev_b32 v9, 2, v0
        v_mul_u32_u24 v{vXD}, 1152, v9
        v_lshrrev_b32 v9, 4, v0
        v_and_b32 v9, 2, v9
        v_xor_b32 v9, v9, v0
        v_and_b32 v9, 3, v9
        v_lshl_add_u32 v{vXD}, v9, 4, v{vXD}
        v_lshrrev_b32 v9, 5, v0
        v_lshlrev_b32 v9, 15, v9
        v_and_b32 v14, 31, v0
        v_lshl_add_u32 v9, v14, 4, v9
        s_lshl_b32 s3, s{sW}, 16
        v_add_u32 v{vWD}, s3, v9
        v_lshrrev_b32 v9, 2, v0
        v_and_b32 v9, 2, v9
        v_lshrrev_b32 v14, 4, v0
        v_xor_b32 v9, v9, v14
        v_and_b32 v14, 15, v0
        v_lshl_add_u32 v9, v14, 2, v9
        s_mul_i32 s{sXM0}, s{sW}, 10240
        s_add_u32 s{sXM0}, s{sXM0}, {XB[1]}
        v_lshlrev_b32 v9, 4, v9
        v_add_u32 v{vXR}, s{sXM0}, v9
        v_lshrrev_b32 v9, 2, v0
        v_mul_u32_u24 v9, 1088, v9
        v_and_b32 v14, 3, v0
        v_lshl_add_u32 v9, v14, 4, v9
        s_lshl_b32 s3, s{sPI}, 8
        v_add_u32 v{vWR0}, s3, v9
        s_xor_b32 s3, s3, 256
        v_add_u32 v{vWR1}, s3, v9
        s_lshl_b32 s3, s{sW}, 12
        v_lshlrev_b32 v9, 4, v0
        v_add_u32 v{vDMA}, s3, v9
        s_mul_i32 s{sWM0}, s{sW}, 4352
        s_mul_i32 s{sKVW}, s{sW}, 4224
        s_lshr_b32 s3, s{sW}, 1
        s_mul_i32 s3, s3, 144
        s_add_u32 s{sROW+4}, s3, 128
        s_mul_i32 s{sROW+4}, s{sROW+4}, 1152
        s_lshl_b32 s{sT}, s{sPI}, 6
        s_add_u32 s3, s3, s{sT}
        """)
        for j in range(4):
            e(f"s_xor_b32 s{sT}, s{sKQ}, {j}", f"s_lshl_b32 s{sT}, s{sT}, 4", f"s_add_u32 s{sT}, s{sT}, s3",
              f"s_mul_i32 s{sROW+j}, s{sT}, 1152")
        e(f"s_mov_b32 s{sXK}, 0", f"s_mov_b32 s{sWK}, 0")
        cc = f2u(math.log2(math.e) / math.sqrt(128.0))
        e(f"""
        s_mov_b32 s{sC}, {cc:#x}
        s_mov_b32 s{sC+1}, {cc:#x}
        s_mov_b32 s{sTHR}, {f2u(c.thr):#x}
        s_mul_i32 s{sH}, s{sPI}, {-2*HALF}
        s_add_u32 s{sH}, s{sH}, {HALF}
        s_sub_u32 s{sDA}, {PITCH}, s{sH}
        s_sub_u32 s{sDB}, {-3*PITCH}, s{sH}
        s_waitcnt lgkmcnt(0)
        s_cmp_eq_u32 s{sBR}, 0
        s_cselect_b64 s[{SX}:{SX+1}], s[64:65], s[74:75]
        s_cselect_b64 s[{SK}:{SK+1}], s[66:67], s[76:77]
        s_cselect_b64 s[{SV}:{SV+1}], s[68:69], s[78:79]
        s_cselect_b64 s[{SWQ}:{SWQ+1}], s[70:71], s[80:81]
        s_cselect_b64 s[{SWO}:{SWO+1}], s[72:73], s[82:83]
        s_mul_i32 s3, s{sB}, 331776
        s_add_u32 s{SX}, s{SX}, s3
        s_addc_u32 s{SX+1}, s{SX+1}, 0
        s_mov_b32 s{SX+2}, 331776
        s_mov_b32 s{SX+3}, 0x20000
        s_lshl_b32 s{sT}, s{sKQ}, 2
        s_add_u32 s{sT}, s{sT}, s{sHP}
        s_lshl_b32 s3, s{sT}, 9
        s_add_u32 s{SWQ}, s{SWQ}, s3
        s_addc_u32 s{SWQ+1}, s{SWQ+1}, 0
        s_sub_u32 s{SWQ+2}, {576*8192}, s3
        s_mov_b32 s{SWQ+3}, 0x20000
        """)

    def setup2(self):
        e = self.e
        e(f"""
        s_lshl_b32 s{sT}, s{sKQ}, 2
        s_add_u32 s{sT}, s{sT}, s{sHP}
        s_lshl_b32 s3, s{sB}, 4
        s_add_u32 s{sT}, s{sT}, s3
        s_lshl_b32 s3, s{sT}, 19
        {"s_mov_b32 s3, 0" if self.c.kv_same else ""}
        s_add_u32 s{SK}, s{SK}, s3
        s_addc_u32 s{SK+1}, s{SK+1}, 0
        s_mov_b32 s{SK+2}, 524288
        s_mov_b32 s{SK+3}, 0x20000
        s_add_u32 s{SV}, s{SV}, s3
        s_addc_u32 s{SV+1}, s{SV+1}, 0
        s_mov_b32 s{SV+2}, 524288
        s_mov_b32 s{SV+3}, 0x20000
        s_mov_b32 s{SWO+2}, {4096*1152}
        s_mov_b32 s{SWO+3}, 0x20000
        s_mov_b32 s{SOUT}, s84
        s_mov_b32 s{SOUT+1}, s85
        s_mov_b32 s{SOUT+2}, {8*288*1152*2}
        s_mov_b32 s{SOUT+3}, 0x20000
        s_mov_b32 s{SDBG}, s86
        s_mov_b32 s{SDBG+1}, s87
        s_mov_b32 s{SDBG+2}, 256
        s_mov_b32 s{SDBG+3}, 0x20000
        s_mov_b32 s{SWS}, s88
        s_mov_b32 s{SWS+1}, s89
        s_mov_b32 s{SWS+2}, {WS_BYTES}
        s_mov_b32 s{SWS+3}, 0x20000
        s_lshl_b32 s3, s{sBR}, 7
        s_add_u32 s{sT}, s{sT}, s3
        s_mul_i32 s{sOB}, s{sT}, 147456
        s_lshr_b32 s3, s{sW}, 1
        s_mul_i32 s3, s3, 36864
        s_add_u32 s{sOB}, s{sOB}, s3
        s_add_u32 s{sOS}, s{sOB}, 32768
        s_lshl_b32 s3, s{sPI}, 14
        s_add_u32 s{sOB}, s{sOB}, s3
        s_mov_b32 s{sG}, s2
        s_lshl_b32 s3, s2, 2
        s_add_u32 s3, s3, s{sW}
        s_lshl_b32 s3, s3, 8
        s_add_u32 s{sSTO}, s3, {WS_STAMP}
        s_mov_b32 s{sREDO}, 0
        s_mul_i32 s3, s{sKQ}, {1024*1152}
        s_mul_i32 s{sT}, s{sHP}, 288
        s_add_u32 s3, s3, s{sT}
        s_add_u32 s{SWO}, s{SWO}, s3
        s_addc_u32 s{SWO+1}, s{SWO+1}, 0
        s_sub_u32 s{SWO+2}, s{SWO+2}, s3
        s_lshl_b32 s{sFL}, s2, 7
        s_add_u32 s{sFL}, s{sFL}, {WS_FLAG}
        s_mul_i32 s{sOM0}, s{sW}, 9216
        s_mul_i32 s{sT2}, s{sW}, {32*1152}
        """)
        for p in range(4):
            e(f"s_xor_b32 s3, s{sHP}, {p}", f"s_mul_i32 s{sT}, s3, {256*1152}", f"s_add_u32 s{sWR+p}, s{sT}, s{sT2}")
            if p:
                e(f"s_sub_u32 s3, s3, s{sHP}", f"s_mul_i32 s{sOP+p-1}, s3, 147456",
                  f"s_xor_b32 s{sFP+p-1}, s{sFL}, {p << 10}", f"s_xor_b32 s{sFQ+p-1}, s{sFL}, {p << 7}")
        e(f"""
        s_lshr_b32 s3, s2, 3
        s_lshl_b32 s{sT}, s{sBR}, 5
        s_add_u32 s3, s3, s{sT}
        s_mul_i32 s{sPB}, s3, {64*5120}
        s_mul_i32 s{sT}, s{sW}, 5120
        s_add_u32 s{sPB}, s{sPB}, s{sT}
        s_add_u32 s{sPB}, s{sPB}, {WS_PART}
        """)
        for t in range(9):
            e(f"v_add_u32 v9, {64*t}, v0", "v_mul_u32_u24 v9, 3641, v9", "v_lshrrev_b32 v9, 16, v9",
              "v_mul_u32_u24 v9, 864, v9", "v_lshl_add_u32 v9, v0, 4, v9")
            if t >= 4: e(f"v_add_u32 v9, {1024*(t - t % 4)}, v9")
            e(f"v_accvgpr_write_b32 a{240+t}, v9")
        e("v_and_b32 v9, 15, v0", "v_cmp_eq_u32 vcc, 0, v9", "v_mov_b32 v9, 0x3f803f80", "s_nop 0", "v_cndmask_b32 v9, 0, v9, vcc")
        for r in range(4): e(f"v_accvgpr_write_b32 a{aONE+r}, v9")
        if self.c.stop_after != "A":
            e("v_mov_b32 v9, 0", I(f"buffer_store_dword v9, off, {srd(SWS)}, s{sFL} sc1", id=("flclr",)))
        self.kv_addr_init()

    def dbg_addr(self, v):
        self.e(f"""
        s_and_b32 s3, s{sG}, 7
        s_lshl_b32 s3, s3, 3
        s_add_u32 s3, s3, s{sB}
        s_lshl_b32 s3, s3, 2
        s_lshr_b32 s{sT}, s{sG}, 3
        s_lshl_b32 s{sT2}, s{sBR}, 5
        s_add_u32 s{sT}, s{sT}, s{sT2}
        s_lshl_b32 s{sT}, s{sT}, 2
        v_mov_b32 v{v}, 0x1000
        v_writelane_b32 v{v}, s3, 0
        v_writelane_b32 v{v}, s{sT}, 1
        """)

    def announce_cleared(self):
        e = self.e
        e(f"s_cmp_lg_u32 s{sW}, 0", "s_cbranch_scc1 L_ann")
        self.dbg_addr(10)
        e("v_mov_b32 v11, 1", "s_mov_b32 s3, 0x10000", "v_writelane_b32 v11, s3, 1")
        self.raw([I(f"buffer_atomic_add v11, v10, {srd(SDBG)}, 0 offen sc1")])
        e("L_ann:")

    def publish(self, val):
        lab = f"L_pub{val}"
        return [I(f"s_cmp_lg_u32 s{sW}, 0"), I(f"s_cbranch_scc1 {lab}"), I(f"v_accvgpr_write_b32 a255, {val}"),
                I(f"buffer_store_dword a255, off, {srd(SWS)}, s{sFL} sc1", k="x"), I(f"{lab}:")]

    def spin(self, name, load, test):
        self.tailcode += [I(f"L_sp_{name}:"), I(f"s_mov_b32 s{sSPIN}, 0x40000"), I(f"L_spl_{name}:"), I("s_sleep 1")]
        self.tailcode += [I(x) for x in load] + [I("s_waitcnt vmcnt(0)")] + [I(x) for x in test]
        self.tailcode += [I(f"s_cbranch_scc1 L_sb_{name}"), I(f"s_sub_u32 s{sSPIN}, s{sSPIN}, 1"), I(f"s_cmp_lg_u32 s{sSPIN}, 0"),
                          I(f"s_cbranch_scc1 L_spl_{name}"), I(f"s_branch L_sb_{name}")]

    def kv_addr_init(self):
        e = self.e
        e(f"""
        v_and_b32 v9, 7, v0
        v_mul_u32_u24 v9, 1056, v9
        v_and_b32 v14, 8, v0
        v_lshl_add_u32 v9, v14, 5, v9
        v_and_b32 v14, 48, v0
        s_mul_i32 s3, s{sPI}, {HALF}
        v_add3_u32 v{vKA}, v9, v14, s3
        v_bfe_u32 v9, v0, 2, 3
        v_mul_u32_u24 v9, 1056, v9
        v_and_b32 v14, 32, v0
        v_lshl_add_u32 v9, v14, 3, v9
        v_and_b32 v14, 3, v0
        v_lshl_add_u32 v9, v14, 3, v9
        s_add_u32 s3, s3, {VBASE}
        v_add_u32 v{vVA}, s3, v9
        """)

    def dma_wq(self, i):
        slot = (i + 2) % 4
        ops = []
        for r in range(4):
            pre = [I(f"s_add_u32 m0, s{sWM0}, {slot*PITCH + r*1088}")]
            vm = I(f"buffer_load_dwordx4 v{vWD}, {srd(SWQ)}, s{sWK} offen {self.c.wq_flags} lds", id=("wq", i, r))
            ops.append((pre, [], vm, [I(f"s_add_u32 s{sWK}, s{sWK}, {8192 if r < 3 else 29*8192}")]))
        return ops
    def dma_x(self, st, js):
        boff = 0 if st == 1 else XB[0] - XB[1]
        ops = []
        for j in js:
            prev = st - (2 if st == 2 else 1)
            needs = [("xr", 2*prev, j), ("xr", 2*prev + 1, j)] if st >= 2 else []
            ops.append(([I(f"s_add_u32 m0, s{sXM0}, {boff + j*2048}")], [I(f"s_add_u32 s{sT2}, s{sROW+j}, s{sXK}")],
                        I(f"buffer_load_dwordx4 v{vXD}, {srd(SX)}, s{sT2} offen {self.c.x_flags} lds", id=("x", 2*st, j), needs=needs), []))
            post = [I(f"s_add_u32 s{sXK}, s{sXK}, 128")] if j == 4 else []
            ops.append(([I(f"s_add_u32 m0, s{sXM0}, {boff + j*2048 + 1024 - 64}")], [],
                        I(f"buffer_load_dwordx4 v{vXD}, {srd(SX)}, s{sT2} offen offset:64 {self.c.x_flags} lds", id=("x", 2*st+1, j)), post))
        return ops
    def dma_kv_static(self, which, M):
        base = (M % 4) * PITCH + (VBASE if which == "V" else 0)
        ops = []
        for i in range(4):
            same = [I(f"s_mov_b32 s{sCUR}, {M*16384}")] if i == 0 else []
            ops.append(([I(f"s_add_u32 m0, s{sKVW}, {base + 32*i}")], same,
                        I(f"buffer_load_dwordx4 v{vDMA}, {srd(SK if which == 'K' else SV)}, s{sCUR} offen offset:{i*1024} {self.c.kv_flags} lds", id=(which, M, i)), []))
        return ops
    def emit_dma_straight(self, ops):
        for pre, same, vm, post in ops:
            self.e(*pre)
            self.e(*(same or [I("s_nop 0")]))
            self.e(vm, *post)

    def qacc(self, tp, j):
        idn = tp * 4 + j if j < 4 else 64 + tp
        return ("v", 16 + 4 * idn) if idn < 60 else ("a", 160 + 4 * (idn - 60))

    def phase_q(self):
        e = self.e
        NR = 8
        aB, aA = 0, 80
        first = self.dma_wq(0) + self.dma_x(0, range(5)) + self.dma_wq(1) + self.dma_x(1, range(5)) + self.dma_wq(2) + self.dma_wq(3)
        self.emit_dma_straight(first[:self.c.nfirst])
        self.setup2()
        if self.c.stamps:
            self.nstamp = 1
            e("v_mov_b32 v15, s96", f"buffer_store_dword v15, off, {srd(SWS)}, s{sSTO}", "v_mov_b32 v15, s98", f"buffer_store_dword v15, off, {srd(SWS)}, s{sSTO} offset:4")
        self.stamp()
        ms = []; start = {}; last = {}
        for i in range(18):
            for tp in range(16):
                f = 16 * i + tp
                start[f] = len(ms)
                for j in range(5 if tp < 8 else 4):
                    ms.append(I(mfma(self.qacc(tp, j), ("a", aA + 4 * (f % NR)), ("a", aB + 20 * (i % 4) + 4 * j), 0 if i == 0 else None),
                                needs=[("ar", f, 0), ("ar", f, 1), ("xr", i, j)]))
                last[f] = len(ms) - 1
        G = Gaps(ms)
        pre = []
        def aread(f, v):
            i, tp = divmod(f, 16)
            t = tp % 8
            off = ((i + 2) % 4) * PITCH + 512 * v + 64 * (t >> 1) + 8 * (t & 1)
            return I(f"ds_read_b64_tr_b16 {R('a', aA + 4*(f % NR) + 2*v, 2)}, v{vWR0 if tp < 8 else vWR1} offset:{off}", id=("ar", f, v))
        def xread(i, j):
            off = (0 if i // 2 == 1 else XB[0] - XB[1]) + 1024 * (i % 2) + 2048 * j
            return I(f"ds_read_b128 {R('a', aB + 20*(i % 4) + 4*j, 4)}, v{vXR} offset:{off}", id=("xr", i, j), needs=[("x", i, j)])
        for j in range(5): pre.append(xread(0, j))
        pre.append(I("s_barrier", needs=[("wq", 0, r) for r in range(4)]))
        for i in range(18):
            for tp in range(16):
                for v in range(2):
                    f = 16 * i + tp
                    g = 72 * i - 13 + ((2 * tp + v) * 58) // 32
                    if g % 72 == 71: g -= 1
                    if g < 0: pre.append(aread(f, v)); continue
                    assert g <= start[f] - 8
                    assert f < NR or g >= last[f - NR], (f, g)
                    assert not G.mem[g]
                    G.mem[g].append(aread(f, v))
        def free(g):
            while G.mem[g] or g % 72 == 71: g += 1
            return g
        for j in range(5): G.mem[free(46 + 2*j if not self.c.nx0 else j)].append(xread(1, j))
        tim = [(2 + 2*k, o) for k, o in enumerate(first[self.c.nfirst:])]
        assert self.c.nfirst >= 18
        for st in range(8):
            for j in range(5):
                g = 144*st + (8 + 26*j if st else 108 + 5*j)
                for i in (2*st + 2, 2*st + 3):
                    g = free(g); G.mem[g].append(xread(i, j))
                if st + 2 <= 8:
                    o = self.dma_x(st + 2, [j])
                    t = g + 8 if st else (66 + 12*j if not self.c.nx0 else 24 + 25*j)
                    tim += [(t, o[0]), (t + 3, o[1])]
        for i in range(18):
            g = 72 * i + 56
            G.waitneeds[g] += [("ar", 16 * i + 15, 1)]
            if i < 17:
                G.waitneeds[g] += [("wq", i + 1, r) for r in range(4)]
                G.waitneeds[g + 14] += ms[72 * (i + 1)].needs
            G.sal[g + 1].append(I("s_barrier"))
            if i in ((0, 3, 8) if not self.c.loop_q else (0, 1, 14)): self.stamp_gap(G, g + 1)
            if i + 4 < 18: tim += [(g + 4 + 16*r, o) for r, o in enumerate(self.dma_wq(i + 4))]
            if 2 <= i < 14:
                M, p = divmod(i - 2, 4)
                post = [I(f"s_add_u32 s{sM0}, s{sM0}, {PITCH}"), I(f"s_add_u32 s{sOFF}, s{sOFF}, 16384")] if p == 3 else []
                tim += [(g + 8, ([I(f"s_add_u32 m0, s{sM0}, {32*p}")], [],
                                  I(f"buffer_load_dwordx4 v{vDMA}, {srd(SV)}, s{sOFF} offen offset:{p*1024} {self.c.kv_flags} lds", id=("V", M, p)), post))]
            us = sum([self.dma_kv_static(u[0], int(u[1])) for u in self.c.fill.get(i + 1, "").split()], [])
            tim += [(g + 4 + (k * (64 if i < 17 else 12)) // len(us), o) for k, o in enumerate(us)]
        tim.sort(key=lambda t: t[0])
        seq = []; g = -1; pend = []
        for t, (p, same, vm, post) in tim:
            prev = g
            g = free(max(t, g + (3 if g > 58 else 2)))
            G.mem[g].append(vm)
            for x in pend: seq.append((x, prev + 1, g - 1))
            if self.c.loop_q and prev % 288 < 144 <= g % 288 and 288 < g < 1200:
                seq.append((I(f"s_cmp_lg_u32 s{sXK}, {9*128}"), prev + 1, (g // 144) * 144 - 2))
                prev = (g // 144) * 144 - 1
            for x in p: seq.append((x, max(prev + 1, g - 2), g - 1))
            for x in same: seq.append((x, g - 1, g))
            pend = post
        assert not pend
        e(f"s_add_u32 s{sM0}, s{sKVW}, {VBASE}", f"s_mov_b32 s{sOFF}, 0")
        self.e(*pre)
        pre2 = []
        G.place_waits(self.ws, pre2)
        if self.c.loop_q: G.unify_waits([144, 432, 720], 288)
        G.place_salu(seq)
        self.raw(pre2)
        if self.c.loop_q:
            w = [[x.t for x in G.flat(a, a + 288)] for a in (144, 432, 720)]
            assert w[0] == w[1] == w[2], [(x, y, z) for x, y, z in zip(*w) if not x == y == z][:5]
            body = G.flat(144, 432)
            assert body[-1].k == "m" and G.flat(0, 144)[-1].k == "m"
            self.raw(G.flat(0, 144) + [I("s_branch L_qloop"), I(".p2align 6"), I("L_qloop:")] + body + [I("s_cbranch_scc1 L_qloop")] + G.flat(1008))
            self.checks.append(("qloop", body + body))
        else:
            self.raw(G.flat())
        print("phase Q est cycles", G.cost(), file=sys.stderr)
        self.stamp()
        def pack(src0, src1, tmp):
            o = []
            for k, (kind, b) in enumerate((src0, src1)):
                if kind == "a":
                    for r in range(4): o.append(f"v_accvgpr_read_b32 v{12+r}, a{b+r}")
                    b = 12
                o.append(f"v_pk_mul_f32 v[{b}:{b+1}], v[{b}:{b+1}], s[{sC}:{sC+1}]")
                o.append(f"v_pk_mul_f32 v[{b+2}:{b+3}], v[{b+2}:{b+3}], s[{sC}:{sC+1}]")
                o.append(f"v_cvt_pk_bf16_f32 v{tmp+2*k}, v{b}, v{b+1}")
                o.append(f"v_cvt_pk_bf16_f32 v{tmp+2*k+1}, v{b+2}, v{b+3}")
            return o
        e(f"v_add_u32 v9, {SCR}, v{vDMA}")
        for s in range(4):
            e(*pack(self.qacc(2*s, 4), self.qacc(2*s+1, 4), 4))
            e(I(f"ds_write_b128 v9, v[4:7] offset:{s*1024}", id=("qsw", s)))
        e(f"s_cmp_eq_u32 s{sPI}, 1", "s_cbranch_scc1 L_qe1")
        done = " ".join(self.c.fill.values()).split()
        st = (dict((k, list(v)) for k, v in self.ws.q.items()), dict(self.ws.done), dict(self.ws.pos))
        for pi in range(2):
            if pi == 1:
                e("L_qe1:")
                self.ws.q, self.ws.done, self.ws.pos = st
            rest = sum([self.dma_kv_static(u[0], int(u[1])) for u in "K0 K1 K2 V3 K3".split() if u not in done + self.c.fill2.split()], [])
            nrest = len(rest); cnt = 0
            for hh in range(2):
                h = hh ^ pi
                for j in range(4):
                    for s in range(4):
                        t0 = self.qacc(8*hh + 2*s, j); t1 = self.qacc(8*hh + 2*s + 1, j)
                        assert t0[0] == "v"
                        e(*pack(t0, t1, t0[1]))
                        cnt += 1
                        d = rest.pop(0) if (rest and (nrest - len(rest)) * 32 < cnt * nrest) else None
                        if d: e(*d[0], *d[1])
                        for r in range(4): e(f"v_accvgpr_write_b32 a{aQ[h] + (j*4+s)*4 + r}, v{t0[1]+r}")
                        if d: e(d[2])
            assert not rest
            if pi == 0: e("s_branch L_qe2")
        e("L_qe2:")
        self.stamp()
        e(I("s_barrier", needs=[("qsw", 3)] + [(k, 0, i) for k in "KV" for i in range(4)]))
        if self.c.stop_after != "A": self.announce_cleared()
        e(f"s_lshl_b32 s3, s{sPI}, 12", "v_subrev_u32 v9, s3, v9")
        for h in range(2):
            for s in range(4):
                e(I(f"ds_read_b128 {R('a', aQ[h] + (16+s)*4, 4)}, v9 offset:{h*4096 + s*1024}", id=("qsr", h, s)))
        for j in range(5): e(f"v_mov_b32 v{vNM+4*j}, 0xff800000")

    def attn_mfmas(self, h, nwin, first=True, lastw=True):
        ms = []; cstart = {}; cend = {}; pv = {}; wstart = []
        tcount = [0]; sslot = {}
        def chain(n, T, j):
            sl = tcount[0] % NS; tcount[0] += 1
            sslot[(n, T, j)] = sl
            cstart[(n, T, j)] = len(ms)
            for s in range(4):
                ms.append(I(mfma(("v", vS + 4*sl), ("a", aK + 16*T + 4*s), ("a", aQ[h] + (j*4+s)*4), ("v", vNM + 4*j) if s == 0 else None),
                            needs=[("kr", h, n, T, s)]))
            cend[(n, T, j)] = len(ms) - 1
        def pvm(n, dt, j):
            f = 8*n + dt
            pv[(n, dt, j)] = len(ms)
            ms.append(I(mfma(("v", vO + (j*8+dt)*4), ("a", aV + 4*(f % NV)), ("v", vP[n % 2] + 4*j), 0 if (n == 0 and first) else None),
                        needs=[("vr", h, f, 0), ("vr", h, f, 1)]))
        def onem(n, j):
            ms.append(I(mfma(("a", aL + 4*j), ("a", aONE), ("v", vP[n % 2] + 4*j), 0 if (n == 0 and first) else None)))
        for m in range(nwin):
            wstart.append(len(ms))
            for c in range(8):
                chain(2*m+1, c >> 2, c & 3)
                for j in range(5): pvm(2*m, c, j)
                if c - 2 in self.c.ones: onem(2*m, c - 2)
            lst = [(dt, j) for dt in range(8) for j in range(4)]
            cnt = self.c.cnt
            for c in range(10):
                if not (lastw and m == nwin - 1): chain(2*m+2, c // 5, c % 5)
                for _ in range(cnt[c]):
                    dt, j = lst.pop(0); pvm(2*m+1, dt, j)
                for j in range(4):
                    if self.c.onepos[j] == c and j in self.c.ones: onem(2*m+1, j)
        wstart.append(len(ms))
        return ms, cstart, cend, pv, sslot, wstart

    def o_stores(self, h, vaddr):
        ops = []
        for j in range(4):
            for s in range(4):
                src = R("a", (j*4+s)*4, 4) if h == 0 else R("v", 16 + (j*4+s)*4, 4)
                ops.append(([], [], I(f"buffer_store_dwordx4 {src}, v{vaddr}, {srd(SWS)}, s{90+j} offen offset:{s*1024} {self.c.o_flags}", id=("os", h, j, s)), []))
        return ops

    def kread(self, h, n, T, s):
        return I(f"ds_read_b128 {R('a', aK + 16*T + 4*s, 4)}, v{vKA} offset:{512*T + 64*s}", id=("kr", h, n, T, s))
    def vread(self, h, f, v):
        return I(f"ds_read_b64_tr_b16 {R('a', aV + 4*(f % NV) + 2*v, 2)}, v{vVA} offset:{512*v + 32*(f % 8)}", id=("vr", h, f, v))

    def attn_schedule(self):
        NW = 8
        ms, cstart, cend, pv, sslot, wstart = self.attn_mfmas(0, NW, first=False, lastw=False)
        n = len(ms)
        mem = {}
        def put(g, key):
            while g in mem: g += 1
            mem[g] = key; return g
        rel = {}
        W = self.W = wstart[1]
        cs = lambda dn, T, j: cstart[(2 + dn, T, j)] - W
        bar = rel["bar"] = cs(1, 1, 0) + 3
        bodyo = rel["bodyo"] = cs(2, 0, 0)
        for i in range(4): rel[("dK", i)] = put(bar + self.c.dstart + (4 + i) * self.c.dstep, 1)
        for i in range(4): rel[("dV", i)] = put(bar + self.c.dstart + i * self.c.dstep, 1)
        first = {f: pv[(2 + f // 8, f % 8, 0)] - W for f in range(-4, 16)}
        lastu = {f: pv[(2 + f // 8, f % 8, 4 if (f // 8) % 2 == 0 else 3)] - W for f in range(-4, 16)}
        for f in range(16):
            g = max(first[f - 2], lastu[f - 4] + 1)
            for v in range(2):
                gg = g % W
                g2 = put(gg, 1)
                rel[("vr", f, v)] = g + (g2 - gg)
                g = rel[("vr", f, v)] + 2
                assert rel[("vr", f, v)] <= first[f] - 7, (f, v, rel[("vr", f, v)], first[f])
        for (dn, T), g0 in (((1, 1), 1), ((2, 0), bar + 3), ((2, 1), bodyo + 1), ((3, 0), cs(2, 1, 0) + 1)):
            for s in range(4):
                rel[("kr", dn, T, s)] = put(g0 + 6 * s, 1)
                assert rel[("kr", dn, T, s)] <= cs(dn, T, 0) + s - 7
        rel[("ka", 0)] = rel[("kr", 1, 1, 3)] + 1
        rel[("ka", 1)] = rel[("kr", 2, 1, 3)] + 1
        rel[("va", 0)] = rel[("vr", 7, 1)]
        rel[("va", 1)] = rel[("vr", 15, 1)]
        assert rel[("vr", 8, 0)] > rel[("va", 0)] and rel[("vr", 0, 0)] + W > rel[("va", 1)]
        used = [0] * W
        for k, g in rel.items():
            if isinstance(k, str): continue
            used[g % W] += 2 if k[0] in ("dK", "dV") else 1
        used[W - 1] += 2
        tiles = sorted(cend, key=lambda t: cend[t])
        place = {}
        eq = []
        sm = []
        ti = 0
        for g in range(n):
            while ti < len(tiles) and cend[tiles[ti]] + self.c.edelay <= g:
                eq += [(tiles[ti], r) for r in range(4)]; ti += 1
            u = used[g % W]
            rdy = [x for x in sm if x[1] <= g]
            backlog = 3.5 * len(eq) + len(sm)
            budget = 3 if (backlog > self.c.backlog and g % W != W - 1) else 2
            def take_small():
                rdy.sort(); x = rdy.pop(0); sm.remove(x); place[x[2]] = g
            def take_e():
                t, r = eq.pop(0); place[("e", t, r)] = g
                if t[2] not in self.c.ones: sm.append(((cend[t], 1, r), g + 1, ("a", t, r)))
                if r % 2: sm.append(((cend[t], 0, r), g + 1, ("c", t, r // 2)))
            if u == 0 and eq and len(rdy) < 4:
                take_e(); u += 2
            elif u == 1 and budget == 3 and eq and len(rdy) < 2:
                take_e(); u += 2
            while u < budget and rdy:
                take_small(); u += 1
        def wrel(m):
            d = {}
            for k, g in place.items():
                nn, T, j = k[1]
                if nn in (2*m+1, 2*m+2): d[(k[0], nn - 2*m, T, j, k[2])] = g - W * m
            return d
        a, b = wrel(4), wrel(5)
        assert a == b, "VALU schedule not periodic"
        rel.update(a)
        self.rel = rel

    def head(self, h):
        e = self.e; rel = self.rel; c = self.c; W = self.W
        nloop_end = 13 if h == 1 else 15
        nloop_start = 1
        e(f"L_head{h}:")
        e(f"s_mov_b32 s{sOFF}, {(16*h+4)*16384}", f"s_mov_b32 s{sKO}, {(16*h+4)*16384}", f"s_mov_b32 s{sWIN}, 0",
          f"s_mov_b32 s{sD}, s{sDA}", f"s_add_u32 s{sDUM}, s{sKVW}, {SCR}",
          f"s_and_b32 s{sXK}, s{sHP}, {c.kstag}", f"s_add_u32 s{sXK}, s{sXK}, {c.kskip}")
        assert c.kskip >= 1
        self.stamp()
        for T in range(2):
            for s in range(4): e(self.kread(h, 0, T, s))
        e(f"v_add_u32 v{vKA}, s{sH}, v{vKA}")
        tS = lambda T, j: vO + (j*2 + T) * 4
        refill = self.dma_kv_static("V", 19) if (h == 1 and "V3" not in c.fill2) else []
        for j in range(5):
            for T in range(2):
                for s in range(4):
                    nd = [("kr", h, 0, T, s)] + ([("qsr", 1, 3)] if (h == 0 and j == 4) else [])
                    e(I(mfma(("v", tS(T, j)), ("a", aK + 16*T + 4*s), ("a", aQ[h] + (j*4+s)*4), 0 if s == 0 else None), needs=nd))
                    if refill and j in (1, 4) and T == 0:
                        if s == 0: e(*refill[0][0])
                        if s == 1: e(*refill[0][1], refill.pop(0)[2])
        ms, cstart, cend, pv, sslot, wstart = self.attn_mfmas(h, 16)
        G = Gaps(ms)
        early = []
        lastw = 15
        full, fcs, fce, fpv, _, _ = self.attn_mfmas(h, 16, lastw=False)
        dropped = set()
        for k, st in fcs.items():
            if k[0] == 32: dropped.update(range(st, st + 4))
        amap = []; a = -1
        for g in range(len(full)):
            if g not in dropped: a += 1
            amap.append(a)
        def at(m, g):
            p = W * m + g
            if p < 0: return None
            return amap[p]
        seq = []
        for m in range(-1, 16):
            items = []
            for k, g in rel.items():
                if isinstance(k, str): continue
                kind = k[0]
                if kind == "kr":
                    n = 2*m + k[1]
                    if n < 1 or n > 31: continue
                    items.append((g, "mem", self.kread(h, n, k[2], k[3])))
                elif kind == "vr":
                    if m < 0: continue
                    items.append((g, "mem", self.vread(h, 16*m + k[1], k[2])))
                elif kind in ("dK", "dV"):
                    if m < 0 or (h == 1 and m == 15): continue
                    i = k[1]
                    if m >= nloop_end and h == 1: continue
                    if kind == "dV":
                        if m == 0: continue
                        items.append((g, "mem", I(f"buffer_load_dwordx4 v{vDMA}, {srd(SV)}, s{sOFF} offen offset:{i*1024} {c.kv_flags} lds", id=("V", 16*h + m + 3, i))))
                    else:
                        if m == 0 and c.kskip == 0: continue
                        idn = ("K", 16*h + m + (4 if m < c.kskip else 3), i) if m != c.kskip else None
                        items.append((g, "mem", I(f"buffer_load_dwordx4 v{vDMA}, {srd(SK)}, s{sCUR} offen offset:{i*1024} {c.kv_flags} lds", id=idn)))
                elif kind == "ka":
                    if m < 0 or (m == 15 and k[1] == 1): continue
                    items.append((g, "val", I(f"v_add_u32 v{vKA}, s{sD if k[1] == 0 else sH}, v{vKA}")))
                elif kind == "va":
                    if m < 0: continue
                    items.append((g, "val", I(f"v_add_u32 v{vVA}, s{sH if k[1] == 0 else sD}, v{vVA}")))
                else:
                    n = 2*m + k[1]
                    if n < 1 or n > 31: continue
                    T, j, r = k[2], k[3], k[4]
                    g_key = g
                    while n == 31 and kind != "a" and at(m, g) > pv[(n, 0, j)] - (2 if kind == "c" else 3): g -= 1
                    S = vS + 4 * sslot[(n, T, j)]
                    if kind == "e": x = I(f"v_exp_f32 v{S+r}, v{S+r}")
                    elif kind == "a": x = I(f"v_add_f32 v{vL+j}, v{vL+j}, v{S+r}")
                    else:
                        x = I(f"v_cvt_pk_bf16_f32 v{vP[n % 2] + 4*j + 2*T + r}, v{S+2*r}, v{S+2*r+1}")
                        assert at(m, g) <= pv[(n, 0, j)] - 2, ("late cvt", n, T, j)
                    x.key = (W*m + g_key, cend[(n, T, j)], {"e": 2, "c": 0, "a": 1}[kind], r)
                    nxt = [t for t in cstart if cstart[t] > cstart[(n, T, j)] and sslot[t] == sslot[(n, T, j)]]
                    if nxt: assert at(m, g) < min(cstart[t] for t in nxt), ("S slot reuse", n, T, j)
                    items.append((g, "val", x))
            items.sort(key=lambda t: t[0])
            for g, where, x in items:
                p = at(m, g)
                if p is None: early.append(x)
                else: getattr(G, where)[p].append(x)
            if m >= 0:
                M = 16*h + m
                g = at(m, rel["bar"])
                G.waitneeds[g] += [("kr", h, 2*m+1, 1, 3)]
                if M < 31: G.waitneeds[g] += [(k, M+1, i) for k in "KV" for i in range(4)]
                G.sal[g + 1].append(I("s_barrier"))
                if c.wtrace:
                    G.val[g + 1] += [I("s_memrealtime s[96:97]"), I(f"s_add_u32 s99, s{sWIN}, {16*h+3}"), I("s_mov_b32 m0, s99"), I("s_waitcnt lgkmcnt(0)"), I("v_writelane_b32 v10, s96, m0")]
                if h == 1 and m == 15:
                    if c.stop_after != "A":
                        assert len(c.ones) == 5
                        vt = [4, 5, 6, 7, 8, 9, 12, 14, 15]
                        a0 = at(m, 0)
                        for t in range(9):
                            G.val[a0 + t].append(I(f"v_accvgpr_read_b32 v{vt[t]}, a{240+t}", needs=[("touch", 14)] if (t == 0 and c.touch13) else []))
                        gg = a0 + 3
                        for p_, same, vm, post in sum([self.dma_wo(i, vt) for i in range(c.wo_pre)], []):
                            gg += 3 if vm.id[1] < 2 else 2
                            if vm.id[1] > 0: gg = max(gg, g + 3)
                            while G.mem[gg]: gg += 1
                            G.mem[gg].append(vm)
                            for x in p_: seq.append((x, gg - 1, gg - 1))
                            for x in same: seq.append((x, gg - 1, gg))
                    continue
                if m == 0:
                    gg = 0
                    for u in c.fill2.split():
                        for p_, same, vm, post in self.dma_kv_static(u[0], 16*h + int(u[1])):
                            gg += 4
                            while G.mem[gg]: gg += 1
                            assert gg < g
                            G.mem[gg].append(vm)
                            for x in p_: seq.append((x, gg - 2, gg - 1))
                            for x in same: seq.append((x, gg - 1, gg))
                if h == 1 and m == 13 and c.touch13 and c.stop_after != "A":
                    G.val[at(m, 2)] += [I("v_lshlrev_b32 v12, 7, v0")]
                    G.val[at(m, 3)] += [I("v_and_b32 v14, 0x380, v12")]
                    G.val[at(m, 5)] += [I("v_add_u32 v14, 0x2000, v14")]
                    for gg, va in ((at(m, 9), 12), (at(m, 17), 14)):
                        while G.mem[gg]: gg += 1
                        G.mem[gg].append(I(f"buffer_load_dword v9, v{va}, {srd(SWO)}, s{sT3} offen {c.touch_flags}", id=("touch", va)))
                loads = not (h == 1 and m >= nloop_end)
                lo = g + 2 if c.wtrace or m == 0 else at(m, 8)
                if loads:
                    for t in (f"s_bfe_u32 s{sM0}, s{sKO}, 0x2000e", f"s_mul_i32 s{sM0}, s{sM0}, {PITCH}", f"s_add_u32 s{sM0}, s{sM0}, s{sKVW}"):
                        seq.append((I(t), at(m, 4) if m else lo, at(m, rel[("dV", 0)]) + (-1 if m else 8)))
                if loads and m > 0:
                    for i in range(4):
                        gd = at(m, rel[("dV", i)])
                        if i == 0:
                            for t in (f"s_bfe_u32 s{sT}, s{sOFF}, 0x2000e", f"s_mul_i32 s{sT}, s{sT}, {PITCH}", f"s_add_u32 s{sT}, s{sT}, s{sKVW}"):
                                seq.append((I(t), at(m, 8), gd - 1))
                            seq.append((I(f"s_add_u32 m0, s{sT}, {VBASE}"), lo, gd - 1))
                        else: seq.append((I("s_add_u32 m0, m0, 32"), lo, gd - 1))
                        lo = gd + 1
                    seq.append((I(f"s_add_u32 s{sOFF}, s{sOFF}, 16384"), lo, at(m, rel[("dK", 0)]) - 1))
                if loads and not (m == 0 and c.kskip == 0):
                    for i in range(4):
                        gd = at(m, rel[("dK", i)])
                        if i == 0:
                            for t in (f"s_cmp_eq_u32 s{sWIN}, s{sXK}", f"s_cselect_b32 m0, s{sDUM}, s{sM0}"):
                                seq.append((I(t), lo, gd - 1))
                            for t in (f"s_cselect_b32 s{sCUR}, s{sTHR}, s{sKO}",): seq.append((I(t), lo, gd))
                            for t in (f"s_cselect_b32 s{sT}, 0, 0x4000", f"s_add_u32 s{sKO}, s{sKO}, s{sT}"): seq.append((I(t), lo, gd + 3))
                        else: seq.append((I("s_add_u32 m0, m0, 32"), lo, gd - 1))
                        lo = gd + 1
                g1 = max(lo, at(m, rel[("va", 1)]) + 1)
                for t in (f"s_add_u32 s{sWIN}, s{sWIN}, 1", f"s_and_b32 s{sT}, s{sWIN}, 3", f"s_cmp_eq_u32 s{sT}, 3"):
                    seq.append((I(t), lo, at(m, W - 3)))
                seq.append((I(f"s_cselect_b32 s{sD}, s{sDB}, s{sDA}"), g1, at(m, W - 2)))
                if nloop_start <= m < nloop_end:
                    seq.append((I(f"s_cmp_lg_u32 s{sWIN}, {nloop_end}"), g1, at(m, W - 2)))
        if h == 1:
            for k, o in enumerate(self.o_stores(0, 13)):
                gg = wstart[13] + c.o0_pos[0] + k * c.o0_pos[1]
                while G.mem[gg] or any(x.k == "e" for x in G.val[gg]): gg += 1
                G.mem[gg].append(o[2])
        e(*[x for x in early if x.k == "ds"])
        assert all(x.k == "ds" for x in early)
        tm = lambda j: vS + j
        tt = lambda j: vS + 8 + j
        for j in range(5):
            b = tS(0, j)
            e(f"v_max3_f32 v{tm(j)}, v{b}, v{b+1}, v{vNM+4*j}", f"v_max3_f32 v{tt(j)}, v{b+2}, v{b+3}, v{b+4}",
              f"v_max3_f32 v{tm(j)}, v{b+5}, v{b+6}, v{tm(j)}", f"v_max3_f32 v{tm(j)}, v{b+7}, v{tt(j)}, v{tm(j)}")
        self.xlane([tm(j) for j in range(5)], [tt(j) for j in range(5)], "v_max_f32")
        for j in range(5):
            for r in range(4): e(f"v_sub_f32 v{vNM+4*j+r}, 0, v{tm(j)}")
        for j in range(5):
            b = tS(0, j)
            for r in range(0, 8, 2): e(f"v_pk_add_f32 v[{b+r}:{b+r+1}], v[{b+r}:{b+r+1}], v[{vNM+4*j}:{vNM+4*j+1}]")
            dm = refill.pop(0) if (refill and j in (0, 4)) else None
            if dm: e(*dm[0])
            for r in range(8): e(f"v_exp_f32 v{b+r}, v{b+r}")
            if dm: e(dm[2])
        for j in range(5):
            b = tS(0, j)
            for r in range(4): e(f"v_cvt_pk_bf16_f32 v{vP[0]+4*j+r}, v{b+2*r}, v{b+2*r+1}")
            if j in c.ones: continue
            e(f"v_pk_add_f32 v[{b}:{b+1}], v[{b}:{b+1}], v[{b+2}:{b+3}]", f"v_pk_add_f32 v[{b+4}:{b+5}], v[{b+4}:{b+5}], v[{b+6}:{b+7}]",
              f"v_pk_add_f32 v[{b}:{b+1}], v[{b}:{b+1}], v[{b+4}:{b+5}]", f"v_add_f32 v{vL+j}, v{b}, v{b+1}")
        full_o = (h == 1 and c.stop_after != "A")
        if h == 1:
            e("v_lshlrev_b32 v13, 4, v0")
            for j in range(4): e(f"s_add_u32 s{90+j}, s{sOB}, {j*4096}")
            e(f"s_lshr_b32 s3, s{sG}, 3", f"s_mul_i32 s3, s3, {32*1152}", f"s_mul_i32 s{sT}, s{sW}, {8*1152}", f"s_add_u32 s{sT3}, s3, s{sT}")
        if full_o:
            self.dbg_addr(10)
            dload = f"buffer_load_dword v11, v10, {srd(SDBG)}, 0 offen sc1"
            e(I(dload, id=("dbgp",)))
        self.stamp()
        for g in range(len(ms)):
            G.val[g].sort(key=lambda x: x.key or (0, 0, 0, 0))
        if c.wtrace:
            g = wstart[16] - 2
            G.val[g] += [I("v_lshlrev_b32 v11, 2, v0"), I(f"s_add_u32 s99, s{sSTO}, {0x100000 * (h + 1)}"), I(f"buffer_store_dword v10, v11, {srd(SWS)}, s99 offen", k="x")]
        if full_o:
            test = ["v_readlane_b32 s3, v11, 0", f"v_readlane_b32 s{sT2}, v11, 1", "s_and_b32 s3, s3, 0xffff",
                    f"s_lshr_b32 s{sT2}, s{sT2}, 16", f"s_min_u32 s3, s3, s{sT2}", "s_cmp_ge_u32 s3, 4"]
            g = wstart[14] + 3
            G.val[g] += [I(test[0], needs=[("dbgp",)]), I(test[1])]
            G.val[g + 9] += [I(x) for x in test[2:5]]
            G.val[g + 18] += [I(test[5]), I("s_cbranch_scc0 L_sp_dbg"), I("L_sb_dbg:")]
            self.spin("dbg", [dload], test)
        pre = []
        G.place_waits(self.ws, pre)
        G.place_salu(seq)
        self.raw(pre)
        win = [[x.t for x in G.flat(wstart[m], wstart[m+1])] for m in range(16)]
        import re
        for m in range(nloop_start, nloop_end - 1):
            assert len(win[m]) == len(win[nloop_end - 1]), f"window {m} differs"
            for x, y in zip(win[m], win[nloop_end - 1]):
                if x == y: continue
                nx, ny = re.search(r"vmcnt\((\d+)\)", x), re.search(r"vmcnt\((\d+)\)", y)
                assert nx and ny and int(nx.group(1)) >= int(ny.group(1)) and re.sub(r"vmcnt\(\d+\)", "", x) == re.sub(r"vmcnt\(\d+\)", "", y), (m, x, y)
        print(f"head {h}: window est cycles", G.cost(wstart[1], wstart[2]), "instrs", len(win[1]), file=sys.stderr)
        self.raw(G.flat(0, wstart[nloop_start]))
        self.raw([I(f"s_branch L_loop{h}"), I(".p2align 6"), I(f"L_loop{h}:")])
        body = G.flat(wstart[nloop_end - 1], wstart[nloop_end])
        assert body[-1].k == "m", body[-3:]
        self.raw(body)
        self.raw([I(f"s_cbranch_scc1 L_loop{h}")])
        self.checks.append((f"loop{h}", body + body))
        self.raw(fix_hazards(G.flat(wstart[nloop_end], wstart[16])))
        self.stamp()
        self.head_epilogue(h)

    def xlane(self, xs, ts, op):
        e = self.e
        for sw in ("v_permlane32_swap_b32", "v_permlane16_swap_b32"):
            for x, t in zip(xs, ts): e(f"v_mov_b32 v{t}, v{x}")
            if len(xs) < 3: e("s_nop 1")
            for k, (x, t) in enumerate(zip(xs, ts)): e(f"{sw} v{t}, v{x}")
            for x, t in zip(xs, ts): e(f"{op} v{x}, v{x}, v{t}")

    def head_epilogue(self, h):
        e = self.e
        O = lambda j, dt: vO + (j*8 + dt) * 4
        if self.c.ones: e("s_nop 7")
        for j in sorted(self.c.ones, key=lambda j: (j + 1) % 5): e(f"v_accvgpr_read_b32 v{vL+j}, a{aL+4*j}")
        self.xlane([vL + j for j in range(5)], [vS + j for j in range(5)], "v_add_f32")
        e(f"v_add_f32 v10, v{vL}, v{vL+1}", f"v_add_f32 v11, v{vL+2}, v{vL+3}",
          f"v_add_f32 v10, v10, v{vL+4}", "v_add_f32 v10, v10, v11",
          f"v_cmp_nge_f32 vcc, s{sTHR}, v10", "s_cmp_lg_u64 vcc, 0", f"s_cselect_b32 s3, 1, 0",
          f"v_mov_b32 v12, s3", f"s_lshl_b32 s3, s{sW}, 2", f"s_add_u32 s3, s3, {MISC + 2048}", "v_mov_b32 v13, s3",
          I("ds_write_b32 v13, v12", id=("fw", h)))
        e(f"v_add_u32 v9, {SCR}, v{vDMA}")
        e(f"v_xor_b32 v10, 4096, v{vDMA}", f"v_add_u32 v10, {SCR}, v10")
        e(f"v_lshrrev_b32 v11, 1, v{vDMA}", "v_and_b32 v11, 0x1f8, v11", f"s_lshl_b32 s3, s{sW}, 9", f"s_add_u32 s3, s3, {MISC}",
          "v_add_u32 v11, s3, v11", f"v_mov_b32 v12, v{vL+4}", f"v_mov_b32 v13, v{vNM+16}",
          I("ds_write_b64 v11, v[12:13]", id=("lw", h)), "v_xor_b32 v11, 512, v11")
        e(f"s_cmp_eq_u32 s{sPI}, 1", f"s_cbranch_scc1 L_he1_{h}")
        st = (dict((k, list(v)) for k, v in self.ws.q.items()), dict(self.ws.done), dict(self.ws.pos))
        for pi in range(2):
            if pi == 1:
                e(f"L_he1_{h}:")
                self.ws.q, self.ws.done, self.ws.pos = st
            for k in range(4):
                e(I(f"ds_write_b128 v10, {R('v', O(4, 4*(1-pi) + k), 4)} offset:{k*1024}", id=("ow", h, k)))
            if pi == 1:
                e("s_nop 1")
                for r in range(16): e(f"v_mov_b32 v{O(4, 0) + r}, v{O(4, 4) + r}")
            if pi == 0: e("s_branch L_he2_%d" % h)
        e(f"L_he2_{h}:")
        for j in range(4): e(f"v_rcp_f32 v{vL+j}, v{vL+j}")
        e(I("s_barrier", needs=[("ow", h, 3)]))
        e(f"v_mov_b32 v14, {MISC + 2048}")
        e(I(f"ds_read_b128 v[{vS}:{vS+3}], v14", id=("fr", h)))
        e(I(f"ds_read_b64 v[14:15], v11", id=("lr", h)))
        for k in range(4):
            e(I(f"ds_read_b128 {R('v', O(4, 4 + k), 4)}, v9 offset:{k*1024}", id=("or", h, k)))
        e(I(f"v_or3_b32 v{vS}, v{vS}, v{vS+1}, v{vS+2}", needs=[("fr", h)]), f"v_or_b32 v{vS}, v{vS}, v{vS+3}", "s_nop 0",
          f"v_readfirstlane_b32 s3, v{vS}", f"s_andn2_b32 s3, s3, s{sREDO}", f"s_cbranch_scc1 L_redo{h}",
          f"s_mov_b32 s{sREDO}, 0")
        refill = self.dma_kv_static("K", 19) if (h == 0 and "K3" not in self.c.fill2) else []
        e(I("v_min_f32 v11, v13, v15", needs=[("lr", h)]), "v_sub_f32 v13, v11, v13", "v_sub_f32 v15, v11, v15",
          "v_exp_f32 v13, v13", "v_exp_f32 v15, v15", "s_nop 0", "v_mul_f32 v12, v12, v13", "v_fmac_f32 v12, v14, v15",
          "v_rcp_f32 v12, v12", "s_nop 0", "v_mul_f32 v14, v12, v15", "v_mul_f32 v12, v12, v13")
        b0, b1 = O(4, 0), O(4, 4)
        for r in range(0, 16, 2):
            e(f"v_pk_mul_f32 v[{b0+r}:{b0+r+1}], v[{b0+r}:{b0+r+1}], v[12:13] op_sel_hi:[1,0]")
        for r in range(0, 16, 2):
            e(I(f"v_pk_fma_f32 v[{b0+r}:{b0+r+1}], v[{b1+r}:{b1+r+1}], v[14:15], v[{b0+r}:{b0+r+1}] op_sel_hi:[1,0,1]", needs=[("or", h, r // 4)]))
        for r in range(8): e(f"v_cvt_pk_bf16_f32 v{b0+r}, v{b0+2*r}, v{b0+2*r+1}")
        e(f"v_and_b32 v13, 0x3ff, v{vDMA}", f"s_lshl_b32 s3, s{sPI}, 11", f"s_add_u32 s3, s3, s{sOS}")
        if h: e(f"s_add_u32 s3, s3, 73728")
        for k in range(2):
            e(I(f"ds_write_b128 v9, v[{b0+4*k}:{b0+4*k+3}] offset:{k*1024}", id=("pw", h, k)))
            e(I(f"buffer_store_dwordx4 v[{b0+4*k}:{b0+4*k+3}], v13, {srd(SWS)}, s3 offen offset:{k*1024} {self.c.o_flags}", id=("os", h, 4, k)))
        if h == 1:
            for j in range(4): e(f"s_add_u32 s{90+j}, s{sOB}, {73728 + j*4096}")
        for j in range(4):
            e(f"s_add_u32 s3, s{sOB}, {h*73728 + j*4096}")
            for s in range(4):
                b = O(j, 2*s)
                p = (vL + j) & ~1
                sel = "op_sel:[0,1] op_sel_hi:[1,1]" if (vL + j) & 1 else "op_sel_hi:[1,0]"
                for r in range(0, 8, 2):
                    e(f"v_pk_mul_f32 v[{b+r}:{b+r+1}], v[{b+r}:{b+r+1}], v[{p}:{p+1}] {sel}")
                d = 16 + (j*4 + s) * 4
                for r in range(4): e(f"v_cvt_pk_bf16_f32 v{d+r}, v{b+2*r}, v{b+2*r+1}")
                if h == 1 and self.c.o1_epi and self.c.stop_after != "A":
                    k0, k1 = ((j*4 + s) * self.c.o1_epi) // 16, ((j*4 + s + 1) * self.c.o1_epi) // 16
                    for k in range(k0, k1): e(self.o_stores(1, 13)[k][2])
                if self.c.stop_after == "A" and h == 1:
                    e(I(f"buffer_store_dwordx4 v[{d}:{d+3}], v13, {srd(SWS)}, s3 offen offset:{s*1024} sc1", id=("os", h, j, s)))
                if h == 0:
                    dm = refill.pop(0) if (refill and s == 1) else None
                    if dm: e(*dm[0], *dm[1])
                    for r in range(4): e(f"v_accvgpr_write_b32 a{(j*4+s)*4 + r}, v{d+r}")
                    if dm: e(dm[2])
        pub = h == 1 and self.c.stop_after != "A"
        e(I("s_barrier", needs=[("pw", h, 1)] + ([("os", 0, 3, 3)] if pub else [])))
        if pub: self.raw(self.publish(1))
        e(f"s_lshl_b32 s3, s{sPI}, 12", "v_subrev_u32 v9, s3, v9")
        for s in range(4):
            dst = R("a", 64 + 4*s, 4) if h == 0 else R("v", 80 + 4*s, 4)
            e(I(f"ds_read_b128 {dst}, v9 offset:{(s >> 1)*4096 + (s & 1)*1024}", id=("pr", h, s)))
        if h == 0:
            e("s_nop 1")
            for j in range(5): e(f"v_mov_b32 v{vNM+4*j}, 0xff800000")

    def redo(self, h):
        e = self.e
        save = self.ws; self.ws = WaitState()
        e(f"L_redo{h}:", "s_waitcnt vmcnt(0) lgkmcnt(0)", "s_barrier", f"s_mov_b32 s{sREDO}, 1")
        self.kv_addr_init()
        for j in range(5): e(f"v_mov_b32 v{vNM+4*j}, 0xff800000")
        e(f"s_mov_b32 s{sOFF}, {16*h*16384}", f"s_mov_b32 s{sD}, s{sH}", f"L_rl{h}:")
        for i in range(4):
            e(f"s_add_u32 m0, s{sKVW}, {32*i}", "s_nop 0",
              f"buffer_load_dwordx4 v{vDMA}, {srd(SK)}, s{sOFF} offen offset:{i*1024} lds")
        e("s_waitcnt vmcnt(0)", "s_barrier")
        for half in range(2):
            for T in range(2):
                for s in range(4): e(self.kread(h, 0, T, s))
            e("s_waitcnt lgkmcnt(0)", f"v_add_u32 v{vKA}, s{sD}, v{vKA}", f"s_sub_u32 s{sD}, 0, s{sD}")
            for j in range(5):
                for T in range(2):
                    for s in range(4):
                        e(mfma(("v", vO + (j*2+T)*4), ("a", aK + 16*T + 4*s), ("a", aQ[h] + (j*4+s)*4), 0 if s == 0 else None))
            e("s_nop 7")
            for j in range(5):
                b = vO + j*8
                for r in range(0, 8, 2): e(f"v_max3_f32 v{vNM+4*j}, v{b+r}, v{b+r+1}, v{vNM+4*j}")
        e("s_barrier", f"s_add_u32 s{sOFF}, s{sOFF}, 16384", f"s_cmp_lg_u32 s{sOFF}, {16*(h+1)*16384}", f"s_cbranch_scc1 L_rl{h}")
        for M in range(16*h, 16*h + 4):
            self.emit_dma_straight(self.dma_kv_static("K", M) + self.dma_kv_static("V", M))
        e("s_waitcnt vmcnt(0)", "s_barrier", f"s_branch L_head{h}")
        self.ws = save

    def wo_hh(self, i):
        return [(0, 0), (0, 1), (1, 0), (2, 0), (3, 0), (1, 1), (2, 1), (3, 1)][i]
    def dma_wo(self, i, vbase):
        p, par = self.wo_hh(i)
        ops = []
        for t in range(9):
            pre = [I(f"s_add_u32 m0, s{sOM0}, {(i % 4)*OST + t*1024}")] if t % 4 == 0 else []
            same = [I(f"s_add_u32 s{sT3}, s{sWR+p}, {par*128*1152}")] if t == 0 else []
            ops.append((pre, same, I(f"buffer_load_dwordx4 v{vbase[t]}, {srd(SWO)}, s{sT3} offen offset:{(t % 4)*1024} {self.c.wo_flags} lds", id=("wo", i, t)), []))
        return ops
    def oacc(self, j, i):
        if j < 4: return ("v", 96 + (j*9 + i) * 4)
        return ("v", 240 + 4*i) if i < 4 else ("a", 160)

    def phase_o(self):
        e = self.e; c = self.c
        vLN, vA1, vPL = 1, 2, 3
        vA0 = 12
        vA0 = [13, 14, 0, 12]
        vWO = 4
        vWO, vPL = 3, 15
        aA, NR = 164, 8
        e(f"v_lshrrev_b32 v12, 2, v0", "v_mul_u32_u24 v12, 288, v12", "v_and_b32 v14, 3, v0", "v_lshl_add_u32 v12, v14, 3, v12",
          f"v_lshlrev_b32 v{vLN}, 4, v0",
          f"s_lshl_b32 s3, s{sPI}, 7", "s_xor_b32 s3, s3, 128", f"v_add_u32 v{vA1}, s3, v12", f"s_mul_i32 s{sT}, s{sPI}, 160")
        for i in range(4):
            e(f"s_xor_b32 s3, s{sKQ}, {i}", "s_lshl_b32 s3, s3, 5", f"s_add_u32 s3, s3, s{sT}", f"v_add_u32 v{vA0[i]}, s3, v12")
        for t in range(9): e(f"v_accvgpr_read_b32 v{vWO+t}, a{240+t}")
        Bbuf = lambda i: ("v", 16) if i == 1 else (("a", 0) if (i == 0 or i % 2 == 1) else ("a", 80))
        ms = []; start = {}; last = {}
        if c.chain_o: NR = 12
        def om(i, s, n, j):
            f = 36*i + (9*s + n if not c.chain_o else 4*n + s)
            start.setdefault(f, len(ms)); last[f] = len(ms)
            k, b = Bbuf(i)
            nd = [("oa", f, 0), ("oa", f, 1)]
            if c.chain_o and s == 0: nd += [("oa", f + 3, 1)]
            if i >= 2: nd.append(("ob", i, s if not c.chain_o else 3, j))
            elif j == 4: nd.append(("pr", i, s))
            ms.append(I(mfma(self.oacc(j, n), ("a", aA + 4*(f % NR)), (k, b + (j*4+s)*4), 0 if (i == 0 and s == 0) else None), needs=nd))
        for i in range(8):
            if c.chain_o:
                for n in range(9):
                    for j in range(5 if n <= 4 else 4):
                        for s in range(4): om(i, s, n, j)
            else:
                for s in range(4):
                    for n in range(9):
                        for j in range(5 if n <= 4 else 4): om(i, s, n, j)
        G = Gaps(ms)
        def aread(f, v):
            i, r = divmod(f, 36); s, n = divmod(r, 9) if not c.chain_o else (r % 4, r // 4)
            va, off = (vA0[n], 0) if n < 4 else (vA1, 32*(n-4))
            return I(f"ds_read_b64_tr_b16 {R('a', aA + 4*(f % NR) + 2*v, 2)}, v{va} offset:{s*9216 + v*4608 + off}", id=("oa", f, v))
        pre = [I("s_barrier", needs=[("wo", 0, 8), ("pr", 1, 3)])]
        for i in range(8):
            for r in range(36):
                for v in range(2):
                    f = 36*i + r
                    g = 164*i - 13 + ((2*r + v) * 152) // 72
                    if c.chain_o:
                        n = r // 4
                        g = (start[36*i + 4*n - 4] - 4 + 2 * (2*(r % 4) + v)) if n else 164*i - 16 + (2*r + v)
                        if n >= 6: g = start[36*i + 4*n - 4] - 4 - 3 * (n - 5) + (3 * (2*(r % 4) + v)) // 2
                    if g < 0: pre.append(aread(f, v)); continue
                    assert g <= start[f - (f % 4 if c.chain_o else 0)] - 8, (f, g, start[f])
                    assert f < NR or g >= last[f - NR], (f, g)
                    G.mem[g].append(aread(f, v))
        seq = []
        for i in range(8):
            g0 = 164 * i
            if i < 7:
                d = OST if i % 4 != 3 else -3 * OST
                gb = 148 if not c.chain_o else 145
                for k, va in enumerate(vA0 + [vA1]):
                    G.val[g0 + gb - 8 + k].append(I(f"v_add_u32 v{va}, {d & 0xffffffff:#x}, v{va}"))
                G.waitneeds[g0 + gb] += [("oa", 36*i + 35, 1), ("wo", i + 1, 8)]
                if i == c.pub2: G.waitneeds[g0 + gb] += [("os", 1, 3, 3)]
                G.sal[g0 + gb + 1].append(I("s_barrier"))
                self.stamp_gap(G, g0 + gb + 1)
                if i == c.pub2: G.val[g0 + gb + 2] += self.publish(2)
            ops = []
            lo = g0 + 2
            vW = [vWO + t for t in range(9)]
            wo = sum([self.dma_wo(k, vW) for k in range(c.wo_pre, 8) if max(0, k - c.wo_lead) == i], [])
            assert c.o1_epi + sum(c.o1_split) == 16
            st = self.o_stores(1, vLN)[c.o1_epi + sum(c.o1_split[:i]):c.o1_epi + sum(c.o1_split[:i+1])] if i < 3 else []
            if c.wo_even:
                allw = sum([self.dma_wo(k, vW) for k in range(c.wo_pre, 8)], [])
                cum = [0] + list(c.wo_even); assert sum(cum) == len(allw)
                wo = allw[sum(cum[:i+1]):sum(cum[:i+2])]
                for o in wo: assert o[2].id[1] - 4 < i < o[2].id[1]
            ob = []
            if 1 <= i < 7:
                p, par = self.wo_hh(i + 1)
                k, b = Bbuf(i + 1)
                for s, j in ([(s, j) for s in range(4) for j in range(5)] if not c.chain_o else [(s, j) for j in range(5) for s in range(4)]):
                    if True:
                        same = [I(f"s_add_u32 s{sT2}, s{sT}, {j*4096}")] if j < 4 else [I(f"s_add_u32 s{sT2}, s3, 0")]
                        if c.chain_o and s: same = []
                        ob.append(([], same, I(f"buffer_load_dwordx4 {R(k, b + (j*4+s)*4, 4)}, v{vLN}, {srd(SWS)}, s{sT2} offen offset:{s*1024} {c.ob_flags}", id=("ob", i + 1, s, j)), []))
                need = 1 + par
                load = f"buffer_load_dword v{vPL}, off, {srd(SWS)}, s{sFP+p-1} sc1"
                test = [f"v_readfirstlane_b32 s{sT2}, v{vPL}", f"s_cmp_ge_u32 s{sT2}, {need}"]
                gp = g0 - 164 + (90 if i > 1 else 2)
                while G.mem[gp]: gp += 1
                G.mem[gp].append(I(load, id=("poll", i)))
                G.val[g0] += [I(test[0], needs=[("poll", i)]), I(test[1]), I(f"s_cbranch_scc0 L_sp_o{i}"), I(f"L_sb_o{i}:"),
                              I(f"s_add_u32 s{sT}, s{sOB}, s{sOP+p-1}"), I(f"s_add_u32 s3, s{sOS}, s{sOP+p-1}")]
                if par: G.val[g0] += [I(f"s_add_u32 s{sT}, s{sT}, 73728"), I(f"s_add_u32 s3, s3, 73728")]
                self.spin(f"o{i}", [load], test)
            tim = [(g0 + 3 + k * c.bstep, o) for k, o in enumerate(ob)] + [(g0 + 6 + (k * 130) // len(wo), o) for k, o in enumerate(wo)]
            tim += [(g0 + 1 + (k * c.st_span) // len(st), o) for k, o in enumerate(st)]
            tim.sort(key=lambda t: t[0])
            g = g0
            for t, (p_, same, vm, post) in tim:
                g = max(g + 2, t)
                while G.mem[g]: g += 1
                assert g < g0 + 160, (i, g - g0)
                G.mem[g].append(vm)
                for x in p_: seq.append((x, g - 1, g - 1))
                for x in same: seq.append((x, g - 1, g))
        self.e(*pre)
        pre2 = []
        G.place_waits(self.ws, pre2)
        G.place_salu(seq)
        self.raw(pre2)
        self.raw(G.flat())
        print("phase O est cycles", G.cost(), file=sys.stderr)
        self.stamp()
        def pk(dst, t):
            return [f"v_cvt_pk_bf16_f32 v{dst}, v{t}, v{t+1}", f"v_cvt_pk_bf16_f32 v{dst+1}, v{t+2}, v{t+3}"]
        e(f"s_mul_i32 s{sT}, s{sKQ}, {4*5120}", f"s_add_u32 s{sT}, s{sT}, s{sPB}")
        for j in range(1, 4):
            e(f"s_xor_b32 s3, s{sKQ}, {j}", f"s_mul_i32 s3, s3, {16*5120}", f"s_add_u32 s3, s3, s{sT}")
            tl = [self.oacc(4, j)[1]] + [self.oacc(j, n)[1] for n in range(9)]
            for k in range(5):
                d = 16 + ((j-1)*5 + k) * 4
                e(*pk(d, tl[2*k]), *pk(d + 2, tl[2*k+1]))
                if k == 4: e("s_add_u32 s3, s3, 4096")
                e(I(f"buffer_store_dwordx4 v[{d}:{d+3}], v{vLN}, {srd(SWS)}, s3 offen offset:{(k % 4)*1024} {c.p_flags}", id=("ps", j, k)))
        for r in range(4): e(f"v_accvgpr_read_b32 v{76+r}, a{160+r}")
        e(f"v_lshrrev_b32 v2, 1, v{vLN}")
        e(*pk(80, 76))
        e(f"s_lshr_b32 s3, s{sG}, 3", f"s_lshl_b32 s{sT2}, s{sBR}, 5", f"s_add_u32 s3, s3, s{sT2}", "s_lshl_b32 s3, s3, 13",
          f"s_lshl_b32 s{sT2}, s{sW}, 9", f"s_add_u32 s3, s3, s{sT2}", f"s_add_u32 s{sT3}, s3, {WS_SH}",
          f"s_lshl_b32 s3, s{sKQ}, 11", f"s_add_u32 s3, s3, s{sT3}")
        e(I(f"buffer_store_dwordx2 v[80:81], v2, {srd(SWS)}, s3 offen sc1", id=("ps", 4, 0)))
        e(f"v_lshrrev_b32 v3, 4, v{vLN}", "v_lshrrev_b32 v4, 4, v3", "v_bfe_u32 v5, v3, 2, 2", "v_cmp_eq_u32 vcc, v4, v5",
          "v_and_b32 v6, 1, v3", "v_lshlrev_b32 v6, 4, v6", "v_mov_b32 v7, 0x3f80", "v_lshlrev_b32 v6, v6, v7",
          "v_cndmask_b32 v6, 0, v6, vcc", "v_and_b32 v7, 2, v3", "v_cmp_eq_u32 vcc, 0, v7",
          "v_mov_b32 v84, 0", "v_mov_b32 v85, 0", "v_cndmask_b32 v86, 0, v6, vcc", "v_sub_u32 v87, v6, v86",
          "v_mov_b32 v88, 0", "v_mov_b32 v89, 0")
        e("v_and_b32 v5, 15, v3", "v_mul_u32_u24 v5, 2304, v5", "v_lshl_add_u32 v5, v4, 3, v5")
        e(f"v_mov_b32 v8, s{sFQ}", f"v_writelane_b32 v8, s{sFQ+1}, 1", f"v_writelane_b32 v8, s{sFQ+2}, 2")
        e(I("s_barrier", needs=[("ps", 4, 0)]))
        self.raw(self.publish(3))
        self.stamp()
        load = f"buffer_load_dword v9, v8, {srd(SWS)}, 0 offen sc1"
        test = ["v_cmp_gt_u32 vcc, 3, v9", "s_cmp_eq_u64 vcc, 0"]
        e(load, "s_waitcnt vmcnt(0)", *test, "s_cbranch_scc0 L_sp_fin", "L_sb_fin:")
        self.spin("fin", [load], test)
        self.stamp()
        e(f"s_mul_i32 s{sT}, s{sKQ}, {16*5120}", f"s_add_u32 s{sT}, s{sT}, s{sPB}")
        for j in range(1, 4):
            e(f"s_xor_b32 s{sT2}, s{sKQ}, {j}", f"s_mul_i32 s3, s{sT2}, {4*5120}", f"s_add_u32 s3, s3, s{sT}")
            for k in range(5):
                d = 16 + ((j-1)*5 + k) * 4
                if k == 4: e("s_add_u32 s3, s3, 4096")
                e(I(f"buffer_load_dwordx4 v[{d}:{d+3}], v{vLN}, {srd(SWS)}, s3 offen offset:{(k % 4)*1024} sc1", id=("pl", j, k)))
            e(f"s_lshl_b32 s3, s{sT2}, 11", f"s_add_u32 s3, s3, s{sT3}")
            e(I(f"buffer_load_dwordx2 v[{132+4*j}:{133+4*j}], v2, {srd(SWS)}, s3 offen sc1", id=("pl", j, 5)))
            e(f"v_mov_b32 v{134+4*j}, 0", f"v_mov_b32 v{135+4*j}, 0")
        for j in range(1, 4):
            tl = [self.oacc(4, 0)] + [self.oacc(0, (n ^ j) if n < 4 else n) for n in range(9)]
            for k in range(5):
                d = 16 + ((j-1)*5 + k) * 4
                e(I(mfma(tl[2*k], ("v", 86), ("v", d)), needs=[("pl", j, k)]), mfma(tl[2*k+1], ("v", 84), ("v", d)))
            e(I(mfma(("v", 76), ("v", 86), ("v", 132 + 4*j)), needs=[("pl", j, 5)]))
        e(f"s_mul_i32 s{sT}, s{sBR}, 1152", f"s_mul_i32 s3, s{sHP}, 288", f"s_add_u32 s{sT}, s{sT}, s3",
          f"s_mul_i32 s3, s{sB}, {288*2304}", f"s_add_u32 s{sT}, s{sT}, s3",
          f"s_lshl_b32 s3, s{sROW+4}, 1", f"s_add_u32 s{sT3}, s{sT}, s3",
          f"s_lshl_b32 s3, s{sROW}, 1", f"s_add_u32 s{sT}, s{sT}, s3", f"s_mul_i32 s{sD}, s{sPI}, 160")
        t = self.oacc(4, 0)[1]
        e(*pk(t, t), f"s_lshl_b32 s3, s{sKQ}, 5", f"s_add_u32 s3, s3, s{sD}", f"s_add_u32 s3, s3, s{sT3}",
          f"buffer_store_dwordx2 v[{t}:{t+1}], v5, {srd(SOUT)}, s3 offen {c.out_flags}")
        for n in range(9):
            t = self.oacc(0, n)[1]
            e(*pk(t, t))
            if n < 4:
                e(f"s_xor_b32 s3, s{sKQ}, {n}", "s_lshl_b32 s3, s3, 5", f"s_add_u32 s3, s3, s{sD}", f"s_add_u32 s3, s3, s{sT}")
                off = 0
            else:
                if n == 4: e(f"s_lshl_b32 s3, s{sPI}, 7", "s_xor_b32 s3, s3, 128", f"s_add_u32 s3, s3, s{sT}")
                off = 32 * (n - 4)
            e(f"buffer_store_dwordx2 v[{t}:{t+1}], v5, {srd(SOUT)}, s3 offen offset:{off} {c.out_flags}")
        e(f"s_cmp_eq_u32 s{sPI}, 1", "s_cbranch_scc1 L_fin", *pk(76, 76), f"v_cmp_eq_u32 vcc, s{sKQ}, v4",
          "s_and_saveexec_b64 s[90:91], vcc", f"buffer_store_dwordx2 v[76:77], v5, {srd(SOUT)}, s{sT3} offen offset:128 {c.out_flags}",
          "s_mov_b64 exec, s[90:91]", "L_fin:")

    def build(self):
        self.setup()
        self.phase_q()
        self.attn_schedule()
        self.head(0)
        self.head(1)
        self.stamp()
        if self.c.stop_after != "A":
            self.phase_o()
        self.e("s_waitcnt vmcnt(0) lgkmcnt(0)")
        self.stamp()
        if self.c.amp is not None:
            print("n stamps", self.nstamp, file=sys.stderr)
            if self.c.amp[0] < 0: self.e("s_mov_b32 s96, s98")
            self.e(f"s_and_b32 s3, s{sG}, {self.c.amp[1]}", f"s_cmp_lg_u32 s3, {self.c.amp[2]}", "s_cbranch_scc1 L_end",
                   "s_sub_u32 s96, s96, s98", "s_mul_i32 s96, s96, 4", "s_add_u32 s96, s96, 20000", "L_amp:", "s_memrealtime s[100:101]", "s_waitcnt lgkmcnt(0)",
                   "s_sub_u32 s100, s100, s98", "s_cmp_lt_u32 s100, s96", "s_cbranch_scc1 L_amp")
        self.e("s_endpgm")
        self.raw(self.tailcode)
        self.redo(0)
        self.redo(1)
        self.e("L_end:")
        probs = check_hazards(self.out, "main")
        for nm, seq in self.checks: probs += check_hazards(seq, nm)
        for p in probs: print(p, file=sys.stderr)
        assert not probs
        hdr = open("cdna_kernels/" + NAME[:-7] + ".s.ref").read().split("; Override launch")[0]
        txt = hdr + f"; @launch grid=(256,1,1) block=(256,1,1) lds={LDS_BYTES}\n"
        txt += f""".amdgcn_target "amdgcn-amd-amdhsa--gfx950"
.text
.globl {NAME}
.p2align 8
.type {NAME},@function
{NAME}:
"""
        for x in self.out:
            if self.c.no_dma and x.k == "vm" and f"s{sOFF} offen" in x.t: continue
            txt += (x.t if x.k == "l" else "    " + " ".join(x.t.split())) + "\n"
        txt += f"""    s_endpgm
.section .rodata,"a"
.p2align 6
.amdhsa_kernel {NAME}
  .amdhsa_next_free_vgpr 512
  .amdhsa_next_free_sgpr 102
  .amdhsa_accum_offset 256
  .amdhsa_group_segment_fixed_size 0
  .amdhsa_kernarg_size 104
  .amdhsa_user_sgpr_count 2
  .amdhsa_user_sgpr_kernarg_segment_ptr 1
  .amdhsa_system_sgpr_workgroup_id_x 1
.end_amdhsa_kernel
"""
        return txt

def make(**kw):
    c = Cfg()
    for k, v in kw.items():
        assert hasattr(c, k), k
        setattr(c, k, v)
    return Gen(c).build()

if __name__ == "__main__":
    kw = {}
    out = sys.argv[1]
    for a in sys.argv[2:]:
        k, v = a.split("=", 1)
        try: v = eval(v)
        except Exception: pass
        kw[k] = v
    open(out, "w").write(make(**kw))
```

```python
import re

class I:
    __slots__ = ("t", "k", "id", "needs", "key")
    def __init__(self, t, k=None, id=None, needs=None, key=None):
        self.t = t
        self.k = k or kind_of(t)
        self.id = id
        self.needs = list(needs) if needs else []
        self.key = key
    def __repr__(self):
        return self.t

TRANS = ("v_exp_f32", "v_log_f32", "v_rcp_f32", "v_rsq_f32", "v_sqrt_f32")
def kind_of(t):
    op = t.split()[0]
    if op.endswith(":"): return "l"
    if op.startswith("."): return "x"
    if op.startswith(";"): return "x"
    if op.startswith("v_mfma"): return "m"
    if op in TRANS: return "e"
    if op.startswith("v_"): return "v"
    if op.startswith("ds_"): return "ds"
    if op.startswith("buffer_") or op.startswith("global_"): return "vm"
    if op == "s_waitcnt": return "w"
    if op == "s_barrier": return "b"
    if op.startswith("s_cbranch") or op == "s_branch": return "br"
    if op.startswith("s_"): return "s"
    raise ValueError(t)

def R(k, a, n=1):
    return f"{k}{a}" if n == 1 else f"{k}[{a}:{a+n-1}]"

def mfma(d, a, b, c=None):
    cs = R(d[0], d[1], 4) if c is None else ("0" if c == 0 else R(c[0], c[1], 4))
    return f"v_mfma_f32_16x16x32_bf16 {R(d[0], d[1], 4)}, {R(a[0], a[1], 4)}, {R(b[0], b[1], 4)}, {cs}"

class WaitState:
    def __init__(self):
        self.q = {"ds": [], "vm": []}
        self.done = {"ds": 0, "vm": 0}
        self.pos = {}
    def issue(self, ins):
        q = self.q[ins.k]
        q.append(ins.id)
        if ins.id is not None:
            self.pos[ins.id] = (ins.k, len(q))
    def need(self, ids):
        want = {}
        for i in ids:
            if i not in self.pos:
                raise KeyError(f"need of un-issued op {i}")
            k, p = self.pos[i]
            if p > self.done[k]:
                want[k] = max(want.get(k, 0), p)
        if not want: return None
        parts = []
        for k, nm, mx in (("vm", "vmcnt", 63), ("ds", "lgkmcnt", 15)):
            if k in want:
                n = min(len(self.q[k]) - want[k], mx)
                self.done[k] = len(self.q[k]) - n
                parts.append(f"{nm}({n})")
        return "s_waitcnt " + " ".join(parts)
    def explicit(self, text):
        for k, nm in (("vm", "vmcnt"), ("ds", "lgkmcnt")):
            m = re.search(nm + r"\((\d+)\)", text)
            if m:
                self.done[k] = max(self.done[k], len(self.q[k]) - int(m.group(1)))

def linear_waits(ins, ws):
    out = []
    for x in ins:
        if x.needs:
            w = ws.need(x.needs)
            if w: out.append(I(w))
        if x.k == "w": ws.explicit(x.t)
        if x.k in ("ds", "vm"): ws.issue(x)
        out.append(x)
    return out

class Gaps:
    def __init__(self, ms):
        self.ms = ms
        n = len(ms)
        self.sal = [[] for _ in range(n)]
        self.mem = [[] for _ in range(n)]
        self.val = [[] for _ in range(n)]
        self.waitneeds = [[] for _ in range(n)]
    def place_waits(self, ws, pre):
        n = len(self.ms)
        w = ws.need(self.ms[0].needs)
        if w: pre.append(I(w))
        for g in range(n):
            needs = list(self.waitneeds[g])
            for x in self.mem[g]: needs += x.needs
            for x in self.val[g]: needs += x.needs
            if g + 1 < n: needs += self.ms[g + 1].needs
            w = ws.need(needs)
            if w: self.sal[g].insert(0, I(w))
            for x in self.mem[g]: ws.issue(x)
    def unify_waits(self, starts, n):
        for r in range(n):
            cnt = {}
            for a in starts:
                for x in self.sal[a + r]:
                    if x.k == "w":
                        for nm, v in re.findall(r"(vmcnt|lgkmcnt)\((\d+)\)", x.t): cnt[nm] = min(cnt.get(nm, 99), int(v))
            if not cnt: continue
            t = "s_waitcnt " + " ".join(f"{nm}({cnt[nm]})" for nm in ("vmcnt", "lgkmcnt") if nm in cnt)
            for a in starts:
                self.sal[a + r] = [I(t)] + [x for x in self.sal[a + r] if x.k != "w"]
    def place_salu(self, seq):
        last = -1
        for x, lo, hi in seq:
            g0 = max(lo, last)
            g = g0
            while g <= hi and self.sal[g]: g += 1
            if g > hi:
                g = g0
                assert g <= hi, (x, lo, hi, last)
            self.sal[g].append(x)
            last = g
    def flat(self, a=0, b=None):
        out = []
        for g in range(a, len(self.ms) if b is None else b):
            out.append(self.ms[g])
            out += self.sal[g] + self.mem[g] + self.val[g]
        return out
    def cost(self, a=0, b=None):
        tot = 0
        for g in range(a, len(self.ms) if b is None else b):
            c = 8 + 4 * max(0, len(self.sal[g]) - 1)
            for x in self.mem[g]: c += 8 if x.k == "vm" else 4
            for x in self.val[g]: c += 8 if x.k == "e" else 4
            tot += max(16, c)
        return tot

_reg = re.compile(r"\b([vas])(?:(\d+)|\[(\d+):(\d+)\])")
def regs(tok):
    out = set()
    for m in _reg.finditer(tok):
        k = m.group(1)
        if m.group(2) is not None: out.add((k, int(m.group(2))))
        else: out.update((k, i) for i in range(int(m.group(3)), int(m.group(4)) + 1))
    if re.search(r"\bvcc\b", tok): out.add(("s", "vcc"))
    if re.search(r"\bm0\b", tok): out.add(("s", "m0"))
    if re.search(r"\bexec\b", tok): out.add(("s", "exec"))
    return out

def rw(x):
    t = x.t.split(";")[0].strip()
    op, _, rest = t.partition(" ")
    ops = [o.strip() for o in rest.split(",")] if rest else []
    k = x.k
    if k in ("l", "x", "w", "b", "br"): return set(), set(), {}
    if k == "m":
        return regs(ops[0]), regs(ops[1]) | regs(ops[2]) | regs(ops[3]), {"A": regs(ops[1]) | regs(ops[2]), "C": regs(ops[3])}
    if k == "ds":
        if op.startswith("ds_read"): return regs(ops[0]), regs(ops[1]), {}
        return set(), set().union(*[regs(o) for o in ops]), {}
    if k == "vm":
        if not ops: return set(), set(), {}
        if " lds" in t: return set(), set().union(*[regs(o) for o in ops]) | {("s", "m0")}, {}
        if "load" in op: return regs(ops[0]), set().union(*[regs(o) for o in ops[1:]]), {}
        if op.startswith("global_store"):
            return set(), set().union(*[regs(o) for o in ops]), {"data": regs(ops[1])}
        return set(), set().union(*[regs(o) for o in ops]), {"data": regs(ops[0])}
    if k == "s":
        if op.startswith("s_cmp") or op in ("s_nop", "s_sleep", "s_endpgm", "s_setprio"):
            return set(), set().union(set(), *[regs(o) for o in ops]), {}
        w = regs(ops[0])
        if "saveexec" in op: w |= {("s", "exec")}
        return w, set().union(set(), *[regs(o) for o in ops[1:]]), {}
    if "permlane" in op:
        a = regs(ops[0]) | regs(ops[1]); return a, a, {}
    w = regs(ops[0]); r = set().union(set(), *[regs(o) for o in ops[1:]])
    if op.startswith("v_fmac") or op.startswith("v_writelane"): r |= w
    return w, r, {}

def fix_hazards(ins):
    ins = list(ins)
    while True:
        p = check_hazards(ins, raw=True)
        if not p: return ins
        x, short = p[0]
        k = next(i for i, y in enumerate(ins) if y is x)
        ins.insert(k, I(f"s_nop {short-1}"))

def check_hazards(ins, name="", raw=False):
    seq = [x for x in ins if x.k not in ("l", "x")]
    info = [rw(x) for x in seq]
    probs = []
    for i, x in enumerate(seq):
        w, r, ex = info[i]
        op = x.t.split()[0]
        dist = 0
        for j in range(i - 1, max(-1, i - 24), -1):
            y = seq[j]; yw, yr, yex = info[j]
            yop = y.t.split()[0]
            need = 0
            isv = x.k in ("v", "e")
            if y.k in ("v", "e"):
                if x.k == "m" and yw & r: need = 2
                if isv and "permlane" in op and yw & r: need = 2
                if isv and "dpp" in x.t and yw & r: need = 2
                if op in ("v_readfirstlane_b32", "v_readlane_b32") and yw & r: need = max(need, 1)
                if y.k == "e" and x.k == "v" and yw & r: need = max(need, 1)
                ysg = {q for q in yw if q[0] == "s"}
                if ysg & r:
                    if x.k == "vm": need = max(need, 5)
                    elif isv: need = max(need, 2)
            if y.k == "m":
                if x.k == "m":
                    if yw & ex["A"]: need = 8
                    elif yw & ex["C"] and yw != ex["C"]: need = 6
                    elif yw & w and yw != ex["C"]: need = 6
                elif x.k in ("v", "e", "ds", "vm"):
                    if yw & (r | w): need = 8
                    if isv and yex["C"] & w: need = max(need, 3)
            if y.k == "vm" and "data" in yex and ("x4" in yop or "x3" in yop) and yex["data"] & w:
                need = max(need, 2 if isv else 1)
            if y.k == "s" and ("s", "m0") in yw and x.k == "vm" and " lds" in x.t: need = max(need, 1)
            if need > dist:
                probs.append((x, need - dist) if raw else f"{name}: hazard need {need} have {dist}: [{y.t}] -> [{x.t}]")
            dist += (int(y.t.split()[1]) + 1) if yop == "s_nop" else 1
            if dist >= 12: break
    return probs


def check_scc(ins, name=""):
    probs = []; last = None; used = True; prev = None
    nowrite = ("s_mov", "s_cselect", "s_mul_i32", "s_nop", "s_load", "s_mem", "s_getpc", "s_sleep", "s_endpgm", "s_setprio")
    for x in ins:
        op = x.t.split()[0]
        if x.k == "l" and not op.startswith(("L_sb", "L_pub", "L_pc", "L_qepi", "L_hepi")): last = None; used = True
        if x.k not in ("s", "br"): continue
        reads = op.startswith(("s_cselect", "s_cbranch_scc", "s_addc", "s_subb"))
        if reads:
            if last is not None and not last.t.startswith(("s_cmp", "s_bitcmp")) and last is not prev:
                probs.append(f"{name}: scc reader [{x.t}] after [{last.t}]")
            used = True
        if x.k == "s" and not op.startswith(nowrite):
            if not used: probs.append(f"{name}: compare [{last.t}] clobbered by [{x.t}]")
            last = x; used = not op.startswith(("s_cmp", "s_bitcmp"))
        prev = x
    return probs
```

```python
import sys, struct, math
from asmlib import *

NAME = "concat_heads__mha_block_cached__gqa_block_cached__near_ridge_kernel"
def f2u(x): return struct.unpack("<I", struct.pack("<f", x))[0]

class Cfg:
    stamps = False
    stop_after = None
    kv_flags = "nt"
    x_flags = ""
    wq_flags = ""
    wo_flags = ""
    thr = 2.0 ** 30
    backlog = 30
    code_prefetch = True
    nfirst = 22
    touch13 = True
    o1_split = (10, 0, 0)
    touch_flags = ''
    o1_epi = 6
    wo_even = (0, 6, 8, 8, 8, 8, 7, 0)
    st_span = 136
    poll1 = 2
    ws_off = 0
    touch_dist = False
    touch_win = 13
    touchq = False
    kmask = (2, 2)
    vmask = (2, 2)
    stag = 3
    vpos = (4, 10)
    kpos = (8, 18)
    touch_pos = 40
    wo_pos = (60, 9)
    wq8 = False
    diag_nopoll = False
    diag_noo1 = False
    retouch = True
    o0_pos = (110, 12)
    ob_flags = 'sc1'
    p_flags = 'sc1'
    out_flags = ''
    nx0 = True
    bstep = 7
    pub2 = 1
    ones = (0, 1, 2, 3, 4)
    edelay = 5
    cnt = [3, 3, 3, 3, 3, 3, 3, 3, 3, 5]
    onepos = (2, 5, 9, 9)
    wtrace = False
    fill = {15: 'K0', 16: 'K1', 17: 'K2 V3'}
    loop_q = True
    o_flags = 'sc1'
    amp = None
    kv_same = False
    no_dma = False

SX, SWQ, SK, SV, SWO, SWS, SOUT, SDBG = 4, 8, 12, 16, 20, 24, 28, 32
sW, sPI, sKQ, sB, sHP, sBR = 36, 37, 38, 39, 40, 41
sROW = 42
sH, sDA, sDB, sD, sM0, sOFF, sT, sT2 = 47, 48, 49, 50, 51, 52, 53, 54
sWM0 = 55
sC = 56
sTHR, sXK, sWK, sXM0, sREDO, sKVW = 58, 59, 60, 61, 62, 63
sOB = 64
sOS = 65
sG = 66
sST = 68
sSTO = 70
sFL = 71
sFP = 72
sFQ = 75
sOP = 78
sWR = 81
sPB = 85
sOM0 = 86
sT3 = 87
sSPIN = 88
sKO, sWIN, sDUM, sCUR = 89, 94, 95, 67
PITCH = 17408
VBASE = 4 * PITCH
XB = (121856, 80896)
SCR = 8 * PITCH
MISC = 9 * PITCH
LDS_BYTES = 163840
HALF = 8448
WS_O = 0
WS_PART = 0x2800000
WS_SH = 0x3e00000
WS_FLAG = 0x3f00000
WS_STAMP = 0x4000000
OST = 36864
WS_BYTES = 292618240
vDMA, vKA, vVA = 1, 2, 3
vL = 4
vT = 9
vNM = 16
vS = 36
NS = 6
vP = (60, 80)
vO = 96
vXD, vWD, vXR, vWR0, vWR1 = 4, 5, 6, 7, 8
aQ = (0, 80)
aK = 160
aV = 192
NV = 4
aL = 208
aONE = 228

def srd(n): return f"s[{n}:{n+3}]"

class Gen:
    def __init__(self, cfg):
        self.c = cfg
        self.out = []
        self.ws = WaitState()
        self.nstamp = 0
        self.tailcode = []
        self.checks = []
    def e(self, *ts):
        for t in ts:
            for line in (t.split("\n") if isinstance(t, str) else [t]):
                if isinstance(line, str):
                    line = line.strip()
                    if not line: continue
                    line = I(line)
                self.out += linear_waits([line], self.ws)
    def raw(self, ins):
        self.out += ins
    def stamp_ins(self):
        k = self.nstamp; self.nstamp += 1
        return [I(x) for x in (f"s_memtime s[{sST}:{sST+1}]", "s_memrealtime s[96:97]", "s_waitcnt lgkmcnt(0)",
               f"v_accvgpr_write_b32 a252, s{sST}", f"v_accvgpr_write_b32 a253, s96",
               f"buffer_store_dwordx2 a[252:253], off, {srd(SWS)}, s{sSTO} offset:{k*8}")]
    def stamp(self):
        if self.c.amp is not None:
            k = self.nstamp; self.nstamp += 1
            if k == self.c.amp[0]: self.e("s_memrealtime s[96:97]", "s_waitcnt lgkmcnt(0)")
        if self.c.stamps: self.e(*self.stamp_ins())
    def stamp_gap(self, G, g):
        if not self.c.stamps: return
        x = self.stamp_ins()
        G.val[g] += x[:-1]
        G.mem[g + 1].insert(0, x[-1])

    def setup(self):
        c = self.c; e = self.e
        e(f"""
        s_cmp_ge_u32 s2, 256
        s_cbranch_scc1 L_end
        {"s_memtime s[96:97]" if c.stamps else ""}
        {"s_memrealtime s[98:99]" if (c.stamps or c.amp) else ""}
        s_load_dwordx16 s[64:79], s[0:1], 0
        s_load_dwordx8 s[80:87], s[0:1], 64
        s_load_dwordx2 s[88:89], s[0:1], 96
        v_lshrrev_b32 v9, 6, v0
        v_and_b32 v0, 63, v0
        s_and_b32 s3, s2, 7
        v_readfirstlane_b32 s{sW}, v9
        s_lshr_b32 s{sBR}, s3, 2
        s_and_b32 s{sKQ}, s3, 3
        s_lshr_b32 s3, s2, 3
        s_lshr_b32 s{sB}, s3, 2
        s_and_b32 s{sHP}, s3, 3
        s_and_b32 s{sPI}, s{sW}, 1
        """)
        if c.code_prefetch:
            e(f"""
            s_getpc_b64 s[90:91]
            L_pc:
            v_lshlrev_b32 v10, 7, v0
            s_lshl_b32 s3, s{sW}, 13
            v_add_u32 v10, s3, v10
            s_mov_b32 s92, s90
            s_mov_b32 s93, s91
            s_mov_b32 s94, L_end-L_pc
            s_mov_b32 s95, 0x20000
            s_mov_b32 s100, s90
            s_mov_b32 s101, s91
            buffer_load_dword v15, v10, s[92:95], 0 offen
            s_mov_b32 s3, 0x8000
            buffer_load_dword v15, v10, s[92:95], s3 offen
            s_mov_b32 s3, 0x10000
            buffer_load_dword v15, v10, s[92:95], s3 offen
            """)
        e(f"""
        v_lshrrev_b32 v9, 2, v0
        v_mul_u32_u24 v{vXD}, 1152, v9
        v_lshrrev_b32 v9, 4, v0
        v_and_b32 v9, 2, v9
        v_xor_b32 v9, v9, v0
        v_and_b32 v9, 3, v9
        v_lshl_add_u32 v{vXD}, v9, 4, v{vXD}
        v_lshrrev_b32 v9, 5, v0
        v_lshlrev_b32 v9, 15, v9
        v_and_b32 v14, 31, v0
        v_lshl_add_u32 v9, v14, 4, v9
        s_lshl_b32 s3, s{sW}, 16
        v_add_u32 v{vWD}, s3, v9
        v_lshrrev_b32 v9, 2, v0
        v_and_b32 v9, 2, v9
        v_lshrrev_b32 v14, 4, v0
        v_xor_b32 v9, v9, v14
        v_and_b32 v14, 15, v0
        v_lshl_add_u32 v9, v14, 2, v9
        s_mul_i32 s{sXM0}, s{sW}, 10240
        s_add_u32 s{sXM0}, s{sXM0}, {XB[1]}
        v_lshlrev_b32 v9, 4, v9
        v_add_u32 v{vXR}, s{sXM0}, v9
        v_lshrrev_b32 v9, 2, v0
        v_mul_u32_u24 v9, 1088, v9
        v_and_b32 v14, 3, v0
        v_lshl_add_u32 v9, v14, 4, v9
        {"v_bfe_u32 v14, v0, 4, 1" if c.wq8 else ""}
        {"v_lshl_add_u32 v9, v14, 3, v9" if c.wq8 else ""}
        s_lshl_b32 s3, s{sPI}, 8
        v_add_u32 v{vWR0}, s3, v9
        s_xor_b32 s3, s3, 256
        v_add_u32 v{vWR1}, s3, v9
        s_lshl_b32 s3, s{sW}, 12
        v_lshlrev_b32 v9, 4, v0
        v_add_u32 v{vDMA}, s3, v9
        s_mul_i32 s{sWM0}, s{sW}, 4352
        {f"s_lshl_b32 s3, s{sPI}, 3" if c.wq8 else ""}
        {f"s_add_u32 s{sWM0}, s{sWM0}, s3" if c.wq8 else ""}
        s_mul_i32 s{sKVW}, s{sW}, 4224
        s_lshr_b32 s3, s{sW}, 1
        s_mul_i32 s3, s3, 144
        s_add_u32 s{sROW+4}, s3, 128
        s_mul_i32 s{sROW+4}, s{sROW+4}, 1152
        s_lshl_b32 s{sT}, s{sPI}, 6
        s_add_u32 s3, s3, s{sT}
        """)
        for j in range(4):
            e(f"s_xor_b32 s{sT}, s{sKQ}, {j}", f"s_lshl_b32 s{sT}, s{sT}, 4", f"s_add_u32 s{sT}, s{sT}, s3",
              f"s_mul_i32 s{sROW+j}, s{sT}, 1152")
        e(f"s_mov_b32 s{sXK}, 0", f"s_mov_b32 s{sWK}, 0")
        cc = f2u(math.log2(math.e) / math.sqrt(128.0))
        e(f"""
        s_mov_b32 s{sC}, {cc:#x}
        s_mov_b32 s{sC+1}, {cc:#x}
        s_mov_b32 s{sTHR}, {f2u(c.thr):#x}
        s_mul_i32 s{sH}, s{sPI}, {-2*HALF}
        s_add_u32 s{sH}, s{sH}, {HALF}
        s_sub_u32 s{sDA}, {PITCH}, s{sH}
        s_sub_u32 s{sDB}, {-3*PITCH}, s{sH}
        s_waitcnt lgkmcnt(0)
        s_cmp_eq_u32 s{sBR}, 0
        s_cselect_b64 s[{SX}:{SX+1}], s[64:65], s[74:75]
        s_cselect_b64 s[{SK}:{SK+1}], s[66:67], s[76:77]
        s_cselect_b64 s[{SV}:{SV+1}], s[68:69], s[78:79]
        s_cselect_b64 s[{SWQ}:{SWQ+1}], s[70:71], s[80:81]
        s_cselect_b64 s[{SWO}:{SWO+1}], s[72:73], s[82:83]
        s_mul_i32 s3, s{sB}, 331776
        s_add_u32 s{SX}, s{SX}, s3
        s_addc_u32 s{SX+1}, s{SX+1}, 0
        s_mov_b32 s{SX+2}, 331776
        s_mov_b32 s{SX+3}, 0x20000
        s_lshl_b32 s{sT}, s{sKQ}, 2
        s_add_u32 s{sT}, s{sT}, s{sHP}
        s_lshl_b32 s3, s{sT}, 9
        s_add_u32 s{SWQ}, s{SWQ}, s3
        s_addc_u32 s{SWQ+1}, s{SWQ+1}, 0
        s_sub_u32 s{SWQ+2}, {576*8192}, s3
        s_mov_b32 s{SWQ+3}, 0x20000
        """)

    def setup2(self):
        e = self.e
        e(f"""
        s_lshl_b32 s{sT}, s{sKQ}, 2
        s_add_u32 s{sT}, s{sT}, s{sHP}
        s_lshl_b32 s3, s{sB}, 4
        s_add_u32 s{sT}, s{sT}, s3
        s_lshl_b32 s3, s{sT}, 19
        {"s_mov_b32 s3, 0" if self.c.kv_same else ""}
        s_add_u32 s{SK}, s{SK}, s3
        s_addc_u32 s{SK+1}, s{SK+1}, 0
        s_mov_b32 s{SK+2}, 524288
        s_mov_b32 s{SK+3}, 0x20000
        s_add_u32 s{SV}, s{SV}, s3
        s_addc_u32 s{SV+1}, s{SV+1}, 0
        s_mov_b32 s{SV+2}, 524288
        s_mov_b32 s{SV+3}, 0x20000
        s_mov_b32 s{SWO+2}, {4096*1152}
        s_mov_b32 s{SWO+3}, 0x20000
        s_mov_b32 s{SOUT}, s84
        s_mov_b32 s{SOUT+1}, s85
        s_mov_b32 s{SOUT+2}, {8*288*1152*2}
        s_mov_b32 s{SOUT+3}, 0x20000
        s_mov_b32 s{SDBG}, s86
        s_mov_b32 s{SDBG+1}, s87
        s_mov_b32 s{SDBG+2}, 256
        s_mov_b32 s{SDBG+3}, 0x20000
        s_add_u32 s{SWS}, s88, {self.c.ws_off}
        s_addc_u32 s{SWS+1}, s89, 0
        s_mov_b32 s{SWS+2}, {WS_BYTES - self.c.ws_off}
        s_mov_b32 s{SWS+3}, 0x20000
        s_lshl_b32 s3, s{sBR}, 7
        s_add_u32 s{sT}, s{sT}, s3
        s_mul_i32 s{sOB}, s{sT}, 147456
        s_lshr_b32 s3, s{sW}, 1
        s_mul_i32 s3, s3, 36864
        s_add_u32 s{sOB}, s{sOB}, s3
        s_add_u32 s{sOS}, s{sOB}, 32768
        s_lshl_b32 s3, s{sPI}, 14
        s_add_u32 s{sOB}, s{sOB}, s3
        s_mov_b32 s{sG}, s2
        s_lshl_b32 s3, s2, 2
        s_add_u32 s3, s3, s{sW}
        s_lshl_b32 s3, s3, 8
        s_add_u32 s{sSTO}, s3, {WS_STAMP}
        s_mov_b32 s{sREDO}, 0
        s_mul_i32 s3, s{sKQ}, {1024*1152}
        s_mul_i32 s{sT}, s{sHP}, 288
        s_add_u32 s3, s3, s{sT}
        s_add_u32 s{SWO}, s{SWO}, s3
        s_addc_u32 s{SWO+1}, s{SWO+1}, 0
        s_sub_u32 s{SWO+2}, s{SWO+2}, s3
        s_lshl_b32 s{sFL}, s2, 7
        s_add_u32 s{sFL}, s{sFL}, {WS_FLAG}
        s_mul_i32 s{sOM0}, s{sW}, 9216
        s_mul_i32 s{sT2}, s{sW}, {32*1152}
        """)
        for p in range(4):
            e(f"s_xor_b32 s3, s{sHP}, {p}", f"s_mul_i32 s{sT}, s3, {256*1152}", f"s_add_u32 s{sWR+p}, s{sT}, s{sT2}")
            if p:
                e(f"s_sub_u32 s3, s3, s{sHP}", f"s_mul_i32 s{sOP+p-1}, s3, 147456",
                  f"s_xor_b32 s{sFP+p-1}, s{sFL}, {p << 10}", f"s_xor_b32 s{sFQ+p-1}, s{sFL}, {p << 7}")
        e(f"""
        s_lshr_b32 s3, s2, 3
        s_lshl_b32 s{sT}, s{sBR}, 5
        s_add_u32 s3, s3, s{sT}
        s_mul_i32 s{sPB}, s3, {64*5120}
        s_mul_i32 s{sT}, s{sW}, 5120
        s_add_u32 s{sPB}, s{sPB}, s{sT}
        s_add_u32 s{sPB}, s{sPB}, {WS_PART}
        """)
        for t in range(9):
            e(f"v_add_u32 v9, {64*t}, v0", "v_mul_u32_u24 v9, 3641, v9", "v_lshrrev_b32 v9, 16, v9",
              "v_mul_u32_u24 v9, 864, v9", "v_lshl_add_u32 v9, v0, 4, v9")
            if t >= 4: e(f"v_add_u32 v9, {1024*(t - t % 4)}, v9")
            e(f"v_accvgpr_write_b32 a{240+t}, v9")
        e("v_and_b32 v9, 15, v0", "v_cmp_eq_u32 vcc, 0, v9", "v_mov_b32 v9, 0x3f803f80", "s_nop 0", "v_cndmask_b32 v9, 0, v9, vcc")
        for r in range(4): e(f"v_accvgpr_write_b32 a{aONE+r}, v9")
        if self.c.stop_after != "A":
            e("v_mov_b32 v9, 0", "v_and_b32 v10, 7, v0", "v_lshlrev_b32 v10, 2, v10",
              I(f"buffer_store_dword v9, v10, {srd(SWS)}, s{sFL} offen sc1", id=("flclr",)))
        self.kv_addr_init()

    def dbg_addr(self, v):
        self.e(f"""
        s_and_b32 s3, s{sG}, 7
        s_lshl_b32 s3, s3, 3
        s_add_u32 s3, s3, s{sB}
        s_lshl_b32 s3, s3, 2
        s_lshr_b32 s{sT}, s{sG}, 3
        s_lshl_b32 s{sT2}, s{sBR}, 5
        s_add_u32 s{sT}, s{sT}, s{sT2}
        s_lshl_b32 s{sT}, s{sT}, 2
        v_mov_b32 v{v}, 0x1000
        v_writelane_b32 v{v}, s3, 0
        v_writelane_b32 v{v}, s{sT}, 1
        """)

    def announce_cleared(self):
        e = self.e
        e(f"s_cmp_lg_u32 s{sW}, 0", "s_cbranch_scc1 L_ann")
        self.dbg_addr(10)
        e("v_mov_b32 v11, 1", "s_mov_b32 s3, 0x10000", "v_writelane_b32 v11, s3, 1")
        self.raw([I(f"buffer_atomic_add v11, v10, {srd(SDBG)}, 0 offen sc1")])
        e("L_ann:")

    def publish(self, val):
        lab = f"L_pub{val}"
        return [I(f"s_cmp_lg_u32 s{sW}, 0"), I(f"s_cbranch_scc1 {lab}"), I(f"v_accvgpr_write_b32 a255, {val}"),
                I(f"buffer_store_dword a255, off, {srd(SWS)}, s{sFL} sc1", k="x"), I(f"{lab}:")]

    def spin(self, name, load, test):
        self.tailcode += [I(f"L_sp_{name}:"), I(f"s_mov_b32 s{sSPIN}, 0x40000"), I(f"L_spl_{name}:"), I("s_sleep 1")]
        self.tailcode += [I(x) for x in load] + [I("s_waitcnt vmcnt(0)")] + [I(x) for x in test]
        self.tailcode += [I(f"s_cbranch_scc1 L_sb_{name}"), I(f"s_sub_u32 s{sSPIN}, s{sSPIN}, 1"), I(f"s_cmp_lg_u32 s{sSPIN}, 0"),
                          I(f"s_cbranch_scc1 L_spl_{name}"), I(f"s_branch L_sb_{name}")]

    def kv_addr_init(self):
        e = self.e
        e(f"""
        v_and_b32 v9, 7, v0
        v_mul_u32_u24 v9, 1056, v9
        v_and_b32 v14, 8, v0
        v_lshl_add_u32 v9, v14, 5, v9
        v_and_b32 v14, 48, v0
        s_mul_i32 s3, s{sPI}, {HALF}
        v_add3_u32 v{vKA}, v9, v14, s3
        v_bfe_u32 v9, v0, 2, 3
        v_mul_u32_u24 v9, 1056, v9
        v_and_b32 v14, 32, v0
        v_lshl_add_u32 v9, v14, 3, v9
        v_and_b32 v14, 3, v0
        v_lshl_add_u32 v9, v14, 3, v9
        s_add_u32 s3, s3, {VBASE}
        v_add_u32 v{vVA}, s3, v9
        """)

    def dma_wq(self, i):
        slot = (i + 2) % 4
        ops = []
        for r in range(4):
            pre = [I(f"s_add_u32 m0, s{sWM0}, {slot*PITCH + r*1088}")]
            vm = I(f"buffer_load_dwordx4 v{vWD}, {srd(SWQ)}, s{sWK} offen {self.c.wq_flags} lds", id=("wq", i, r))
            ops.append((pre, [], vm, [I(f"s_add_u32 s{sWK}, s{sWK}, {8192 if r < 3 else 29*8192}")]))
        return ops
    def dma_x(self, st, js):
        boff = 0 if st == 1 else XB[0] - XB[1]
        ops = []
        for j in js:
            prev = st - (2 if st == 2 else 1)
            needs = [("xr", 2*prev, j), ("xr", 2*prev + 1, j)] if st >= 2 else []
            ops.append(([I(f"s_add_u32 m0, s{sXM0}, {boff + j*2048}")], [I(f"s_add_u32 s{sT2}, s{sROW+j}, s{sXK}")],
                        I(f"buffer_load_dwordx4 v{vXD}, {srd(SX)}, s{sT2} offen {self.c.x_flags} lds", id=("x", 2*st, j), needs=needs), []))
            post = [I(f"s_add_u32 s{sXK}, s{sXK}, 128")] if j == 4 else []
            ops.append(([I(f"s_add_u32 m0, s{sXM0}, {boff + j*2048 + 1024 - 64}")], [],
                        I(f"buffer_load_dwordx4 v{vXD}, {srd(SX)}, s{sT2} offen offset:64 {self.c.x_flags} lds", id=("x", 2*st+1, j)), post))
        return ops
    def dma_kv_static(self, which, M):
        base = (M % 4) * PITCH + (VBASE if which == "V" else 0)
        ops = []
        for i in range(4):
            same = [I(f"s_mov_b32 s{sCUR}, {M*16384}")] if i == 0 else []
            ops.append(([I(f"s_add_u32 m0, s{sKVW}, {base + 32*i}")], same,
                        I(f"buffer_load_dwordx4 v{vDMA}, {srd(SK if which == 'K' else SV)}, s{sCUR} offen offset:{i*1024} {self.c.kv_flags} lds", id=(which, M, i)), []))
        return ops
    def emit_dma_straight(self, ops):
        for pre, same, vm, post in ops:
            self.e(*pre)
            self.e(*(same or [I("s_nop 0")]))
            self.e(vm, *post)

    def qacc(self, tp, j):
        idn = tp * 4 + j if j < 4 else 64 + tp
        return ("v", 16 + 4 * idn) if idn < 60 else ("a", 160 + 4 * (idn - 60))

    def phase_q(self):
        e = self.e
        NR = 8
        aB, aA = 0, 80
        first = self.dma_wq(0) + self.dma_x(0, range(5)) + self.dma_wq(1) + self.dma_x(1, range(5)) + self.dma_wq(2) + self.dma_wq(3)
        self.emit_dma_straight(first[:self.c.nfirst])
        self.setup2()
        if self.c.stamps:
            self.nstamp = 1
            e("v_mov_b32 v15, s96", f"buffer_store_dword v15, off, {srd(SWS)}, s{sSTO}", "v_mov_b32 v15, s98", f"buffer_store_dword v15, off, {srd(SWS)}, s{sSTO} offset:4")
        self.stamp()
        ms = []; start = {}; last = {}
        for i in range(18):
            for tp in range(16):
                f = 16 * i + tp
                start[f] = len(ms)
                for j in range(5 if tp < 8 else 4):
                    ms.append(I(mfma(self.qacc(tp, j), ("a", aA + 4 * (f % NR)), ("a", aB + 20 * (i % 4) + 4 * j), 0 if i == 0 else None),
                                needs=[("ar", f, 0), ("ar", f, 1), ("xr", i, j)]))
                last[f] = len(ms) - 1
        G = Gaps(ms)
        pre = []
        def aread(f, v):
            i, tp = divmod(f, 16)
            t = tp % 8
            off = ((i + 2) % 4) * PITCH + 512 * v + 64 * (t >> 1) + 8 * (t & 1)
            return I(f"ds_read_b64_tr_b16 {R('a', aA + 4*(f % NR) + 2*v, 2)}, v{vWR0 if tp < 8 else vWR1} offset:{off}", id=("ar", f, v))
        def xread(i, j):
            off = (0 if i // 2 == 1 else XB[0] - XB[1]) + 1024 * (i % 2) + 2048 * j
            return I(f"ds_read_b128 {R('a', aB + 20*(i % 4) + 4*j, 4)}, v{vXR} offset:{off}", id=("xr", i, j), needs=[("x", i, j)])
        for j in range(5): pre.append(xread(0, j))
        pre.append(I("s_barrier", needs=[("wq", 0, r) for r in range(4)]))
        for i in range(18):
            for tp in range(16):
                for v in range(2):
                    f = 16 * i + tp
                    g = 72 * i - 13 + ((2 * tp + v) * 58) // 32
                    if g % 72 == 71: g -= 1
                    if g < 0: pre.append(aread(f, v)); continue
                    assert g <= start[f] - 8
                    assert f < NR or g >= last[f - NR], (f, g)
                    assert not G.mem[g]
                    G.mem[g].append(aread(f, v))
        def free(g):
            while G.mem[g] or g % 72 == 71: g += 1
            return g
        for j in range(5): G.mem[free(46 + 2*j if not self.c.nx0 else j)].append(xread(1, j))
        tim = [(2 + 2*k, o) for k, o in enumerate(first[self.c.nfirst:])]
        assert self.c.nfirst >= 18
        for st in range(8):
            for j in range(5):
                g = 144*st + (8 + 26*j if st else 108 + 5*j)
                for i in (2*st + 2, 2*st + 3):
                    g = free(g); G.mem[g].append(xread(i, j))
                if st + 2 <= 8:
                    o = self.dma_x(st + 2, [j])
                    t = g + 8 if st else (66 + 12*j if not self.c.nx0 else 24 + 25*j)
                    tim += [(t, o[0]), (t + 3, o[1])]
        for i in range(18):
            g = 72 * i + 56
            G.waitneeds[g] += [("ar", 16 * i + 15, 1)]
            if i < 17:
                G.waitneeds[g] += [("wq", i + 1, r) for r in range(4)]
                G.waitneeds[g + 14] += ms[72 * (i + 1)].needs
            G.sal[g + 1].append(I("s_barrier"))
            if i in ((0, 3, 8) if not self.c.loop_q else (0, 1, 14)): self.stamp_gap(G, g + 1)
            if i + 4 < 18: tim += [(g + 4 + 16*r, o) for r, o in enumerate(self.dma_wq(i + 4))]
            if 2 <= i < 14:
                M, p = divmod(i - 2, 4)
                post = [I(f"s_add_u32 s{sM0}, s{sM0}, {PITCH}"), I(f"s_add_u32 s{sOFF}, s{sOFF}, 16384")] if p == 3 else []
                tim += [(g + 8, ([I(f"s_add_u32 m0, s{sM0}, {32*p}")], [],
                                  I(f"buffer_load_dwordx4 v{vDMA}, {srd(SV)}, s{sOFF} offen offset:{p*1024} {self.c.kv_flags} lds", id=("V", M, p)), post))]
            if 2 <= i < 14 and self.c.touchq:
                tim += [(g - 30, ([], [], I(f"buffer_load_dword v13, v12, {srd(SWO)}, s{sT3} offen"), [I(f"s_add_u32 s{sT3}, s{sT3}, 768")]))]
            us = sum([self.dma_kv_static(u[0], int(u[1])) for u in self.c.fill.get(i + 1, "").split()], [])
            tim += [(g + 4 + (k * (64 if i < 17 else 12)) // len(us), o) for k, o in enumerate(us)]
        tim.sort(key=lambda t: t[0])
        seq = []; g = -1; pend = []
        for t, (p, same, vm, post) in tim:
            prev = g
            g = free(max(t, g + (3 if g > 58 else 2)))
            G.mem[g].append(vm)
            for x in pend: seq.append((x, prev + 1, g - 1))
            if self.c.loop_q and prev % 288 < 144 <= g % 288 and 288 < g < 1200:
                seq.append((I(f"s_cmp_lg_u32 s{sXK}, {9*128}"), prev + 1, (g // 144) * 144 - 2))
                prev = (g // 144) * 144 - 1
            for x in p: seq.append((x, max(prev + 1, g - 2), g - 1))
            for x in same: seq.append((x, g - 1, g))
            pend = post
        assert not pend
        e(f"s_add_u32 s{sM0}, s{sKVW}, {VBASE}", f"s_mov_b32 s{sOFF}, 0")
        if self.c.touchq:
            e(f"s_lshr_b32 s3, s{sG}, 3", f"s_mul_i32 s3, s3, {32*1152}", f"s_mul_i32 s{sT}, s{sW}, {8*1152}", f"s_add_u32 s{sT3}, s3, s{sT}",
              "v_cmp_gt_u32 vcc, 6, v0", "v_lshlrev_b32 v12, 7, v0", "v_mov_b32 v13, 0x10000000", "v_cndmask_b32 v12, v13, v12, vcc")
        if self.c.retouch and self.c.code_prefetch:
            g = 72 * 14 + 44
            G.val[g] += [I(f"s_mov_b32 s{SX}, s100"), I(f"s_mov_b32 s{SX+1}, s101")]
            G.val[g + 1] += [I(f"s_mov_b32 s{SX+2}, L_end-L_pc")]
            self.code_touch(G, g + 2, "L_qepi", 10, 11, ("ct", 0))
        self.e(*pre)
        pre2 = []
        G.place_waits(self.ws, pre2)
        if self.c.loop_q: G.unify_waits([144, 432, 720], 288)
        G.place_salu(seq)
        self.raw(pre2)
        if self.c.loop_q:
            w = [[x.t for x in G.flat(a, a + 288)] for a in (144, 432, 720)]
            assert w[0] == w[1] == w[2], [(x, y, z) for x, y, z in zip(*w) if not x == y == z][:5]
            body = G.flat(144, 432)
            assert body[-1].k == "m" and G.flat(0, 144)[-1].k == "m"
            self.raw(G.flat(0, 144) + [I("s_branch L_qloop"), I(".p2align 6"), I("L_qloop:")] + body + [I("s_cbranch_scc1 L_qloop")] + G.flat(1008))
            self.checks.append(("qloop", body + body))
        else:
            self.raw(G.flat())
        print("phase Q est cycles", G.cost(), file=sys.stderr)
        e("L_qepi:")
        self.stamp()
        def pack(src0, src1, tmp):
            o = []
            for k, (kind, b) in enumerate((src0, src1)):
                if kind == "a":
                    for r in range(4): o.append(f"v_accvgpr_read_b32 v{12+r}, a{b+r}")
                    b = 12
                o.append(f"v_pk_mul_f32 v[{b}:{b+1}], v[{b}:{b+1}], s[{sC}:{sC+1}]")
                o.append(f"v_pk_mul_f32 v[{b+2}:{b+3}], v[{b+2}:{b+3}], s[{sC}:{sC+1}]")
                o.append(f"v_cvt_pk_bf16_f32 v{tmp+2*k}, v{b}, v{b+1}")
                o.append(f"v_cvt_pk_bf16_f32 v{tmp+2*k+1}, v{b+2}, v{b+3}")
            return o
        e(f"v_add_u32 v9, {SCR}, v{vDMA}")
        for s in range(4):
            e(*pack(self.qacc(2*s, 4), self.qacc(2*s+1, 4), 4))
            e(I(f"ds_write_b128 v9, v[4:7] offset:{s*1024}", id=("qsw", s)))
        e(f"s_cmp_eq_u32 s{sPI}, 1", "s_cbranch_scc1 L_qe1")
        done = " ".join(self.c.fill.values()).split()
        st = (dict((k, list(v)) for k, v in self.ws.q.items()), dict(self.ws.done), dict(self.ws.pos))
        for pi in range(2):
            if pi == 1:
                e("L_qe1:")
                self.ws.q, self.ws.done, self.ws.pos = st
            rest = sum([self.dma_kv_static(u[0], int(u[1])) for u in "K0 K1 K2 V3 K3".split() if u not in done], [])
            nrest = len(rest); cnt = 0
            for hh in range(2):
                h = hh ^ pi
                for j in range(4):
                    for s in range(4):
                        t0 = self.qacc(8*hh + 2*s, j); t1 = self.qacc(8*hh + 2*s + 1, j)
                        assert t0[0] == "v"
                        e(*pack(t0, t1, t0[1]))
                        cnt += 1
                        d = rest.pop(0) if (rest and (nrest - len(rest)) * 32 < cnt * nrest) else None
                        if d: e(*d[0], *d[1])
                        for r in range(4): e(f"v_accvgpr_write_b32 a{aQ[h] + (j*4+s)*4 + r}, v{t0[1]+r}")
                        if d: e(d[2])
            assert not rest
            if pi == 0: e("s_branch L_qe2")
        e("L_qe2:")
        self.stamp()
        e(I("s_barrier", needs=[("qsw", 3)] + [(k, 0, i) for k in "KV" for i in range(4)]))
        if self.c.stop_after != "A": self.announce_cleared()
        e(f"s_lshl_b32 s3, s{sPI}, 12", "v_subrev_u32 v9, s3, v9")
        for h in range(2):
            for s in range(4):
                e(I(f"ds_read_b128 {R('a', aQ[h] + (16+s)*4, 4)}, v9 offset:{h*4096 + s*1024}", id=("qsr", h, s)))
        for j in range(5): e(f"v_mov_b32 v{vNM+4*j}, 0xff800000")

    def attn_mfmas(self, h, nwin, first=True, lastw=True):
        ms = []; cstart = {}; cend = {}; pv = {}; wstart = []
        tcount = [0]; sslot = {}
        def chain(n, T, j):
            sl = tcount[0] % NS; tcount[0] += 1
            sslot[(n, T, j)] = sl
            cstart[(n, T, j)] = len(ms)
            for s in range(4):
                ms.append(I(mfma(("v", vS + 4*sl), ("a", aK + 16*T + 4*s), ("a", aQ[h] + (j*4+s)*4), ("v", vNM + 4*j) if s == 0 else None),
                            needs=[("kr", h, n, T, s)]))
            cend[(n, T, j)] = len(ms) - 1
        def pvm(n, dt, j):
            f = 8*n + dt
            pv[(n, dt, j)] = len(ms)
            ms.append(I(mfma(("v", vO + (j*8+dt)*4), ("a", aV + 4*(f % NV)), ("v", vP[n % 2] + 4*j), 0 if (n == 0 and first) else None),
                        needs=[("vr", h, f, 0), ("vr", h, f, 1)]))
        def onem(n, j):
            ms.append(I(mfma(("a", aL + 4*j), ("a", aONE), ("v", vP[n % 2] + 4*j), 0 if (n == 0 and first) else None)))
        for m in range(nwin):
            wstart.append(len(ms))
            for c in range(8):
                chain(2*m+1, c >> 2, c & 3)
                for j in range(5): pvm(2*m, c, j)
                if c - 2 in self.c.ones: onem(2*m, c - 2)
            lst = [(dt, j) for dt in range(8) for j in range(4)]
            cnt = self.c.cnt
            for c in range(10):
                if not (lastw and m == nwin - 1): chain(2*m+2, c // 5, c % 5)
                for _ in range(cnt[c]):
                    dt, j = lst.pop(0); pvm(2*m+1, dt, j)
                for j in range(4):
                    if self.c.onepos[j] == c and j in self.c.ones: onem(2*m+1, j)
        wstart.append(len(ms))
        return ms, cstart, cend, pv, sslot, wstart

    def code_touch(self, G, g, lab, vt, vd, idn):
        if not (self.c.retouch and self.c.code_prefetch): return
        G.val[g] += [I(f"v_lshlrev_b32 v{vt}, 3, v{vDMA}")]
        G.val[g + 1] += [I(f"v_and_b32 v{vd}, 0x1f80, v{vt}")]
        G.val[g + 2] += [I(f"v_lshrrev_b32 v{vt}, 2, v{vt}")]
        G.val[g + 3] += [I(f"v_and_b32 v{vt}, 0x6000, v{vt}")]
        G.val[g + 4] += [I(f"v_or_b32 v{vt}, v{vt}, v{vd}"), I(f"s_mov_b32 s{sWK}, {lab}-L_pc")]
        g += 6
        while G.mem[g]: g += 1
        G.mem[g].append(I(f"buffer_load_dword v{vd}, v{vt}, {srd(SX)}, s{sWK} offen", id=idn))

    def o_stores(self, h, vaddr):
        ops = []
        for j in range(4):
            for s in range(4):
                src = R("a", (j*4+s)*4, 4) if h == 0 else R("v", 16 + (j*4+s)*4, 4)
                ops.append(([], [], I(f"buffer_store_dwordx4 {src}, v{vaddr}, {srd(SWS)}, s{90+j} offen offset:{s*1024} {self.c.o_flags}", id=("os", h, j, s)), []))
        return ops

    def kread(self, h, n, T, s):
        return I(f"ds_read_b128 {R('a', aK + 16*T + 4*s, 4)}, v{vKA} offset:{512*T + 64*s}", id=("kr", h, n, T, s))
    def vread(self, h, f, v):
        return I(f"ds_read_b64_tr_b16 {R('a', aV + 4*(f % NV) + 2*v, 2)}, v{vVA} offset:{512*v + 32*(f % 8)}", id=("vr", h, f, v))

    def attn_schedule(self):
        NW = 8
        ms, cstart, cend, pv, sslot, wstart = self.attn_mfmas(0, NW, first=False, lastw=False)
        n = len(ms)
        mem = {}
        def put(g, key):
            while g in mem: g += 1
            mem[g] = key; return g
        rel = {}
        W = self.W = wstart[1]
        cs = lambda dn, T, j: cstart[(2 + dn, T, j)] - W
        bar = rel["bar"] = cs(1, 1, 0) + 3
        bodyo = rel["bodyo"] = cs(2, 0, 0)
        for i in range(4): rel[("dK", i)] = put(bar + self.c.kpos[0] + i * self.c.kpos[1], 1)
        for i in range(4): rel[("dV", i)] = put(self.c.vpos[0] + i * self.c.vpos[1], 1)
        first = {f: pv[(2 + f // 8, f % 8, 0)] - W for f in range(-4, 16)}
        lastu = {f: pv[(2 + f // 8, f % 8, 4 if (f // 8) % 2 == 0 else 3)] - W for f in range(-4, 16)}
        for f in range(16):
            g = max(first[f - 2], lastu[f - 4] + 1)
            for v in range(2):
                gg = g % W
                g2 = put(gg, 1)
                rel[("vr", f, v)] = g + (g2 - gg)
                g = rel[("vr", f, v)] + 2
                assert rel[("vr", f, v)] <= first[f] - 7, (f, v, rel[("vr", f, v)], first[f])
        for (dn, T), g0 in (((1, 1), 1), ((2, 0), bar + 3), ((2, 1), bodyo + 1), ((3, 0), cs(2, 1, 0) + 1)):
            for s in range(4):
                rel[("kr", dn, T, s)] = put(g0 + 6 * s, 1)
                assert rel[("kr", dn, T, s)] <= cs(dn, T, 0) + s - 7
        rel["barv"] = rel[("vr", 0, 0)] + W - 2
        assert rel["barv"] - rel[("vr", 15, 1)] >= 5 and rel[("dV", 3)] < bar
        rel[("ka", 0)] = rel[("kr", 1, 1, 3)] + 1
        rel[("ka", 1)] = rel[("kr", 2, 1, 3)] + 1
        rel[("va", 0)] = rel[("vr", 7, 1)]
        rel[("va", 1)] = rel[("vr", 15, 1)]
        assert rel[("vr", 8, 0)] > rel[("va", 0)] and rel[("vr", 0, 0)] + W > rel[("va", 1)]
        used = [0] * W
        for k, g in rel.items():
            if isinstance(k, str): continue
            used[g % W] += 2 if k[0] in ("dK", "dV") else 1
        used[W - 1] += 2
        tiles = sorted(cend, key=lambda t: cend[t])
        place = {}
        eq = []
        sm = []
        ti = 0
        for g in range(n):
            while ti < len(tiles) and cend[tiles[ti]] + self.c.edelay <= g:
                eq += [(tiles[ti], r) for r in range(4)]; ti += 1
            u = used[g % W]
            rdy = [x for x in sm if x[1] <= g]
            backlog = 3.5 * len(eq) + len(sm)
            budget = 3 if (backlog > self.c.backlog and g % W != W - 1) else 2
            def take_small():
                rdy.sort(); x = rdy.pop(0); sm.remove(x); place[x[2]] = g
            def take_e():
                t, r = eq.pop(0); place[("e", t, r)] = g
                if t[2] not in self.c.ones: sm.append(((cend[t], 1, r), g + 1, ("a", t, r)))
                if r % 2: sm.append(((cend[t], 0, r), g + 1, ("c", t, r // 2)))
            if u == 0 and eq and len(rdy) < 4:
                take_e(); u += 2
            elif u == 1 and budget == 3 and eq and len(rdy) < 2:
                take_e(); u += 2
            while u < budget and rdy:
                take_small(); u += 1
        def wrel(m):
            d = {}
            for k, g in place.items():
                nn, T, j = k[1]
                if nn in (2*m+1, 2*m+2): d[(k[0], nn - 2*m, T, j, k[2])] = g - W * m
            return d
        a, b = wrel(4), wrel(5)
        assert a == b, "VALU schedule not periodic"
        rel.update(a)
        self.rel = rel

    def head(self, h):
        e = self.e; rel = self.rel; c = self.c; W = self.W
        nloop_end = 13 if h == 1 else 15
        nloop_start = 1
        e(f"L_head{h}:")
        e(f"s_mov_b32 s{sOFF}, {(16*h+4)*16384}", f"s_mov_b32 s{sKO}, {(16*h+4)*16384}", f"s_mov_b32 s{sWIN}, 0",
          f"s_mov_b32 s{sD}, s{sDA}", f"s_add_u32 s{sDUM}, s{sKVW}, {SCR}", f"s_add_u32 s{sM0}, s{sKVW}, {VBASE}",
          f"s_and_b32 s3, s{sHP}, {c.stag}", f"s_lshl_b32 s{sXK}, {c.kmask[h]}, s3",
          f"s_xor_b32 s3, s3, {(c.stag + 1) // 2}", f"s_lshl_b32 s{sXM0}, {c.vmask[h]}, s3")
        assert max(c.kmask[h], c.vmask[h]) << c.stag < 1 << nloop_end and c.kmask[h] and not (c.kmask[h] | c.vmask[h]) & 1
        unit = {}; nxt = {"dK": 16*h + 4, "dV": 16*h + 4}
        for m in range(16):
            for kind, mask in (("dV", c.vmask[h] | 1), ("dK", c.kmask[h])):
                if mask >> m & 1: unit[(kind, m)] = None if m else "x"
                elif nxt[kind] < 32: unit[(kind, m)] = nxt[kind]; nxt[kind] += 1
                else: unit[(kind, m)] = "x"; assert m >= nloop_end
        if h == 0:
            self.refill = [(k[1], u) for u in range(16, 20) for k in ("dK", "dV") if u >= nxt[k]]
        self.stamp()
        for T in range(2):
            for s in range(4): e(self.kread(h, 0, T, s))
        e(f"v_add_u32 v{vKA}, s{sH}, v{vKA}")
        tS = lambda T, j: vO + (j*2 + T) * 4
        refill = self.dma_kv_static(*self.refill[-1]) if h == 1 else []
        for j in range(5):
            for T in range(2):
                for s in range(4):
                    nd = [("kr", h, 0, T, s)] + ([("qsr", 1, 3)] if (h == 0 and j == 4) else [])
                    e(I(mfma(("v", tS(T, j)), ("a", aK + 16*T + 4*s), ("a", aQ[h] + (j*4+s)*4), 0 if s == 0 else None), needs=nd))
                    if refill and j in (1, 4) and T == 0:
                        if s == 0: e(*refill[0][0])
                        if s == 1: e(*refill[0][1], refill.pop(0)[2])
        ms, cstart, cend, pv, sslot, wstart = self.attn_mfmas(h, 16)
        G = Gaps(ms)
        early = []
        lastw = 15
        full, fcs, fce, fpv, _, _ = self.attn_mfmas(h, 16, lastw=False)
        dropped = set()
        for k, st in fcs.items():
            if k[0] == 32: dropped.update(range(st, st + 4))
        amap = []; a = -1
        for g in range(len(full)):
            if g not in dropped: a += 1
            amap.append(a)
        def at(m, g):
            p = W * m + g
            if p < 0: return None
            return amap[p]
        seq = []
        for m in range(-1, 16):
            items = []
            for k, g in rel.items():
                if isinstance(k, str): continue
                kind = k[0]
                if kind == "kr":
                    n = 2*m + k[1]
                    if n < 1 or n > 31: continue
                    items.append((g, "mem", self.kread(h, n, k[2], k[3])))
                elif kind == "vr":
                    if m < 0: continue
                    items.append((g, "mem", self.vread(h, 16*m + k[1], k[2])))
                elif kind in ("dK", "dV"):
                    if m < 0 or unit[(kind, m)] == "x": continue
                    i = k[1]; u = unit[(kind, m)]
                    items.append((g, "mem", I(f"buffer_load_dwordx4 v{vDMA}, {srd(SV if kind == 'dV' else SK)}, s{sCUR} offen offset:{i*1024} {c.kv_flags} lds",
                                              id=(kind[1], u, i) if u else None)))
                elif kind == "ka":
                    if m < 0 or (m == 15 and k[1] == 1): continue
                    items.append((g, "val", I(f"v_add_u32 v{vKA}, s{sD if k[1] == 0 else sH}, v{vKA}")))
                elif kind == "va":
                    if m < 0: continue
                    items.append((g, "val", I(f"v_add_u32 v{vVA}, s{sH if k[1] == 0 else sD}, v{vVA}")))
                else:
                    n = 2*m + k[1]
                    if n < 1 or n > 31: continue
                    T, j, r = k[2], k[3], k[4]
                    g_key = g
                    while n == 31 and kind != "a" and at(m, g) > pv[(n, 0, j)] - (2 if kind == "c" else 3): g -= 1
                    S = vS + 4 * sslot[(n, T, j)]
                    if kind == "e": x = I(f"v_exp_f32 v{S+r}, v{S+r}")
                    elif kind == "a": x = I(f"v_add_f32 v{vL+j}, v{vL+j}, v{S+r}")
                    else:
                        x = I(f"v_cvt_pk_bf16_f32 v{vP[n % 2] + 4*j + 2*T + r}, v{S+2*r}, v{S+2*r+1}")
                        assert at(m, g) <= pv[(n, 0, j)] - 2, ("late cvt", n, T, j)
                    x.key = (W*m + g_key, cend[(n, T, j)], {"e": 2, "c": 0, "a": 1}[kind], r)
                    nxt = [t for t in cstart if cstart[t] > cstart[(n, T, j)] and sslot[t] == sslot[(n, T, j)]]
                    if nxt: assert at(m, g) < min(cstart[t] for t in nxt), ("S slot reuse", n, T, j)
                    items.append((g, "val", x))
            items.sort(key=lambda t: t[0])
            for g, where, x in items:
                p = at(m, g)
                if p is None: early.append(x)
                else: getattr(G, where)[p].append(x)
            if m >= 0:
                M = 16*h + m
                g = at(m, rel["bar"])
                G.waitneeds[g] += [("kr", h, 2*m+1, 1, 3)]
                if M < 31: G.waitneeds[g] += [("K", M+1, i) for i in range(4)]
                G.sal[g + 1].append(I("s_barrier"))
                if m < 15:
                    gv = at(m, rel["barv"])
                    G.waitneeds[gv] += [("vr", h, 16*m + 15, 1)] + [("V", M+1, i) for i in range(4)]
                    G.sal[gv + 1].append(I("s_barrier"))
                if c.wtrace and not (h == 1 and m >= 13):
                    G.val[g + 1] += [I("s_memrealtime s[96:97]"), I(f"s_mov_b32 m0, s{sWIN}"), I("s_waitcnt lgkmcnt(0)"), I(f"v_writelane_b32 v{15 if h == 0 else 6}, s96, m0")]
                if h == 1 and m == c.touch_win and c.touch13 and c.stop_after != "A":
                    G.val[at(m, 2)] += [I("v_lshlrev_b32 v12, 7, v0")]
                    G.val[at(m, 3)] += [I("v_and_b32 v14, 0x380, v12")]
                    G.val[at(m, 5)] += [I("v_add_u32 v14, 0x2000, v14")]
                    for gg, va in ((at(m, c.touch_pos), 12), (at(m, c.touch_pos + 6), 14)):
                        while G.mem[gg]: gg += 1
                        G.mem[gg].append(I(f"buffer_load_dword v9, v{va}, {srd(SWQ)}, s{sT3} offen {c.touch_flags}", id=("touch", va)))
                def group(kind, sptr, smask, base, lo, first):
                    return [(I(t), lo, first - 1) for t in (
                        f"s_bfe_u32 s{sT}, s{sptr}, 0x2000e", f"s_mul_i32 s{sT}, s{sT}, {PITCH}", f"s_add_u32 s{sT}, s{sT}, s{base}",
                        f"s_bitcmp1_b32 s{smask}, s{sWIN}", f"s_cselect_b32 m0, s{sDUM}, s{sT}", f"s_cselect_b32 s{sCUR}, s{sTHR}, s{sptr}",
                        f"s_cselect_b32 s{sT}, 0, 0x4000", f"s_add_u32 s{sptr}, s{sptr}, s{sT}")]
                lo = at(m, 0)
                if unit[("dV", m)] != "x":
                    for i in range(1, 4):
                        seq.append((I("s_add_u32 m0, m0, 32"), at(m, rel[("dV", i - 1)]) + 1, at(m, rel[("dV", i)]) - 1))
                    lo = at(m, rel[("dV", 3)]) + 1
                if c.wtrace: lo = g + 2
                if unit[("dK", m)] != "x":
                    seq += group("dK", sKO, sXK, sKVW, lo, at(m, rel[("dK", 0)]))
                    for i in range(1, 4):
                        seq.append((I("s_add_u32 m0, m0, 32"), at(m, rel[("dK", i - 1)]) + 1, at(m, rel[("dK", i)]) - 1))
                    lo = at(m, rel[("dK", 3)]) + 1
                if h == 1 and m >= 14 and c.stop_after != "A":
                    assert len(c.ones) == 5
                    vt = [4, 5, 6, 7, 8, 9, 12, 14, 15]
                    if m == 14:
                        for t in range(9):
                            G.val[g + 2 + t].append(I(f"v_accvgpr_read_b32 v{vt[t]}, a{240+t}", needs=[] if t else ([("touch", 14)] if c.touch13 else []) + ([("ct", 2)] if c.retouch and c.code_prefetch else [])))
                        tim = [(at(m, c.wo_pos[0] + c.wo_pos[1] * k), o) for k, o in enumerate(self.dma_wo(0, vt))]
                    else:
                        tim = [(at(m, 2 + 4 * k), o) for k, o in enumerate(self.dma_wo(2, vt))]
                        tim += [(g + 4 + 6 * k, o) for k, o in enumerate(self.dma_wo(1, vt))]
                    gg = lo
                    for t, (p_, same, vm, post) in tim:
                        gg = max(gg + 2, t)
                        while G.mem[gg]: gg += 1
                        G.mem[gg].append(vm)
                        for x in p_: seq.append((x, gg - 1, gg - 1))
                        for x in same: seq.append((x, gg - 1, gg))
                    lo = gg + 1
                if m == 15: continue
                seq.append((I(f"s_add_u32 s{sWIN}, s{sWIN}, 1"), lo, at(m, W - 12)))
                if unit[("dV", m + 1)] != "x" or m < nloop_end: seq += group("dV", sOFF, sXM0, sM0, lo, at(m, W - 4))
                g1 = max(lo, at(m, rel[("va", 1)]) + 1)
                for t in (f"s_and_b32 s{sT}, s{sWIN}, 3", f"s_cmp_eq_u32 s{sT}, 3"): seq.append((I(t), lo, at(m, W - 3)))
                seq.append((I(f"s_cselect_b32 s{sD}, s{sDB}, s{sDA}"), g1, at(m, W - 2)))
                if nloop_start <= m < nloop_end:
                    seq.append((I(f"s_cmp_lg_u32 s{sWIN}, {nloop_end}"), g1, at(m, W - 2)))
        if h == 1:
            for k, o in enumerate(self.o_stores(0, 13)):
                gg = wstart[13] + c.o0_pos[0] + k * c.o0_pos[1]
                while G.mem[gg] or any(x.k == "e" for x in G.val[gg]): gg += 1
                G.mem[gg].append(o[2])
        if h == 0: self.code_touch(G, wstart[15] + 1, "L_hepi0", 10, 11, ("ct", 1))
        else: self.code_touch(G, wstart[13] + 1, "L_hepi1", 4, 5, ("ct", 2))
        e(*[x for x in early if x.k == "ds"])
        assert all(x.k == "ds" for x in early)
        tm = lambda j: vS + j
        tt = lambda j: vS + 8 + j
        for j in range(5):
            b = tS(0, j)
            e(f"v_max3_f32 v{tm(j)}, v{b}, v{b+1}, v{vNM+4*j}", f"v_max3_f32 v{tt(j)}, v{b+2}, v{b+3}, v{b+4}",
              f"v_max3_f32 v{tm(j)}, v{b+5}, v{b+6}, v{tm(j)}", f"v_max3_f32 v{tm(j)}, v{b+7}, v{tt(j)}, v{tm(j)}")
        self.xlane([tm(j) for j in range(5)], [tt(j) for j in range(5)], "v_max_f32")
        for j in range(5):
            for r in range(4): e(f"v_sub_f32 v{vNM+4*j+r}, 0, v{tm(j)}")
        for j in range(5):
            b = tS(0, j)
            for r in range(0, 8, 2): e(f"v_pk_add_f32 v[{b+r}:{b+r+1}], v[{b+r}:{b+r+1}], v[{vNM+4*j}:{vNM+4*j+1}]")
            dm = refill.pop(0) if (refill and j in (0, 4)) else None
            if dm: e(*dm[0])
            for r in range(8): e(f"v_exp_f32 v{b+r}, v{b+r}")
            if dm: e(dm[2])
        for j in range(5):
            b = tS(0, j)
            for r in range(4): e(f"v_cvt_pk_bf16_f32 v{vP[0]+4*j+r}, v{b+2*r}, v{b+2*r+1}")
            if j in c.ones: continue
            e(f"v_pk_add_f32 v[{b}:{b+1}], v[{b}:{b+1}], v[{b+2}:{b+3}]", f"v_pk_add_f32 v[{b+4}:{b+5}], v[{b+4}:{b+5}], v[{b+6}:{b+7}]",
              f"v_pk_add_f32 v[{b}:{b+1}], v[{b}:{b+1}], v[{b+4}:{b+5}]", f"v_add_f32 v{vL+j}, v{b}, v{b+1}")
        full_o = (h == 1 and c.stop_after != "A")
        if h == 1:
            e("v_lshlrev_b32 v13, 4, v0")
            for j in range(4): e(f"s_add_u32 s{90+j}, s{sOB}, {j*4096}")
            e(f"s_mul_i32 s3, s{sHP}, 288")
            if c.touch_dist: e(f"s_mul_i32 s{sT}, s{sKQ}, {1024*1152}", f"s_add_u32 s3, s3, s{sT}")
            e(f"s_sub_u32 s{SWQ}, s{SWO}, s3", f"s_subb_u32 s{SWQ+1}, s{SWO+1}, 0", f"s_add_u32 s{SWQ+2}, s{SWO+2}, s3", f"s_lshr_b32 s3, s{sG}, 3")
            if c.touch_dist: e("s_lshl_b32 s3, s3, 2", f"s_add_u32 s3, s3, s{sKQ}")
            e(f"s_mul_i32 s3, s3, {32*1152}", f"s_mul_i32 s{sT}, s{sW}, {8*1152}", f"s_add_u32 s{sT3}, s3, s{sT}")
        if full_o:
            self.dbg_addr(10)
            dload = f"buffer_load_dword v11, v10, {srd(SDBG)}, 0 offen sc1"
            e(I(dload, id=("dbgp",)))
        self.stamp()
        for g in range(len(ms)):
            G.val[g].sort(key=lambda x: x.key or (0, 0, 0, 0))
        if c.wtrace:
            g = wstart[16] - 3 if h == 0 else wstart[13] + 20
            G.val[g] += [I("v_lshlrev_b32 v7, 2, v0"), I(f"s_add_u32 s99, s{sSTO}, {0x100000 * (h + 1)}"), I(f"buffer_store_dword v{15 if h == 0 else 6}, v7, {srd(SWS)}, s99 offen", k="x")]
        if full_o:
            test = ["v_readlane_b32 s3, v11, 0", f"v_readlane_b32 s{sT2}, v11, 1", "s_and_b32 s3, s3, 0xffff",
                    f"s_lshr_b32 s{sT2}, s{sT2}, 16", f"s_min_u32 s3, s3, s{sT2}", "s_cmp_ge_u32 s3, 4"]
            g = wstart[14] + 3
            G.val[g] += [I(test[0], needs=[("dbgp",)]), I(test[1])]
            G.val[g + 9] += [I(x) for x in test[2:5]]
            G.val[g + 18] += [I(test[5]), I("s_cbranch_scc0 L_sp_dbg"), I("L_sb_dbg:")]
            self.spin("dbg", [dload], test)
        pre = []
        G.place_waits(self.ws, pre)
        G.unify_waits([wstart[m] for m in range(nloop_start, nloop_end)], W)
        G.place_salu(seq)
        self.raw(pre)
        win = [[x.t for x in G.flat(wstart[m], wstart[m+1])] for m in range(16)]
        import re
        for m in range(nloop_start, nloop_end - 1):
            assert len(win[m]) == len(win[nloop_end - 1]), f"window {m} differs"
            for x, y in zip(win[m], win[nloop_end - 1]):
                if x == y: continue
                nx, ny = re.search(r"vmcnt\((\d+)\)", x), re.search(r"vmcnt\((\d+)\)", y)
                assert nx and ny and int(nx.group(1)) >= int(ny.group(1)) and re.sub(r"vmcnt\(\d+\)", "", x) == re.sub(r"vmcnt\(\d+\)", "", y), (m, x, y)
        print(f"head {h}: window est cycles", G.cost(wstart[1], wstart[2]), "instrs", len(win[1]), file=sys.stderr)
        self.raw(G.flat(0, wstart[nloop_start]))
        self.raw([I(f"s_branch L_loop{h}"), I(".p2align 6"), I(f"L_loop{h}:")])
        body = G.flat(wstart[nloop_end - 1], wstart[nloop_end])
        assert body[-1].k == "m", body[-3:]
        self.raw(body)
        self.raw([I(f"s_cbranch_scc1 L_loop{h}")])
        self.checks.append((f"loop{h}", body + body))
        self.raw(fix_hazards(G.flat(wstart[nloop_end], wstart[16])))
        e(f"L_hepi{h}:")
        self.stamp()
        self.head_epilogue(h)

    def xlane(self, xs, ts, op):
        e = self.e
        for sw in ("v_permlane32_swap_b32", "v_permlane16_swap_b32"):
            for x, t in zip(xs, ts): e(f"v_mov_b32 v{t}, v{x}")
            if len(xs) < 3: e("s_nop 1")
            for k, (x, t) in enumerate(zip(xs, ts)): e(f"{sw} v{t}, v{x}")
            for x, t in zip(xs, ts): e(f"{op} v{x}, v{x}, v{t}")

    def head_epilogue(self, h):
        e = self.e
        O = lambda j, dt: vO + (j*8 + dt) * 4
        if self.c.ones: e("s_nop 7")
        for j in sorted(self.c.ones, key=lambda j: (j + 1) % 5): e(f"v_accvgpr_read_b32 v{vL+j}, a{aL+4*j}")
        self.xlane([vL + j for j in range(5)], [vS + j for j in range(5)], "v_add_f32")
        ct = [("ct", 1)] if (h == 0 and self.c.retouch and self.c.code_prefetch) else []
        e(f"v_add_f32 v10, v{vL}, v{vL+1}", I(f"v_add_f32 v11, v{vL+2}, v{vL+3}", needs=ct),
          f"v_add_f32 v10, v10, v{vL+4}", "v_add_f32 v10, v10, v11",
          f"v_cmp_nge_f32 vcc, s{sTHR}, v10", "s_cmp_lg_u64 vcc, 0", f"s_cselect_b32 s3, 1, 0",
          f"v_mov_b32 v12, s3", f"s_lshl_b32 s3, s{sW}, 2", f"s_add_u32 s3, s3, {MISC + 2048}", "v_mov_b32 v13, s3",
          I("ds_write_b32 v13, v12", id=("fw", h)))
        e(f"v_add_u32 v9, {SCR}, v{vDMA}")
        e(f"v_xor_b32 v10, 4096, v{vDMA}", f"v_add_u32 v10, {SCR}, v10")
        e(f"v_lshrrev_b32 v11, 1, v{vDMA}", "v_and_b32 v11, 0x1f8, v11", f"s_lshl_b32 s3, s{sW}, 9", f"s_add_u32 s3, s3, {MISC}",
          "v_add_u32 v11, s3, v11", f"v_mov_b32 v12, v{vL+4}", f"v_mov_b32 v13, v{vNM+16}",
          I("ds_write_b64 v11, v[12:13]", id=("lw", h)), "v_xor_b32 v11, 512, v11")
        e(f"s_cmp_eq_u32 s{sPI}, 1", f"s_cbranch_scc1 L_he1_{h}")
        st = (dict((k, list(v)) for k, v in self.ws.q.items()), dict(self.ws.done), dict(self.ws.pos))
        for pi in range(2):
            if pi == 1:
                e(f"L_he1_{h}:")
                self.ws.q, self.ws.done, self.ws.pos = st
            for k in range(4):
                e(I(f"ds_write_b128 v10, {R('v', O(4, 4*(1-pi) + k), 4)} offset:{k*1024}", id=("ow", h, k)))
            if pi == 1:
                e("s_nop 1")
                for r in range(16): e(f"v_mov_b32 v{O(4, 0) + r}, v{O(4, 4) + r}")
            if pi == 0: e("s_branch L_he2_%d" % h)
        e(f"L_he2_{h}:")
        for j in range(4): e(f"v_rcp_f32 v{vL+j}, v{vL+j}")
        pub = h == 1 and self.c.stop_after != "A"
        e(I("s_barrier", needs=[("ow", h, 3)] + ([("os", 0, 3, 3)] if pub else [])))
        if pub: self.raw(self.publish(1))
        e(f"v_mov_b32 v14, {MISC + 2048}")
        e(I(f"ds_read_b128 v[{vS}:{vS+3}], v14", id=("fr", h)))
        e(I(f"ds_read_b64 v[14:15], v11", id=("lr", h)))
        for k in range(4):
            e(I(f"ds_read_b128 {R('v', O(4, 4 + k), 4)}, v9 offset:{k*1024}", id=("or", h, k)))
        e(I(f"v_or3_b32 v{vS}, v{vS}, v{vS+1}, v{vS+2}", needs=[("fr", h)]), f"v_or_b32 v{vS}, v{vS}, v{vS+3}", "s_nop 0",
          f"v_readfirstlane_b32 s3, v{vS}", f"s_andn2_b32 s3, s3, s{sREDO}", f"s_cbranch_scc1 L_redo{h}",
          f"s_mov_b32 s{sREDO}, 0")
        refill = sum([self.dma_kv_static(*u) for u in self.refill[:-1]], []) if h == 0 else []
        nref = len(refill)
        e(I("v_min_f32 v11, v13, v15", needs=[("lr", h)]), "v_sub_f32 v13, v11, v13", "v_sub_f32 v15, v11, v15",
          "v_exp_f32 v13, v13", "v_exp_f32 v15, v15", "s_nop 0", "v_mul_f32 v12, v12, v13", "v_fmac_f32 v12, v14, v15",
          "v_rcp_f32 v12, v12", "s_nop 0", "v_mul_f32 v14, v12, v15", "v_mul_f32 v12, v12, v13")
        b0, b1 = O(4, 0), O(4, 4)
        for r in range(0, 16, 2):
            e(f"v_pk_mul_f32 v[{b0+r}:{b0+r+1}], v[{b0+r}:{b0+r+1}], v[12:13] op_sel_hi:[1,0]")
        for r in range(0, 16, 2):
            e(I(f"v_pk_fma_f32 v[{b0+r}:{b0+r+1}], v[{b1+r}:{b1+r+1}], v[14:15], v[{b0+r}:{b0+r+1}] op_sel_hi:[1,0,1]", needs=[("or", h, r // 4)]))
        for r in range(8): e(f"v_cvt_pk_bf16_f32 v{b0+r}, v{b0+2*r}, v{b0+2*r+1}")
        e(f"v_and_b32 v13, 0x3ff, v{vDMA}", f"s_lshl_b32 s3, s{sPI}, 11", f"s_add_u32 s3, s3, s{sOS}")
        if h: e(f"s_add_u32 s3, s3, 73728")
        for k in range(2):
            e(I(f"ds_write_b128 v9, v[{b0+4*k}:{b0+4*k+3}] offset:{k*1024}", id=("pw", h, k)))
            e(I(f"buffer_store_dwordx4 v[{b0+4*k}:{b0+4*k+3}], v13, {srd(SWS)}, s3 offen offset:{k*1024} {self.c.o_flags}", id=("os", h, 4, k)))
        if h == 1:
            for j in range(4): e(f"s_add_u32 s{90+j}, s{sOB}, {73728 + j*4096}")
        for j in range(4):
            e(f"s_add_u32 s3, s{sOB}, {h*73728 + j*4096}")
            for s in range(4):
                b = O(j, 2*s)
                p = (vL + j) & ~1
                sel = "op_sel:[0,1] op_sel_hi:[1,1]" if (vL + j) & 1 else "op_sel_hi:[1,0]"
                for r in range(0, 8, 2):
                    e(f"v_pk_mul_f32 v[{b+r}:{b+r+1}], v[{b+r}:{b+r+1}], v[{p}:{p+1}] {sel}")
                d = 16 + (j*4 + s) * 4
                for r in range(4): e(f"v_cvt_pk_bf16_f32 v{d+r}, v{b+2*r}, v{b+2*r+1}")
                if h == 1 and self.c.o1_epi and self.c.stop_after != "A":
                    k0, k1 = ((j*4 + s) * self.c.o1_epi) // 16, ((j*4 + s + 1) * self.c.o1_epi) // 16
                    for k in range(k0, k1): e(self.o_stores(1, 13)[k][2])
                if self.c.stop_after == "A" and h == 1:
                    e(I(f"buffer_store_dwordx4 v[{d}:{d+3}], v13, {srd(SWS)}, s3 offen offset:{s*1024} sc1", id=("os", h, j, s)))
                if h == 0:
                    dm = refill.pop(0) if (refill and (nref - len(refill)) * 16 < (j*4 + s + 1) * nref) else None
                    if dm: e(*dm[0], *dm[1])
                    for r in range(4): e(f"v_accvgpr_write_b32 a{(j*4+s)*4 + r}, v{d+r}")
                    if dm: e(dm[2])
        assert not refill
        e(I("s_barrier", needs=[("pw", h, 1)] + ([("V", 16, 3)] if h == 0 else [])))
        e(f"s_lshl_b32 s3, s{sPI}, 12", "v_subrev_u32 v9, s3, v9")
        for s in range(4):
            dst = R("a", 64 + 4*s, 4) if h == 0 else R("v", 80 + 4*s, 4)
            e(I(f"ds_read_b128 {dst}, v9 offset:{(s >> 1)*4096 + (s & 1)*1024}", id=("pr", h, s)))
        if h == 0:
            e("s_nop 1")
            for j in range(5): e(f"v_mov_b32 v{vNM+4*j}, 0xff800000")

    def redo(self, h):
        e = self.e
        save = self.ws; self.ws = WaitState()
        e(f"L_redo{h}:", "s_waitcnt vmcnt(0) lgkmcnt(0)", "s_barrier", f"s_mov_b32 s{sREDO}, 1")
        self.kv_addr_init()
        for j in range(5): e(f"v_mov_b32 v{vNM+4*j}, 0xff800000")
        e(f"s_mov_b32 s{sOFF}, {16*h*16384}", f"s_mov_b32 s{sD}, s{sH}", f"L_rl{h}:")
        for i in range(4):
            e(f"s_add_u32 m0, s{sKVW}, {32*i}", "s_nop 0",
              f"buffer_load_dwordx4 v{vDMA}, {srd(SK)}, s{sOFF} offen offset:{i*1024} lds")
        e("s_waitcnt vmcnt(0)", "s_barrier")
        for half in range(2):
            for T in range(2):
                for s in range(4): e(self.kread(h, 0, T, s))
            e("s_waitcnt lgkmcnt(0)", f"v_add_u32 v{vKA}, s{sD}, v{vKA}", f"s_sub_u32 s{sD}, 0, s{sD}")
            for j in range(5):
                for T in range(2):
                    for s in range(4):
                        e(mfma(("v", vO + (j*2+T)*4), ("a", aK + 16*T + 4*s), ("a", aQ[h] + (j*4+s)*4), 0 if s == 0 else None))
            e("s_nop 7")
            for j in range(5):
                b = vO + j*8
                for r in range(0, 8, 2): e(f"v_max3_f32 v{vNM+4*j}, v{b+r}, v{b+r+1}, v{vNM+4*j}")
        e("s_barrier", f"s_add_u32 s{sOFF}, s{sOFF}, 16384", f"s_cmp_lg_u32 s{sOFF}, {16*(h+1)*16384}", f"s_cbranch_scc1 L_rl{h}")
        for M in range(16*h, 16*h + 4):
            self.emit_dma_straight(self.dma_kv_static("K", M) + self.dma_kv_static("V", M))
        e("s_waitcnt vmcnt(0)", "s_barrier", f"s_branch L_head{h}")
        self.ws = save

    def wo_hh(self, i):
        return [(0, 0), (0, 1), (1, 0), (2, 0), (3, 0), (1, 1), (2, 1), (3, 1)][i]
    def dma_wo(self, i, vbase):
        p, par = self.wo_hh(i)
        ops = []
        for t in range(9):
            pre = [I(f"s_add_u32 m0, s{sOM0}, {(i % 4)*OST + t*1024}")] if t % 4 == 0 else []
            same = [I(f"s_add_u32 s{sT3}, s{sWR+p}, {par*128*1152}")] if t == 0 else []
            ops.append((pre, same, I(f"buffer_load_dwordx4 v{vbase[t]}, {srd(SWO)}, s{sT3} offen offset:{(t % 4)*1024} {self.c.wo_flags} lds", id=("wo", i, t)), []))
        return ops
    def oacc(self, j, i):
        if j < 4: return ("v", 96 + (j*9 + i) * 4)
        return ("v", 240 + 4*i) if i < 4 else ("a", 160)

    def phase_o(self):
        e = self.e; c = self.c
        vLN, vA1 = 1, 2
        vA0 = [13, 14, 0, 12]
        vWO, vPL = 3, 15
        aA, NR = 164, 12
        e(f"v_lshrrev_b32 v12, 2, v0", "v_mul_u32_u24 v12, 288, v12", "v_and_b32 v14, 3, v0", "v_lshl_add_u32 v12, v14, 3, v12",
          f"v_lshlrev_b32 v{vLN}, 4, v0",
          f"s_lshl_b32 s3, s{sPI}, 7", "s_xor_b32 s3, s3, 128", f"v_add_u32 v{vA1}, s3, v12", f"s_mul_i32 s{sD}, s{sPI}, 160")
        for i in range(4):
            e(f"s_xor_b32 s3, s{sKQ}, {i}", "s_lshl_b32 s3, s3, 5", f"s_add_u32 s3, s3, s{sD}", f"v_add_u32 v{vA0[i]}, s3, v12")
        for t in range(9): e(f"v_accvgpr_read_b32 v{vWO+t}, a{240+t}")
        Bbuf = lambda i: ("v", 16) if i == 1 else (("a", 0) if (i == 0 or i % 2 == 1) else ("a", 80))
        def areg(f):
            r = f - 252
            if r < 12: return aA + 4 * (f % NR)
            return 80 + 4 * (r - 12) if r < 32 else 212 + 4 * (r - 32)
        ms = []; start = {}; last = {}; tend = {}
        def chain(i, n, j):
            for s in range(4):
                f = 36*i + 4*n + s
                start.setdefault(f, len(ms)); last[f] = len(ms)
                k, b = Bbuf(i)
                nd = [("oa", f + 3, 1)] if s == 0 else []
                if i >= 2: nd.append(("ob", i, 3, j))
                elif j == 4: nd.append(("pr", i, s))
                ms.append(I(mfma(self.oacc(j, n), ("a", areg(f)), (k, b + (j*4+s)*4), 0 if (i == 0 and s == 0) else None), needs=nd))
            tend[(j, n)] = len(ms) - 1
        for i in range(7):
            for n in range(9):
                for j in range(5 if n <= 4 else 4): chain(i, n, j)
        for n in range(9):
            for j in ([4] if 1 <= n <= 4 else []) + [1, 2, 3]: chain(7, n, j)
        chain(7, 0, 4)
        for n in range(9): chain(7, n, 0)
        G = Gaps(ms)
        def aread(f, v):
            n, s = divmod(f % 36, 4)
            va, off = (vA0[n], 0) if n < 4 else (vA1, 32*(n-4))
            return I(f"ds_read_b64_tr_b16 {R('a', areg(f) + 2*v, 2)}, v{va} offset:{s*9216 + v*4608 + off}", id=("oa", f, v))
        pre = [I("s_barrier", needs=[("wo", 0, 8), ("pr", 1, 3)])]
        for i in range(8):
            for r in range(36):
                for v in range(2):
                    f = 36*i + r
                    n = r // 4; k = 2*(r % 4) + v
                    if n == 0: g = 164*i - 16 + k
                    elif i == 7: g = 164*i - 8 + k if n == 1 else 164*i + ((8*(n - 2) + k) * 3) // 2
                    elif n >= 6: g = start[36*i + 4*n - 4] - 4 - 3 * (n - 5) + (3 * k) // 2
                    else: g = start[36*i + 4*n - 4] - 4 + 2 * k
                    if g < 0: pre.append(aread(f, v)); continue
                    assert g <= start[f - f % 4] - 8, (f, g, start[f])
                    assert f < NR or f >= 264 or g >= last[f - NR], (f, g)
                    G.mem[g].append(aread(f, v))
        seq = []
        gb = 145
        vW = [vWO + t for t in range(9)]
        allw = sum([self.dma_wo(k, vW) for k in range(3, 8)], [])
        cum = [0] + list(c.wo_even); assert sum(cum) == len(allw)
        assert c.o1_epi + sum(c.o1_split) == 16
        for i in range(7):
            g0 = 164 * i
            d = OST if i % 4 != 3 else -3 * OST
            for k, va in enumerate(vA0 + [vA1]):
                G.val[g0 + gb - 8 + k].append(I(f"v_add_u32 v{va}, {d & 0xffffffff:#x}, v{va}"))
            G.waitneeds[g0 + gb] += [("oa", 36*i + 35, 1), ("wo", i + 1, 8)]
            if i == c.pub2: G.waitneeds[g0 + gb] += [("os", 1, 3, 3)]
            G.sal[g0 + gb + 1].append(I("s_barrier"))
            self.stamp_gap(G, g0 + gb + 1)
            if i == c.pub2: G.val[g0 + gb + 2] += self.publish(2)
            st = self.o_stores(1, vLN)[c.o1_epi + sum(c.o1_split[:i]):c.o1_epi + sum(c.o1_split[:i+1])] if i < 3 else []
            wo = allw[sum(cum[:i+1]):sum(cum[:i+2])]
            for o in wo: assert o[2].id[1] - 4 < i < o[2].id[1]
            ob = []
            if i >= 1:
                p, par = self.wo_hh(i + 1)
                k, b = Bbuf(i + 1)
                for j in (range(5) if i < 6 else (1, 2, 3, 4, 0)):
                    for s in range(4):
                        same = [] if s else [I(f"s_add_u32 s{sT2}, s{sT}, {j*4096}") if j < 4 else I(f"s_mov_b32 s{sT2}, s3")]
                        ob.append(([], same, I(f"buffer_load_dwordx4 {R(k, b + (j*4+s)*4, 4)}, v{vLN}, {srd(SWS)}, s{sT2} offen offset:{s*1024} {c.ob_flags}", id=("ob", i + 1, s, j)), []))
                load = f"buffer_load_dword v{vPL}, off, {srd(SWS)}, s{sFP+p-1} sc1"
                test = [f"v_readfirstlane_b32 s{sT2}, v{vPL}", f"s_cmp_ge_u32 s{sT2}, {1 + par}"]
                gp = g0 - 164 + (90 if i > 1 else c.poll1)
                while G.mem[gp]: gp += 1
                G.mem[gp].append(I(load, id=("poll", i)))
                G.val[g0 - 3] += [I(f"s_add_u32 s{sT}, s{sOB}, s{sOP+p-1}"), I(f"s_add_u32 s3, s{sOS}, s{sOP+p-1}")]
                if par: G.val[g0 - 1] += [I(f"s_add_u32 s{sT}, s{sT}, 73728"), I(f"s_add_u32 s3, s3, 73728")]
                G.val[g0] += [I(test[0], needs=[("poll", i)])]
                G.val[g0 + 1] += [I(test[1]), I(f"s_cbranch_scc0 L_sp_o{i}" if not c.diag_nopoll else "s_nop 0"), I(f"L_sb_o{i}:")]
                self.spin(f"o{i}", [load], test)
            tim = [(g0 + 3 + k * c.bstep, o) for k, o in enumerate(ob)] + [(g0 + 6 + (k * (130 if i < 6 else 100)) // len(wo), o) for k, o in enumerate(wo)]
            tim += [(g0 + 1 + (k * c.st_span) // len(st), o) for k, o in enumerate(st)]
            tim.sort(key=lambda t: t[0])
            g = g0 + 1
            for t, (p_, same, vm, post) in tim:
                g = max(g + 2, t)
                while G.mem[g]: g += 1
                assert g < g0 + 160, (i, g - g0)
                G.mem[g].append(vm)
                for x in p_: seq.append((x, g - 1, g - 1))
                for x in same: seq.append((x, g - 1, g))
        vL8, vOS, vE, vOW, vFA = 82, 83, 84, 90, 95
        setup = [f"v_lshrrev_b32 v{vL8}, 1, v{vLN}", f"v_lshrrev_b32 v16, 4, v{vLN}", "v_lshrrev_b32 v17, 4, v16", "v_bfe_u32 v18, v16, 2, 2",
                 "v_cmp_eq_u32 vcc, v17, v18", "v_and_b32 v19, 1, v16", "v_lshlrev_b32 v19, 4, v19", "v_mov_b32 v20, 0x3f80",
                 "v_lshlrev_b32 v19, v19, v20", "v_cndmask_b32 v19, 0, v19, vcc", "v_and_b32 v20, 2, v16", "v_cmp_eq_u32 vcc, 0, v20",
                 f"v_mov_b32 v{vE}, 0", f"v_mov_b32 v{vE+1}, 0", f"v_cndmask_b32 v{vE+2}, 0, v19, vcc", f"v_sub_u32 v{vE+3}, v19, v{vE+2}",
                 f"v_mov_b32 v{vE+4}, 0", f"v_mov_b32 v{vE+5}, 0",
                 f"v_and_b32 v{vOS}, 15, v16", f"v_mul_u32_u24 v{vOS}, 2304, v{vOS}", f"v_lshl_add_u32 v{vOS}, v17, 3, v{vOS}",
                 f"v_mov_b32 v{vFA}, s{sFQ}", f"v_writelane_b32 v{vFA}, s{sFQ+1}, 1", f"v_writelane_b32 v{vFA}, s{sFQ+2}, 2",
                 f"v_mov_b32 v20, s{sW}", f"v_lshl_add_u32 v{vFA}, v20, 2, v{vFA}"]
        for t in range(5):
            v = vOW + t
            setup += [f"v_add_u32 v20, {64*t}, v16", f"v_mul_u32_u24 v{v}, 3641, v20", f"v_lshrrev_b32 v{v}, 16, v{v}",
                      f"v_mul_u32_u24 v{v}, 2016, v{v}", f"v_lshl_add_u32 v{v}, v20, 4, v{v}"]
        setup += ["v_lshrrev_b32 v20, 5, v16", f"v_lshl_add_u32 v{vOW+4}, v20, 28, v{vOW+4}"]
        for k, t in enumerate(setup): G.val[164*3 + 8 + 2*k].append(I(t))
        g7 = 164 * 7
        sal7 = [f"s_mul_i32 s{sT}, s{sKQ}, {4*5120}", f"s_add_u32 s{sT}, s{sT}, s{sPB}"]
        for j in range(1, 4):
            sal7 += [f"s_xor_b32 s3, s{sKQ}, {j}", f"s_mul_i32 s3, s3, {16*5120}", f"s_add_u32 s{89+j}, s3, s{sT}"]
        n_first = len(sal7)
        sal7 += [f"s_lshr_b32 s3, s{sG}, 3", f"s_lshl_b32 s{sT2}, s{sBR}, 5", f"s_add_u32 s3, s3, s{sT2}", "s_lshl_b32 s3, s3, 13",
                 f"s_lshl_b32 s{sT2}, s{sW}, 9", f"s_add_u32 s3, s3, s{sT2}", f"s_add_u32 s{sT3}, s3, {WS_SH}",
                 f"s_lshl_b32 s3, s{sKQ}, 11", f"s_add_u32 s93, s3, s{sT3}",
                 f"s_mul_i32 s{sT}, s{sKQ}, {16*5120}", f"s_add_u32 s{sT}, s{sT}, s{sPB}"]
        for j in range(1, 4):
            sal7 += [f"s_xor_b32 s{sT2}, s{sKQ}, {j}", f"s_mul_i32 s3, s{sT2}, {4*5120}", f"s_add_u32 s{sFP+j-1}, s3, s{sT}",
                     f"s_lshl_b32 s3, s{sT2}, 11", f"s_add_u32 s{sOP+j-1}, s3, s{sT3}"]
        sal7 += [f"s_mul_i32 s{sT}, s{sBR}, 1152", f"s_mul_i32 s3, s{sHP}, 288", f"s_add_u32 s{sT}, s{sT}, s3",
                 f"s_mul_i32 s3, s{sB}, {288*2304}", f"s_add_u32 s{sT}, s{sT}, s3",
                 f"s_lshl_b32 s3, s{sROW+4}, 1", f"s_add_u32 s82, s{sT}, s3", f"s_lshl_b32 s3, s{sROW}, 1", f"s_add_u32 s81, s{sT}, s3",
                 f"s_lshl_b32 s3, s{sKQ}, 5", f"s_add_u32 s3, s3, s{sD}", f"s_add_u32 s83, s3, s82",
                 f"s_lshl_b32 s3, s{sW}, 2", f"s_add_u32 s{sFL}, s{sFL}, s3", f"s_mul_i32 s84, s{sW}, 4608"]
        for k, t in enumerate(sal7): seq.append((I(t), g7, g7 + (24 if k < n_first else 66)))
        tr = [f"v_lshrrev_b32 v9, 4, v{vLN}", "v_and_b32 v10, 15, v9", "v_mul_u32_u24 v10, 288, v10", "v_lshrrev_b32 v9, 4, v9",
              "v_lshl_add_u32 v10, v9, 3, v10", "v_add_u32 v10, s84, v10", f"v_add_u32 v8, s84, v{vLN}",
              f"v_mov_b32 v11, s{sKQ}", f"v_add_u32 v7, s{sD}, v10"]
        for n in range(4): tr += [f"v_xor_b32 v{3+n}, {n}, v11", f"v_lshl_add_u32 v{3+n}, v{3+n}, 5, v7"]
        tr += [f"v_mov_b32 v11, s{sPI}", "v_xor_b32 v11, 1, v11", "v_lshl_add_u32 v7, v11, 7, v10"]
        def pk(dst, t):
            return [f"v_cvt_pk_bf16_f32 v{dst}, v{t}, v{t+1}", f"v_cvt_pk_bf16_f32 v{dst+1}, v{t+2}, v{t+3}"]
        pairs = lambda j, x: [((j, 0 ^ x), (j, 1 ^ x)), ((j, 2 ^ x), (j, 3 ^ x)), ((4, j), (j, 4)), ((j, 5), (j, 6)), ((j, 7), (j, 8))]
        load7 = lambda g: 2 * sum(x.k == "vm" for x in G.mem[g]) + sum(x.k == "ds" for x in G.mem[g]) + len(G.val[g])
        def putv(g, t):
            while load7(g) >= 2: g += 1
            G.val[g].append(I(t)); return g
        msgs = []
        for k in range(5):
            for j in range(1, 4):
                d = 16 + ((j-1)*5 + k) * 4
                g = 0
                for q, (tj, tn) in enumerate(pairs(j, 0)[k]):
                    gg = tend[(tj, tn)] + 6
                    for t in pk(d + 2*q, self.oacc(tj, tn)[1]): gg = putv(gg, t)
                    g = max(g, gg)
                msgs.append((g + 1, k, j, I(f"buffer_store_dwordx4 v[{d}:{d+3}], v{vLN}, {srd(SWS)}, s{89+j} offen offset:{(k % 4)*1024} {c.p_flags}", id=("ps", j, k))))
        gg = tend[(4, 4)] + 5
        for r in range(4): gg = putv(gg, f"v_accvgpr_read_b32 v{76+r}, a{160+r}")
        for t in pk(80, 76): gg = putv(gg + 1, t)
        msgs.append((gg + 1, 5, 0, I(f"buffer_store_dwordx2 v[80:81], v{vL8}, {srd(SWS)}, s93 offen {c.p_flags}", id=("ps", 4, 0))))
        msgs.sort(key=lambda t: t[0])
        g = 0
        for t, k, j, vm in msgs:
            g = max(g + 2, t)
            while G.mem[g] or len(G.val[g]) > 1: g += 1
            G.mem[g].append(vm)
            if k == 4: seq.append((I(f"s_add_u32 s{89+j}, s{89+j}, 4096"), g - 1, g))
            assert g > g7 + (25 if k < 5 else 67)
        poll = f"buffer_load_dword v{vPL}, v{vFA}, {srd(SWS)}, 0 offen offset:16 sc1"
        G.mem[g + 2].append(I(poll, id=("fpoll",)))
        gg = g + 3
        for t in tr + [f"v_mov_b32 v{134 + 4*j + r}, 0" for j in range(1, 4) for r in range(2)] + ["v_mov_b32 v11, 1"]: gg = putv(gg, t)
        seq += [(I(f"s_mov_b32 s{sKO}, 0"), g + 1, len(ms) - 1), (I(f"s_mov_b32 s{sWIN}, 0"), g + 1, len(ms) - 1),
                (I(f"s_mov_b32 s{sSPIN}, 0x40000"), g + 1, len(ms) - 1)]
        self.e(*pre)
        pre2 = []
        G.place_waits(self.ws, pre2)
        G.place_salu(seq)
        self.raw(pre2)
        self.raw(G.flat())
        print("phase O est cycles", G.cost(), "last send at", g - g7, file=sys.stderr)
        self.stamp()
        sDONE, sPEND = sKO, sWIN
        e("s_waitcnt vmcnt(0)", f"buffer_store_dword v11, off, {srd(SWS)}, s{sFL} offset:16 sc1")
        self.stamp()
        e("s_branch L_gchk", "L_gather:", "s_waitcnt vmcnt(0)")
        for j in range(1, 4):
            e(f"s_bitcmp1_b32 s{sPEND}, {j-1}", f"s_cbranch_scc0 L_gm{j}")
            for k, (t0, t1) in enumerate(pairs(0, j)):
                d = 16 + ((j-1)*5 + k) * 4
                e(mfma(self.oacc(*t0), ("v", vE + 2), ("v", d)), mfma(self.oacc(*t1), ("v", vE), ("v", d)))
            e(mfma(("v", 76), ("v", vE + 2), ("v", 132 + 4*j)), f"L_gm{j}:")
        e(f"s_cmp_eq_u32 s{sDONE}, 7", "s_cbranch_scc1 L_gdone", "L_gchk:",
          f"v_cmp_ne_u32 vcc, 0, v{vPL}", f"s_sub_u32 s{sSPIN}, s{sSPIN}, 1", f"s_cselect_b32 s3, 7, 0", "s_or_b32 s3, s3, vcc_lo", "s_and_b32 s3, s3, 7",
          f"s_andn2_b32 s{sPEND}, s3, s{sDONE}", f"s_or_b32 s{sDONE}, s{sDONE}, s3")
        for j in range(1, 4):
            e(f"s_bitcmp1_b32 s{sPEND}, {j-1}", f"s_cbranch_scc0 L_gl{j}")
            for k in range(5):
                d = 16 + ((j-1)*5 + k) * 4
                if k == 4: e(f"s_add_u32 s{sFP+j-1}, s{sFP+j-1}, 4096")
                e(f"buffer_load_dwordx4 v[{d}:{d+3}], v{vLN}, {srd(SWS)}, s{sFP+j-1} offen offset:{(k % 4)*1024} sc1")
            e(f"buffer_load_dwordx2 v[{132+4*j}:{133+4*j}], v{vL8}, {srd(SWS)}, s{sOP+j-1} offen sc1", f"L_gl{j}:")
        e(poll, "s_branch L_gather", "L_gdone:")
        self.stamp()
        e("s_nop 7")
        for n in range(9):
            t = self.oacc(0, n)[1]
            e(*pk(t, t), I(f"ds_write_b64 v{3 + min(n, 4)}, v[{t}:{t+1}] offset:{32 * max(0, n - 4)}", id=("tw", n)))
        for t in range(5): e(I(f"ds_read_b128 v[{16+4*t}:{19+4*t}], v8 offset:{1024*t}", id=("tr", t)))
        t = self.oacc(4, 0)[1]
        e(*pk(t, t), *pk(76, 76), f"v_cmp_eq_u32 vcc, s{sKQ}, v9")
        for k in range(5):
            e(I(f"buffer_store_dwordx4 v[{16+4*k}:{19+4*k}], v{vOW+k}, {srd(SOUT)}, s81 offen {c.out_flags}", needs=[("tr", k)]))
        e(f"buffer_store_dwordx2 v[{t}:{t+1}], v{vOS}, {srd(SOUT)}, s83 offen {c.out_flags}")
        e(f"s_cmp_eq_u32 s{sPI}, 1", "s_cbranch_scc1 L_fin",
          "s_and_saveexec_b64 s[90:91], vcc", f"buffer_store_dwordx2 v[76:77], v{vOS}, {srd(SOUT)}, s82 offen offset:128 {c.out_flags}",
          "s_mov_b64 exec, s[90:91]", "L_fin:")

    def build(self):
        self.setup()
        self.phase_q()
        self.attn_schedule()
        self.head(0)
        self.head(1)
        self.stamp()
        if self.c.stop_after != "A":
            self.phase_o()
        self.e("s_waitcnt vmcnt(0) lgkmcnt(0)")
        self.stamp()
        if self.c.amp is not None:
            print("n stamps", self.nstamp, file=sys.stderr)
            if self.c.amp[0] < 0: self.e("s_mov_b32 s96, s98")
            self.e(f"s_and_b32 s3, s{sG}, {self.c.amp[1]}", f"s_cmp_lg_u32 s3, {self.c.amp[2]}", "s_cbranch_scc1 L_end",
                   "s_sub_u32 s96, s96, s98", "s_mul_i32 s96, s96, 4", "s_add_u32 s96, s96, 20000", "L_amp:", "s_memrealtime s[100:101]", "s_waitcnt lgkmcnt(0)",
                   "s_sub_u32 s100, s100, s98", "s_cmp_lt_u32 s100, s96", "s_cbranch_scc1 L_amp")
        self.e("s_endpgm")
        self.raw(self.tailcode)
        self.redo(0)
        self.redo(1)
        self.e("L_end:")
        probs = check_hazards(self.out, "main") + check_scc(self.out, "scc")
        for nm, seq in self.checks: probs += check_hazards(seq, nm)
        for p in probs: print(p, file=sys.stderr)
        assert not probs
        hdr = open("cdna_kernels/" + NAME[:-7] + ".s.ref").read().split("; Override launch")[0]
        txt = hdr + f"; @launch grid=(256,1,1) block=(256,1,1) lds={LDS_BYTES}\n"
        txt += f""".amdgcn_target "amdgcn-amd-amdhsa--gfx950"
.text
.globl {NAME}
.p2align 8
.type {NAME},@function
{NAME}:
"""
        for x in self.out:
            if self.c.diag_noo1 and x.id and x.id[:2] == ("os", 1) and x.id[2] < 4: x = I("buffer_store_dword v1, off, s[32:35], 0 offset:512")
            if self.c.no_dma and x.k == "vm" and f"s{sOFF} offen" in x.t: continue
            txt += (x.t if x.k == "l" else "    " + " ".join(x.t.split())) + "\n"
        txt += f"""    s_endpgm
.section .rodata,"a"
.p2align 6
.amdhsa_kernel {NAME}
  .amdhsa_next_free_vgpr 512
  .amdhsa_next_free_sgpr 102
  .amdhsa_accum_offset 256
  .amdhsa_group_segment_fixed_size 0
  .amdhsa_kernarg_size 104
  .amdhsa_user_sgpr_count 2
  .amdhsa_user_sgpr_kernarg_segment_ptr 1
  .amdhsa_system_sgpr_workgroup_id_x 1
.end_amdhsa_kernel
"""
        return txt

def make(**kw):
    c = Cfg()
    for k, v in kw.items():
        assert hasattr(c, k), k
        setattr(c, k, v)
    return Gen(c).build()

if __name__ == "__main__":
    kw = {}
    out = sys.argv[1]
    for a in sys.argv[2:]:
        k, v = a.split("=", 1)
        try: v = eval(v)
        except Exception: pass
        kw[k] = v
    open(out, "w").write(make(**kw))
```

```python
import re

class I:
    __slots__ = ("t", "k", "id", "needs", "key")
    def __init__(self, t, k=None, id=None, needs=None, key=None):
        self.t = t
        self.k = k or kind_of(t)
        self.id = id
        self.needs = list(needs) if needs else []
        self.key = key
    def __repr__(self):
        return self.t

TRANS = ("v_exp_f32", "v_log_f32", "v_rcp_f32", "v_rsq_f32", "v_sqrt_f32")
def kind_of(t):
    op = t.split()[0]
    if op.endswith(":"): return "l"
    if op.startswith("."): return "x"
    if op.startswith(";"): return "x"
    if op.startswith("v_mfma"): return "m"
    if op in TRANS: return "e"
    if op.startswith("v_"): return "v"
    if op.startswith("ds_"): return "ds"
    if op.startswith("buffer_") or op.startswith("global_"): return "vm"
    if op == "s_waitcnt": return "w"
    if op == "s_barrier": return "b"
    if op.startswith("s_cbranch") or op == "s_branch": return "br"
    if op.startswith("s_"): return "s"
    raise ValueError(t)

def R(k, a, n=1):
    return f"{k}{a}" if n == 1 else f"{k}[{a}:{a+n-1}]"

def mfma(d, a, b, c=None):
    cs = R(d[0], d[1], 4) if c is None else ("0" if c == 0 else R(c[0], c[1], 4))
    return f"v_mfma_f32_16x16x32_bf16 {R(d[0], d[1], 4)}, {R(a[0], a[1], 4)}, {R(b[0], b[1], 4)}, {cs}"

class WaitState:
    def __init__(self):
        self.q = {"ds": [], "vm": []}
        self.done = {"ds": 0, "vm": 0}
        self.pos = {}
    def issue(self, ins):
        q = self.q[ins.k]
        q.append(ins.id)
        if ins.id is not None:
            self.pos[ins.id] = (ins.k, len(q))
    def need(self, ids):
        want = {}
        for i in ids:
            if i not in self.pos:
                raise KeyError(f"need of un-issued op {i}")
            k, p = self.pos[i]
            if p > self.done[k]:
                want[k] = max(want.get(k, 0), p)
        if not want: return None
        parts = []
        for k, nm, mx in (("vm", "vmcnt", 63), ("ds", "lgkmcnt", 15)):
            if k in want:
                n = min(len(self.q[k]) - want[k], mx)
                self.done[k] = len(self.q[k]) - n
                parts.append(f"{nm}({n})")
        return "s_waitcnt " + " ".join(parts)
    def explicit(self, text):
        for k, nm in (("vm", "vmcnt"), ("ds", "lgkmcnt")):
            m = re.search(nm + r"\((\d+)\)", text)
            if m:
                self.done[k] = max(self.done[k], len(self.q[k]) - int(m.group(1)))

def linear_waits(ins, ws):
    out = []
    for x in ins:
        if x.needs:
            w = ws.need(x.needs)
            if w: out.append(I(w))
        if x.k == "w": ws.explicit(x.t)
        if x.k in ("ds", "vm"): ws.issue(x)
        out.append(x)
    return out

class Gaps:
    def __init__(self, ms):
        self.ms = ms
        n = len(ms)
        self.sal = [[] for _ in range(n)]
        self.mem = [[] for _ in range(n)]
        self.val = [[] for _ in range(n)]
        self.waitneeds = [[] for _ in range(n)]
    def place_waits(self, ws, pre):
        n = len(self.ms)
        w = ws.need(self.ms[0].needs)
        if w: pre.append(I(w))
        for g in range(n):
            needs = list(self.waitneeds[g])
            for x in self.mem[g]: needs += x.needs
            for x in self.val[g]: needs += x.needs
            if g + 1 < n: needs += self.ms[g + 1].needs
            w = ws.need(needs)
            if w: self.sal[g].insert(0, I(w))
            for x in self.mem[g]: ws.issue(x)
    def unify_waits(self, starts, n):
        for r in range(n):
            cnt = {}
            for a in starts:
                for x in self.sal[a + r]:
                    if x.k == "w":
                        for nm, v in re.findall(r"(vmcnt|lgkmcnt)\((\d+)\)", x.t): cnt[nm] = min(cnt.get(nm, 99), int(v))
            if not cnt: continue
            t = "s_waitcnt " + " ".join(f"{nm}({cnt[nm]})" for nm in ("vmcnt", "lgkmcnt") if nm in cnt)
            for a in starts:
                self.sal[a + r] = [I(t)] + [x for x in self.sal[a + r] if x.k != "w"]
    def load(self, g):
        return (4 * max(0, len(self.sal[g]) - 1) + sum(8 if x.k == "vm" else 4 for x in self.mem[g])
                + sum(8 if x.k == "e" else 4 for x in self.val[g]))
    def place_salu(self, seq, dense=False):
        last = -1
        for x, lo, hi in seq:
            g0 = max(lo, last)
            g = g0
            while g <= hi and self.sal[g] and not (dense and self.load(g) <= 4 and self.sal[g][-1].k != "b"): g += 1
            if g > hi:
                g = g0
                assert g <= hi, (x, lo, hi, last)
            self.sal[g].append(x)
            last = g
    def flat(self, a=0, b=None):
        out = []
        for g in range(a, len(self.ms) if b is None else b):
            out.append(self.ms[g])
            out += self.sal[g] + self.mem[g] + self.val[g]
        return out
    def cost(self, a=0, b=None):
        tot = 0
        for g in range(a, len(self.ms) if b is None else b):
            c = 8 + 4 * max(0, len(self.sal[g]) - 1)
            for x in self.mem[g]: c += 8 if x.k == "vm" else 4
            for x in self.val[g]: c += 8 if x.k == "e" else 4
            tot += max(16, c)
        return tot

_reg = re.compile(r"\b([vas])(?:(\d+)|\[(\d+):(\d+)\])")
def regs(tok):
    out = set()
    for m in _reg.finditer(tok):
        k = m.group(1)
        if m.group(2) is not None: out.add((k, int(m.group(2))))
        else: out.update((k, i) for i in range(int(m.group(3)), int(m.group(4)) + 1))
    if re.search(r"\bvcc\b", tok): out.add(("s", "vcc"))
    if re.search(r"\bm0\b", tok): out.add(("s", "m0"))
    if re.search(r"\bexec\b", tok): out.add(("s", "exec"))
    return out

def rw(x):
    t = x.t.split(";")[0].strip()
    op, _, rest = t.partition(" ")
    ops = [o.strip() for o in rest.split(",")] if rest else []
    k = x.k
    if k in ("l", "x", "w", "b", "br"): return set(), set(), {}
    if k == "m":
        return regs(ops[0]), regs(ops[1]) | regs(ops[2]) | regs(ops[3]), {"A": regs(ops[1]) | regs(ops[2]), "C": regs(ops[3])}
    if k == "ds":
        if op.startswith("ds_read"): return regs(ops[0]), regs(ops[1]), {}
        return set(), set().union(*[regs(o) for o in ops]), {}
    if k == "vm":
        if not ops: return set(), set(), {}
        if " lds" in t: return set(), set().union(*[regs(o) for o in ops]) | {("s", "m0")}, {}
        if "load" in op: return regs(ops[0]), set().union(*[regs(o) for o in ops[1:]]), {}
        if op.startswith("global_store"):
            return set(), set().union(*[regs(o) for o in ops]), {"data": regs(ops[1])}
        return set(), set().union(*[regs(o) for o in ops]), {"data": regs(ops[0])}
    if k == "s":
        if op.startswith("s_cmp") or op in ("s_nop", "s_sleep", "s_endpgm", "s_setprio"):
            return set(), set().union(set(), *[regs(o) for o in ops]), {}
        w = regs(ops[0])
        if "saveexec" in op: w |= {("s", "exec")}
        return w, set().union(set(), *[regs(o) for o in ops[1:]]), {}
    if "permlane" in op:
        a = regs(ops[0]) | regs(ops[1]); return a, a, {}
    w = regs(ops[0]); r = set().union(set(), *[regs(o) for o in ops[1:]])
    if op.startswith("v_fmac") or op.startswith("v_writelane"): r |= w
    return w, r, {}

def fix_hazards(ins):
    ins = list(ins)
    while True:
        p = check_hazards(ins, raw=True)
        if not p: return ins
        x, short = p[0]
        k = next(i for i, y in enumerate(ins) if y is x)
        ins.insert(k, I(f"s_nop {short-1}"))

def check_hazards(ins, name="", raw=False):
    seq = [x for x in ins if x.k not in ("l", "x")]
    info = [rw(x) for x in seq]
    probs = []
    for i, x in enumerate(seq):
        w, r, ex = info[i]
        op = x.t.split()[0]
        dist = 0
        for j in range(i - 1, max(-1, i - 24), -1):
            y = seq[j]; yw, yr, yex = info[j]
            yop = y.t.split()[0]
            need = 0
            isv = x.k in ("v", "e")
            if y.k in ("v", "e"):
                if x.k == "m" and yw & r: need = 2
                if isv and "permlane" in op and yw & r: need = 2
                if isv and "dpp" in x.t and yw & r: need = 2
                if op in ("v_readfirstlane_b32", "v_readlane_b32") and yw & r: need = max(need, 1)
                if y.k == "e" and x.k == "v" and yw & r: need = max(need, 1)
                ysg = {q for q in yw if q[0] == "s"}
                if ysg & r:
                    if x.k == "vm": need = max(need, 5)
                    elif isv: need = max(need, 2)
            if y.k == "m":
                if x.k == "m":
                    if yw & ex["A"]: need = 8
                    elif yw & ex["C"] and yw != ex["C"]: need = 6
                    elif yw & w and yw != ex["C"]: need = 6
                elif x.k in ("v", "e", "ds", "vm"):
                    if yw & (r | w): need = 8
                    if isv and yex["C"] & w: need = max(need, 3)
            if y.k == "vm" and "data" in yex and ("x4" in yop or "x3" in yop) and yex["data"] & w:
                need = max(need, 2 if isv else 1)
            if y.k == "s" and ("s", "m0") in yw and x.k == "vm" and " lds" in x.t: need = max(need, 1)
            if need > dist:
                probs.append((x, need - dist) if raw else f"{name}: hazard need {need} have {dist}: [{y.t}] -> [{x.t}]")
            dist += (int(y.t.split()[1]) + 1) if yop == "s_nop" else 1
            if dist >= 12: break
    return probs


def check_scc(ins, name=""):
    probs = []; last = None; used = True; prev = None
    nowrite = ("s_mov", "s_cselect", "s_mul_i32", "s_nop", "s_load", "s_bitset", "s_atomic", "s_mem", "s_getpc", "s_sleep", "s_endpgm", "s_setprio")
    for x in ins:
        op = x.t.split()[0]
        if x.k == "l" and not op.startswith(("L_sb", "L_pub", "L_pc", "L_qepi", "L_hepi")): last = None; used = True
        if x.k not in ("s", "br"): continue
        reads = op.startswith(("s_cselect", "s_cbranch_scc", "s_addc", "s_subb"))
        if reads:
            if last is not None and not last.t.startswith(("s_cmp", "s_bitcmp")) and last is not prev:
                probs.append(f"{name}: scc reader [{x.t}] after [{last.t}]")
            used = True
        if x.k == "s" and not op.startswith(nowrite):
            if not used: probs.append(f"{name}: compare [{last.t}] clobbered by [{x.t}]")
            last = x; used = not op.startswith(("s_cmp", "s_bitcmp"))
        prev = x
    return probs
```

```python
import sys, struct, math
from asmlib import *

NAME = "concat_heads__mha_block_cached__gqa_block_cached__near_ridge_kernel"
def f2u(x): return struct.unpack("<I", struct.pack("<f", x))[0]

class Cfg:
    stamps = False
    stop_after = None
    kv_flags = "nt"
    x_flags = ""
    wq_flags = ""
    wo_flags = ""
    thr = 2.0 ** 30
    backlog = 30
    code_prefetch = True
    nfirst = 22
    touch13 = True
    touch_flags = ''
    o1_epi = 6
    st_span = 136
    poll1 = 2
    steal = True
    diag_noatom = False
    wstart = 26
    wstep = 14
    n0 = 10
    cp_split = True
    stamp0 = False
    ws_off = 0
    touch_win = 13
    kmask = (2, 2)
    vmask = (2, 2)
    stag = 3
    vpos = (4, 10)
    kpos = (8, 18)
    touch_pos = 40
    wo_pos = (60, 9)
    wq8 = False
    retouch = True
    o0_pos = (110, 12)
    ob_flags = 'sc1'
    p_flags = 'sc1'
    out_flags = 'sc1'
    nx0 = True
    bstep = 7
    ones = (0, 1, 2, 3, 4)
    edelay = 5
    cnt = [3, 3, 3, 3, 3, 3, 3, 3, 3, 5]
    onepos = (2, 5, 9, 9)
    wtrace = False
    fill = {15: 'K0', 16: 'K1', 17: 'K2 V3'}
    loop_q = True
    o_flags = 'sc1'
    amp = None
    kv_same = False
    no_dma = False

SX, SWQ, SK, SV, SWO, SWS, SOUT, SDBG = 4, 8, 12, 16, 20, 24, 28, 32
sW, sPI, sKQ, sB, sHP, sBR = 36, 37, 38, 39, 40, 41
sROW = 42
sH, sDA, sDB, sD, sM0, sOFF, sT, sT2 = 47, 48, 49, 50, 51, 52, 53, 54
sWM0 = 55
sC = 56
sTHR, sXK, sWK, sXM0, sREDO, sKVW = 58, 59, 60, 61, 62, 63
sOB = 64
sOS = 65
sG = 2
sST = 68
sSTO = 70
sFL = 71
sFP = 72
sFQ = 75
sOP = 78
sWR = 81
sPB = 85
sOM0 = 86
sT3 = 87
sSPIN = 88
sCT = 66
sKO, sWIN, sDUM, sCUR = 89, 94, 95, 67
PITCH = 17408
VBASE = 4 * PITCH
XB = (121856, 80896)
SCR = 8 * PITCH
MISC = 9 * PITCH
LDS_BYTES = 163840
HALF = 8448
WS_O = 0
WS_PART = 0x2800000
WS_SH = 0x3e00000
WS_FLAG = 0x3f00000
WS_STAMP = 0x4000000
OST = 36864
WS_BYTES = 292618240
vDMA, vKA, vVA = 1, 2, 3
vL = 4
vT = 9
vNM = 16
vS = 36
NS = 6
vP = (60, 80)
vO = 96
vXD, vWD, vXR, vWR0, vWR1 = 4, 5, 6, 7, 8
aQ = (0, 80)
aK = 160
aV = 192
NV = 4
aL = 208
aONE = 228

def srd(n): return f"s[{n}:{n+3}]"

class Gen:
    def __init__(self, cfg):
        self.c = cfg
        self.out = []
        self.ws = WaitState()
        self.nstamp = 0
        self.tailcode = []
        self.checks = []
    def e(self, *ts):
        for t in ts:
            for line in (t.split("\n") if isinstance(t, str) else [t]):
                if isinstance(line, str):
                    line = line.strip()
                    if not line: continue
                    line = I(line)
                self.out += linear_waits([line], self.ws)
    def raw(self, ins):
        self.out += ins
    def stamp_ins(self):
        k = self.nstamp; self.nstamp += 1
        return [I(x) for x in (f"s_memtime s[{sST}:{sST+1}]", "s_memrealtime s[96:97]", "s_waitcnt lgkmcnt(0)",
               f"v_accvgpr_write_b32 a252, s{sST}", f"v_accvgpr_write_b32 a253, s96",
               f"buffer_store_dwordx2 a[252:253], off, {srd(SWS)}, s{sSTO} offset:{k*8}")]
    def stamp(self):
        if self.c.amp is not None:
            k = self.nstamp; self.nstamp += 1
            if k == self.c.amp[0]: self.e("s_memrealtime s[96:97]", "s_waitcnt lgkmcnt(0)")
        if self.c.stamps: self.e(*self.stamp_ins())
    def stamp_gap(self, G, g):
        if not self.c.stamps: return
        x = self.stamp_ins()
        G.val[g] += x[:-1]
        G.mem[g + 1].insert(0, x[-1])

    def setup(self):
        c = self.c; e = self.e
        e(f"""
        s_cmp_ge_u32 s2, 256
        s_cbranch_scc1 L_end
        {"s_memtime s[96:97]" if c.stamps else ""}
        {"s_memrealtime s[98:99]" if (c.stamps or c.amp) else ""}
        s_load_dwordx16 s[64:79], s[0:1], 0
        s_load_dwordx8 s[80:87], s[0:1], 64
        s_load_dwordx2 s[88:89], s[0:1], 96
        v_lshrrev_b32 v9, 6, v0
        v_and_b32 v0, 63, v0
        s_and_b32 s3, s2, 7
        v_readfirstlane_b32 s{sW}, v9
        s_lshr_b32 s{sBR}, s3, 2
        s_and_b32 s{sKQ}, s3, 3
        s_lshr_b32 s3, s2, 3
        s_lshr_b32 s{sB}, s3, 2
        s_and_b32 s{sHP}, s3, 3
        s_and_b32 s{sPI}, s{sW}, 1
        """)
        e(f"s_mov_b32 s{sD}, 0")
        if c.code_prefetch:
            e(f"""
            s_getpc_b64 s[100:101]
            L_pc:
            s_mov_b32 s92, s100
            s_mov_b32 s93, s101
            s_mov_b32 s94, L_end-L_pc
            s_mov_b32 s95, 0x20000
            """)
            if c.cp_split:
                e(f"""
                s_and_b32 s3, s3, 7
                s_lshl_b32 s3, s3, 2
                s_add_u32 s{sD}, s3, s{sW}
                v_cmp_gt_u32 vcc, 20, v0
                s_mul_i32 s3, s{sD}, {20*128}
                v_lshlrev_b32 v10, 7, v0
                v_mov_b32 v11, 0x1000000
                v_cndmask_b32 v10, v11, v10, vcc
                buffer_load_dword v15, v10, s[92:95], s3 offen
                """)
            else:
                e(f"""
                v_lshlrev_b32 v10, 7, v0
                s_lshl_b32 s3, s{sW}, 13
                v_add_u32 v10, s3, v10
                buffer_load_dword v15, v10, s[92:95], 0 offen
                s_mov_b32 s3, 0x8000
                buffer_load_dword v15, v10, s[92:95], s3 offen
                s_mov_b32 s3, 0x10000
                buffer_load_dword v15, v10, s[92:95], s3 offen
                """)
        e(f"""
        v_lshrrev_b32 v9, 2, v0
        v_mul_u32_u24 v{vXD}, 1152, v9
        v_lshrrev_b32 v9, 4, v0
        v_and_b32 v9, 2, v9
        v_xor_b32 v9, v9, v0
        v_and_b32 v9, 3, v9
        v_lshl_add_u32 v{vXD}, v9, 4, v{vXD}
        v_lshrrev_b32 v9, 5, v0
        v_lshlrev_b32 v9, 15, v9
        v_and_b32 v14, 31, v0
        v_lshl_add_u32 v9, v14, 4, v9
        s_lshl_b32 s3, s{sW}, 16
        v_add_u32 v{vWD}, s3, v9
        s_mul_i32 s{sXM0}, s{sW}, 10240
        s_add_u32 s{sXM0}, s{sXM0}, {XB[1]}
        s_mul_i32 s{sWM0}, s{sW}, 4352
        {f"s_lshl_b32 s3, s{sPI}, 3" if c.wq8 else ""}
        {f"s_add_u32 s{sWM0}, s{sWM0}, s3" if c.wq8 else ""}
        s_lshr_b32 s3, s{sW}, 1
        s_mul_i32 s3, s3, 144
        s_add_u32 s{sROW+4}, s3, 128
        s_mul_i32 s{sROW+4}, s{sROW+4}, 1152
        s_lshl_b32 s{sT}, s{sPI}, 6
        s_add_u32 s3, s3, s{sT}
        """)
        for j in range(4):
            e(f"s_xor_b32 s{sT}, s{sKQ}, {j}", f"s_lshl_b32 s{sT}, s{sT}, 4", f"s_add_u32 s{sT}, s{sT}, s3",
              f"s_mul_i32 s{sROW+j}, s{sT}, 1152")
        e(f"s_mov_b32 s{sXK}, 0", f"s_mov_b32 s{sWK}, 0")
        e(f"""
        s_waitcnt lgkmcnt(0)
        {"s_memrealtime s[90:91]" if c.stamp0 else ""}
        s_cmp_eq_u32 s{sBR}, 0
        s_cselect_b64 s[{SX}:{SX+1}], s[64:65], s[74:75]
        s_cselect_b64 s[{SWQ}:{SWQ+1}], s[70:71], s[80:81]
        s_mul_i32 s3, s{sB}, 331776
        s_add_u32 s{SX}, s{SX}, s3
        s_addc_u32 s{SX+1}, s{SX+1}, 0
        s_mov_b32 s{SX+2}, 331776
        s_mov_b32 s{SX+3}, 0x20000
        s_lshl_b32 s{sT}, s{sKQ}, 2
        s_add_u32 s{sT}, s{sT}, s{sHP}
        s_lshl_b32 s3, s{sT}, 9
        s_add_u32 s{SWQ}, s{SWQ}, s3
        s_addc_u32 s{SWQ+1}, s{SWQ+1}, 0
        s_sub_u32 s{SWQ+2}, {576*8192}, s3
        s_mov_b32 s{SWQ+3}, 0x20000
        """)

    def setup2(self):
        e = self.e; c = self.c
        cc = f2u(math.log2(math.e) / math.sqrt(128.0))
        e(f"""
        s_cmp_eq_u32 s{sBR}, 0
        s_cselect_b64 s[{SK}:{SK+1}], s[66:67], s[76:77]
        s_cselect_b64 s[{SV}:{SV+1}], s[68:69], s[78:79]
        s_cselect_b64 s[{SWO}:{SWO+1}], s[72:73], s[82:83]
        s_mul_i32 s{sKVW}, s{sW}, 4224
        v_lshrrev_b32 v9, 2, v0
        v_and_b32 v9, 2, v9
        v_lshrrev_b32 v14, 4, v0
        v_xor_b32 v9, v9, v14
        v_and_b32 v14, 15, v0
        v_lshl_add_u32 v9, v14, 2, v9
        v_lshlrev_b32 v9, 4, v9
        v_add_u32 v{vXR}, s{sXM0}, v9
        v_lshrrev_b32 v9, 2, v0
        v_mul_u32_u24 v9, 1088, v9
        v_and_b32 v14, 3, v0
        v_lshl_add_u32 v9, v14, 4, v9
        {"v_bfe_u32 v14, v0, 4, 1" if c.wq8 else ""}
        {"v_lshl_add_u32 v9, v14, 3, v9" if c.wq8 else ""}
        s_lshl_b32 s3, s{sPI}, 8
        v_add_u32 v{vWR0}, s3, v9
        s_xor_b32 s3, s3, 256
        v_add_u32 v{vWR1}, s3, v9
        s_lshl_b32 s3, s{sW}, 12
        v_lshlrev_b32 v9, 4, v0
        v_add_u32 v{vDMA}, s3, v9
        s_mov_b32 s{sC}, {cc:#x}
        s_mov_b32 s{sC+1}, {cc:#x}
        s_mov_b32 s{sTHR}, {f2u(c.thr):#x}
        s_mul_i32 s{sH}, s{sPI}, {-2*HALF}
        s_add_u32 s{sH}, s{sH}, {HALF}
        s_sub_u32 s{sDA}, {PITCH}, s{sH}
        s_sub_u32 s{sDB}, {-3*PITCH}, s{sH}
        s_lshl_b32 s{sT}, s{sKQ}, 2
        s_add_u32 s{sT}, s{sT}, s{sHP}
        s_lshl_b32 s3, s{sB}, 4
        s_add_u32 s{sT}, s{sT}, s3
        s_lshl_b32 s3, s{sT}, 19
        {"s_mov_b32 s3, 0" if self.c.kv_same else ""}
        s_add_u32 s{SK}, s{SK}, s3
        s_addc_u32 s{SK+1}, s{SK+1}, 0
        s_mov_b32 s{SK+2}, 524288
        s_mov_b32 s{SK+3}, 0x20000
        s_add_u32 s{SV}, s{SV}, s3
        s_addc_u32 s{SV+1}, s{SV+1}, 0
        s_mov_b32 s{SV+2}, 524288
        s_mov_b32 s{SV+3}, 0x20000
        s_mov_b32 s{SWO+2}, {4096*1152}
        s_mov_b32 s{SWO+3}, 0x20000
        s_mov_b32 s{SOUT}, s84
        s_mov_b32 s{SOUT+1}, s85
        s_mov_b32 s{SOUT+2}, {8*288*1152*2}
        s_mov_b32 s{SOUT+3}, 0x20000
        s_mov_b32 s{SDBG}, s86
        s_mov_b32 s{SDBG+1}, s87
        s_mov_b32 s{SDBG+2}, 256
        s_mov_b32 s{SDBG+3}, 0x20000
        s_add_u32 s{SWS}, s88, {self.c.ws_off}
        s_addc_u32 s{SWS+1}, s89, 0
        s_mov_b32 s{SWS+2}, {WS_BYTES - self.c.ws_off}
        s_mov_b32 s{SWS+3}, 0x20000
        s_lshl_b32 s3, s{sBR}, 7
        s_add_u32 s{sT}, s{sT}, s3
        s_mul_i32 s{sOB}, s{sT}, 147456
        s_lshr_b32 s3, s{sW}, 1
        s_mul_i32 s3, s3, 36864
        s_add_u32 s{sOB}, s{sOB}, s3
        s_add_u32 s{sOS}, s{sOB}, 32768
        s_lshl_b32 s3, s{sPI}, 14
        s_add_u32 s{sOB}, s{sOB}, s3
        s_mov_b32 s{sCT}, s{sD}
        s_lshl_b32 s3, s2, 2
        s_add_u32 s3, s3, s{sW}
        s_lshl_b32 s3, s3, 8
        s_add_u32 s{sSTO}, s3, {WS_STAMP}
        s_mov_b32 s{sREDO}, 0
        s_mul_i32 s3, s{sHP}, 288
        s_add_u32 s{SWO}, s{SWO}, s3
        s_addc_u32 s{SWO+1}, s{SWO+1}, 0
        s_sub_u32 s{SWO+2}, s{SWO+2}, s3
        s_lshl_b32 s{sFL}, s2, 7
        s_add_u32 s{sFL}, s{sFL}, {WS_FLAG}
        s_mul_i32 s{sOM0}, s{sW}, 9216
        s_mul_i32 s{sT2}, s{sW}, {32*1152}
        s_mul_i32 s3, s{sKQ}, {1024*1152}
        s_add_u32 s{sT2}, s{sT2}, s3
        """)
        for p in range(2):
            e(f"s_xor_b32 s3, s{sHP}, {p}", f"s_mul_i32 s{sT}, s3, {256*1152}", f"s_add_u32 s{sWR+p}, s{sT}, s{sT2}")
        for p in range(1, 4): e(f"s_xor_b32 s{sFQ+p-1}, s{sFL}, {p << 7}")
        e(f"""
        s_lshr_b32 s3, s2, 3
        s_lshl_b32 s{sT}, s{sBR}, 5
        s_add_u32 s3, s3, s{sT}
        s_mul_i32 s{sPB}, s3, {64*5120}
        s_mul_i32 s{sT}, s{sW}, 5120
        s_add_u32 s{sPB}, s{sPB}, s{sT}
        s_add_u32 s{sPB}, s{sPB}, {WS_PART}
        """)
        for t in range(9):
            e(f"v_add_u32 v9, {64*t}, v0", "v_mul_u32_u24 v9, 3641, v9", "v_lshrrev_b32 v9, 16, v9",
              "v_mul_u32_u24 v9, 864, v9", "v_lshl_add_u32 v9, v0, 4, v9")
            if t >= 4: e(f"v_add_u32 v9, {1024*(t - t % 4)}, v9")
            e(f"v_accvgpr_write_b32 a{240+t}, v9")
        e("v_and_b32 v9, 15, v0", "v_cmp_eq_u32 vcc, 0, v9", "v_mov_b32 v9, 0x3f803f80", "s_nop 0", "v_cndmask_b32 v9, 0, v9, vcc")
        for r in range(4): e(f"v_accvgpr_write_b32 a{aONE+r}, v9")
        if self.c.stop_after != "A":
            e("v_mov_b32 v9, 0", "v_and_b32 v10, 7, v0", "v_lshlrev_b32 v10, 2, v10",
              I(f"buffer_store_dword v9, v10, {srd(SWS)}, s{sFL} offen sc1", id=("flclr",)))
        self.kv_addr_init()

    def dbg_off(self, d):
        self.e(f"s_lshl_b32 s3, s{sBR}, 3", f"s_add_u32 s3, s3, s{sB}", f"s_lshl_b32 s{d}, s3, 4")

    def announce_cleared(self):
        e = self.e
        e(f"s_cmp_lg_u32 s{sW}, 0", "s_cbranch_scc1 L_ann")
        self.dbg_off(3)
        e("v_mov_b32 v11, 1", "v_lshlrev_b32 v10, 8, v0")
        self.raw([I(f"buffer_atomic_add v11, v10, {srd(SDBG)}, s3 offen sc1")])
        e("L_ann:")

    def publish(self, val):
        lab = f"L_pub{val}"
        return [I(f"s_cmp_lg_u32 s{sW}, 0"), I(f"s_cbranch_scc1 {lab}"), I(f"v_accvgpr_write_b32 a255, {val}"),
                I(f"buffer_store_dword a255, off, {srd(SWS)}, s{sFL} sc1", k="x"), I(f"{lab}:")]

    def spin(self, name, load, test):
        self.tailcode += [I(f"L_sp_{name}:"), I(f"s_mov_b32 s{sSPIN}, 0x40000"), I(f"L_spl_{name}:"), I("s_sleep 1")]
        self.tailcode += [I(x) for x in load] + [I("s_waitcnt vmcnt(0)")] + [I(x) for x in test]
        self.tailcode += [I(f"s_cbranch_scc1 L_sb_{name}"), I(f"s_sub_u32 s{sSPIN}, s{sSPIN}, 1"), I(f"s_cmp_lg_u32 s{sSPIN}, 0"),
                          I(f"s_cbranch_scc1 L_spl_{name}"), I(f"s_branch L_sb_{name}")]

    def kv_addr_init(self):
        e = self.e
        e(f"""
        v_and_b32 v9, 7, v0
        v_mul_u32_u24 v9, 1056, v9
        v_and_b32 v14, 8, v0
        v_lshl_add_u32 v9, v14, 5, v9
        v_and_b32 v14, 48, v0
        s_mul_i32 s3, s{sPI}, {HALF}
        v_add3_u32 v{vKA}, v9, v14, s3
        v_bfe_u32 v9, v0, 2, 3
        v_mul_u32_u24 v9, 1056, v9
        v_and_b32 v14, 32, v0
        v_lshl_add_u32 v9, v14, 3, v9
        v_and_b32 v14, 3, v0
        v_lshl_add_u32 v9, v14, 3, v9
        s_add_u32 s3, s3, {VBASE}
        v_add_u32 v{vVA}, s3, v9
        """)

    def dma_wq(self, i):
        slot = (i + 2) % 4
        ops = []
        for r in range(4):
            pre = [I(f"s_add_u32 m0, s{sWM0}, {slot*PITCH + r*1088}")]
            vm = I(f"buffer_load_dwordx4 v{vWD}, {srd(SWQ)}, s{sWK} offen {self.c.wq_flags} lds", id=("wq", i, r))
            ops.append((pre, [], vm, [I(f"s_add_u32 s{sWK}, s{sWK}, {8192 if r < 3 else 29*8192}")]))
        return ops
    def dma_x(self, st, js):
        boff = 0 if st == 1 else XB[0] - XB[1]
        ops = []
        for j in js:
            prev = st - (2 if st == 2 else 1)
            needs = [("xr", 2*prev, j), ("xr", 2*prev + 1, j)] if st >= 2 else []
            ops.append(([I(f"s_add_u32 m0, s{sXM0}, {boff + j*2048}")], [I(f"s_add_u32 s{sT2}, s{sROW+j}, s{sXK}")],
                        I(f"buffer_load_dwordx4 v{vXD}, {srd(SX)}, s{sT2} offen {self.c.x_flags} lds", id=("x", 2*st, j), needs=needs), []))
            post = [I(f"s_add_u32 s{sXK}, s{sXK}, 128")] if j == 4 else []
            ops.append(([I(f"s_add_u32 m0, s{sXM0}, {boff + j*2048 + 1024 - 64}")], [],
                        I(f"buffer_load_dwordx4 v{vXD}, {srd(SX)}, s{sT2} offen offset:64 {self.c.x_flags} lds", id=("x", 2*st+1, j)), post))
        return ops
    def dma_kv_static(self, which, M):
        base = (M % 4) * PITCH + (VBASE if which == "V" else 0)
        ops = []
        for i in range(4):
            same = [I(f"s_mov_b32 s{sCUR}, {M*16384}")] if i == 0 else []
            ops.append(([I(f"s_add_u32 m0, s{sKVW}, {base + 32*i}")], same,
                        I(f"buffer_load_dwordx4 v{vDMA}, {srd(SK if which == 'K' else SV)}, s{sCUR} offen offset:{i*1024} {self.c.kv_flags} lds", id=(which, M, i)), []))
        return ops
    def emit_dma_straight(self, ops):
        for pre, same, vm, post in ops:
            self.e(*pre)
            self.e(*(same or [I("s_nop 0")]))
            self.e(vm, *post)

    def qacc(self, tp, j):
        idn = tp * 4 + j if j < 4 else 64 + tp
        return ("v", 16 + 4 * idn) if idn < 60 else ("a", 160 + 4 * (idn - 60))

    def phase_q(self):
        e = self.e
        NR = 8
        aB, aA = 0, 80
        first = self.dma_wq(0) + self.dma_x(0, range(5)) + self.dma_wq(1) + self.dma_x(1, range(5)) + self.dma_wq(2) + self.dma_wq(3)
        self.emit_dma_straight(first[:self.c.n0])
        if self.c.stamp0: e("s_memrealtime s[92:93]", "s_waitcnt lgkmcnt(0)")
        self.setup2()
        self.emit_dma_straight(first[self.c.n0:self.c.nfirst])
        if self.c.stamps:
            self.nstamp = 1
            e("v_mov_b32 v15, s96", f"buffer_store_dword v15, off, {srd(SWS)}, s{sSTO}", "v_mov_b32 v15, s98", f"buffer_store_dword v15, off, {srd(SWS)}, s{sSTO} offset:4")
            if self.c.stamp0:
                self.nstamp = 3
                e("; s_memtime s_memtime", "v_mov_b32 v15, s90", f"buffer_store_dword v15, off, {srd(SWS)}, s{sSTO} offset:12", "v_mov_b32 v15, s92", f"buffer_store_dword v15, off, {srd(SWS)}, s{sSTO} offset:20")
        self.stamp()
        ms = []; start = {}; last = {}
        for i in range(18):
            for tp in range(16):
                f = 16 * i + tp
                start[f] = len(ms)
                for j in range(5 if tp < 8 else 4):
                    ms.append(I(mfma(self.qacc(tp, j), ("a", aA + 4 * (f % NR)), ("a", aB + 20 * (i % 4) + 4 * j), 0 if i == 0 else None),
                                needs=[("ar", f, 0), ("ar", f, 1), ("xr", i, j)]))
                last[f] = len(ms) - 1
        G = Gaps(ms)
        pre = []
        def aread(f, v):
            i, tp = divmod(f, 16)
            t = tp % 8
            off = ((i + 2) % 4) * PITCH + 512 * v + 64 * (t >> 1) + 8 * (t & 1)
            return I(f"ds_read_b64_tr_b16 {R('a', aA + 4*(f % NR) + 2*v, 2)}, v{vWR0 if tp < 8 else vWR1} offset:{off}", id=("ar", f, v))
        def xread(i, j):
            off = (0 if i // 2 == 1 else XB[0] - XB[1]) + 1024 * (i % 2) + 2048 * j
            return I(f"ds_read_b128 {R('a', aB + 20*(i % 4) + 4*j, 4)}, v{vXR} offset:{off}", id=("xr", i, j), needs=[("x", i, j)])
        for j in range(5): pre.append(xread(0, j))
        pre.append(I("s_barrier", needs=[("wq", 0, r) for r in range(4)]))
        if self.c.stamp0: pre += self.stamp_ins()
        for i in range(18):
            for tp in range(16):
                for v in range(2):
                    f = 16 * i + tp
                    g = 72 * i - 13 + ((2 * tp + v) * 58) // 32
                    if g % 72 == 71: g -= 1
                    if g < 0: pre.append(aread(f, v)); continue
                    assert g <= start[f] - 8
                    assert f < NR or g >= last[f - NR], (f, g)
                    assert not G.mem[g]
                    G.mem[g].append(aread(f, v))
        def free(g):
            while G.mem[g] or g % 72 == 71: g += 1
            return g
        for j in range(5): G.mem[free(46 + 2*j if not self.c.nx0 else j)].append(xread(1, j))
        tim = [(2 + 2*k, o) for k, o in enumerate(first[self.c.nfirst:])]
        assert self.c.nfirst >= 18
        for st in range(8):
            for j in range(5):
                g = 144*st + (8 + 26*j if st else 108 + 5*j)
                for i in (2*st + 2, 2*st + 3):
                    g = free(g); G.mem[g].append(xread(i, j))
                if st + 2 <= 8:
                    o = self.dma_x(st + 2, [j])
                    t = g + 8 if st else (66 + 12*j if not self.c.nx0 else 24 + 25*j)
                    tim += [(t, o[0]), (t + 3, o[1])]
        for i in range(18):
            g = 72 * i + 56
            G.waitneeds[g] += [("ar", 16 * i + 15, 1)]
            if i < 17:
                G.waitneeds[g] += [("wq", i + 1, r) for r in range(4)]
                G.waitneeds[g + 14] += ms[72 * (i + 1)].needs
            G.sal[g + 1].append(I("s_barrier"))
            if i in ((0, 3, 8) if not self.c.loop_q else (0, 1, 14)): self.stamp_gap(G, g + 1)
            if i + 4 < 18: tim += [(g + 4 + 16*r, o) for r, o in enumerate(self.dma_wq(i + 4))]
            if 2 <= i < 14:
                M, p = divmod(i - 2, 4)
                post = [I(f"s_add_u32 s{sM0}, s{sM0}, {PITCH}"), I(f"s_add_u32 s{sOFF}, s{sOFF}, 16384")] if p == 3 else []
                tim += [(g + 8, ([I(f"s_add_u32 m0, s{sM0}, {32*p}")], [],
                                  I(f"buffer_load_dwordx4 v{vDMA}, {srd(SV)}, s{sOFF} offen offset:{p*1024} {self.c.kv_flags} lds", id=("V", M, p)), post))]
            us = sum([self.dma_kv_static(u[0], int(u[1])) for u in self.c.fill.get(i + 1, "").split()], [])
            tim += [(g + 4 + (k * (64 if i < 17 else 12)) // len(us), o) for k, o in enumerate(us)]
        tim.sort(key=lambda t: t[0])
        seq = []; g = -1; pend = []
        for t, (p, same, vm, post) in tim:
            prev = g
            g = free(max(t, g + (3 if g > 58 else 2)))
            G.mem[g].append(vm)
            for x in pend: seq.append((x, prev + 1, g - 1))
            if self.c.loop_q and prev % 288 < 144 <= g % 288 and 288 < g < 1200:
                seq.append((I(f"s_cmp_lg_u32 s{sXK}, {9*128}"), prev + 1, (g // 144) * 144 - 2))
                prev = (g // 144) * 144 - 1
            for x in p: seq.append((x, max(prev + 1, g - 2), g - 1))
            for x in same: seq.append((x, g - 1, g))
            pend = post
        assert not pend
        e(f"s_add_u32 s{sM0}, s{sKVW}, {VBASE}", f"s_mov_b32 s{sOFF}, 0")
        if self.c.retouch and self.c.code_prefetch:
            g = 72 * 14 + 44
            G.val[g] += [I(f"s_mov_b32 s{SX}, s100"), I(f"s_mov_b32 s{SX+1}, s101")]
            G.val[g + 1] += [I(f"s_mov_b32 s{SX+2}, L_end-L_pc")]
            self.code_touch(G, g + 2, "L_qepi", 10, 11, ("ct", 0))
        self.e(*pre)
        pre2 = []
        G.place_waits(self.ws, pre2)
        if self.c.loop_q: G.unify_waits([144, 432, 720], 288)
        G.place_salu(seq)
        self.raw(pre2)
        if self.c.loop_q:
            w = [[x.t for x in G.flat(a, a + 288)] for a in (144, 432, 720)]
            assert w[0] == w[1] == w[2], [(x, y, z) for x, y, z in zip(*w) if not x == y == z][:5]
            body = G.flat(144, 432)
            assert body[-1].k == "m" and G.flat(0, 144)[-1].k == "m"
            self.raw(G.flat(0, 144) + [I("s_branch L_qloop"), I(".p2align 6"), I("L_qloop:")] + body + [I("s_cbranch_scc1 L_qloop")] + G.flat(1008))
            self.checks.append(("qloop", body + body))
        else:
            self.raw(G.flat())
        print("phase Q est cycles", G.cost(), file=sys.stderr)
        e("L_qepi:")
        self.stamp()
        def pack(src0, src1, tmp):
            o = []
            for k, (kind, b) in enumerate((src0, src1)):
                if kind == "a":
                    for r in range(4): o.append(f"v_accvgpr_read_b32 v{12+r}, a{b+r}")
                    b = 12
                o.append(f"v_pk_mul_f32 v[{b}:{b+1}], v[{b}:{b+1}], s[{sC}:{sC+1}]")
                o.append(f"v_pk_mul_f32 v[{b+2}:{b+3}], v[{b+2}:{b+3}], s[{sC}:{sC+1}]")
                o.append(f"v_cvt_pk_bf16_f32 v{tmp+2*k}, v{b}, v{b+1}")
                o.append(f"v_cvt_pk_bf16_f32 v{tmp+2*k+1}, v{b+2}, v{b+3}")
            return o
        e(f"v_add_u32 v9, {SCR}, v{vDMA}")
        for s in range(4):
            e(*pack(self.qacc(2*s, 4), self.qacc(2*s+1, 4), 4))
            e(I(f"ds_write_b128 v9, v[4:7] offset:{s*1024}", id=("qsw", s)))
        e(f"s_cmp_eq_u32 s{sPI}, 1", "s_cbranch_scc1 L_qe1")
        done = " ".join(self.c.fill.values()).split()
        st = (dict((k, list(v)) for k, v in self.ws.q.items()), dict(self.ws.done), dict(self.ws.pos))
        for pi in range(2):
            if pi == 1:
                e("L_qe1:")
                self.ws.q, self.ws.done, self.ws.pos = st
            rest = sum([self.dma_kv_static(u[0], int(u[1])) for u in "K0 K1 K2 V3 K3".split() if u not in done], [])
            nrest = len(rest); cnt = 0
            for hh in range(2):
                h = hh ^ pi
                for j in range(4):
                    for s in range(4):
                        t0 = self.qacc(8*hh + 2*s, j); t1 = self.qacc(8*hh + 2*s + 1, j)
                        assert t0[0] == "v"
                        e(*pack(t0, t1, t0[1]))
                        cnt += 1
                        d = rest.pop(0) if (rest and (nrest - len(rest)) * 32 < cnt * nrest) else None
                        if d: e(*d[0], *d[1])
                        for r in range(4): e(f"v_accvgpr_write_b32 a{aQ[h] + (j*4+s)*4 + r}, v{t0[1]+r}")
                        if d: e(d[2])
            assert not rest
            if pi == 0: e("s_branch L_qe2")
        e("L_qe2:")
        self.stamp()
        e(I("s_barrier", needs=[("qsw", 3)] + [(k, 0, i) for k in "KV" for i in range(4)]))
        if self.c.stop_after != "A": self.announce_cleared()
        e(f"s_lshl_b32 s3, s{sPI}, 12", "v_subrev_u32 v9, s3, v9")
        for h in range(2):
            for s in range(4):
                e(I(f"ds_read_b128 {R('a', aQ[h] + (16+s)*4, 4)}, v9 offset:{h*4096 + s*1024}", id=("qsr", h, s)))
        for j in range(5): e(f"v_mov_b32 v{vNM+4*j}, 0xff800000")

    def attn_mfmas(self, h, nwin, first=True, lastw=True):
        ms = []; cstart = {}; cend = {}; pv = {}; wstart = []
        tcount = [0]; sslot = {}
        def chain(n, T, j):
            sl = tcount[0] % NS; tcount[0] += 1
            sslot[(n, T, j)] = sl
            cstart[(n, T, j)] = len(ms)
            for s in range(4):
                ms.append(I(mfma(("v", vS + 4*sl), ("a", aK + 16*T + 4*s), ("a", aQ[h] + (j*4+s)*4), ("v", vNM + 4*j) if s == 0 else None),
                            needs=[("kr", h, n, T, s)]))
            cend[(n, T, j)] = len(ms) - 1
        def pvm(n, dt, j):
            f = 8*n + dt
            pv[(n, dt, j)] = len(ms)
            ms.append(I(mfma(("v", vO + (j*8+dt)*4), ("a", aV + 4*(f % NV)), ("v", vP[n % 2] + 4*j), 0 if (n == 0 and first) else None),
                        needs=[("vr", h, f, 0), ("vr", h, f, 1)]))
        def onem(n, j):
            ms.append(I(mfma(("a", aL + 4*j), ("a", aONE), ("v", vP[n % 2] + 4*j), 0 if (n == 0 and first) else None)))
        for m in range(nwin):
            wstart.append(len(ms))
            for c in range(8):
                chain(2*m+1, c >> 2, c & 3)
                for j in range(5): pvm(2*m, c, j)
                if c - 2 in self.c.ones: onem(2*m, c - 2)
            lst = [(dt, j) for dt in range(8) for j in range(4)]
            cnt = self.c.cnt
            for c in range(10):
                if not (lastw and m == nwin - 1): chain(2*m+2, c // 5, c % 5)
                for _ in range(cnt[c]):
                    dt, j = lst.pop(0); pvm(2*m+1, dt, j)
                for j in range(4):
                    if self.c.onepos[j] == c and j in self.c.ones: onem(2*m+1, j)
        wstart.append(len(ms))
        return ms, cstart, cend, pv, sslot, wstart

    def code_touch(self, G, g, lab, vt, vd, idn):
        if not (self.c.retouch and self.c.code_prefetch): return
        if self.c.cp_split:
            G.val[g] += [I(f"v_lshrrev_b32 v{vt}, 3, v0")]
            G.val[g + 1] += [I(f"v_lshlrev_b32 v{vt}, 24, v{vt}")]
            G.val[g + 2] += [I(f"v_lshl_add_u32 v{vt}, v0, 7, v{vt}")]
            G.val[g + 3] += [I(f"v_mov_b32 v{vd}, s{sCT}")]
            G.val[g + 4] += [I(f"v_lshl_add_u32 v{vt}, v{vd}, 10, v{vt}"), I(f"s_mov_b32 s{sWK}, {lab}-L_pc")]
        else:
            G.val[g] += [I(f"v_lshlrev_b32 v{vt}, 3, v{vDMA}")]
            G.val[g + 1] += [I(f"v_and_b32 v{vd}, 0x1f80, v{vt}")]
            G.val[g + 2] += [I(f"v_lshrrev_b32 v{vt}, 2, v{vt}")]
            G.val[g + 3] += [I(f"v_and_b32 v{vt}, 0x6000, v{vt}")]
            G.val[g + 4] += [I(f"v_or_b32 v{vt}, v{vt}, v{vd}"), I(f"s_mov_b32 s{sWK}, {lab}-L_pc")]
        g += 6
        while G.mem[g]: g += 1
        G.mem[g].append(I(f"buffer_load_dword v{vd}, v{vt}, {srd(SX)}, s{sWK} offen", id=idn))

    def o_stores(self, h, vaddr):
        ops = []
        for j in range(4):
            for s in range(4):
                src = R("a", (j*4+s)*4, 4) if h == 0 else R("v", 16 + (j*4+s)*4, 4)
                ops.append(([], [], I(f"buffer_store_dwordx4 {src}, v{vaddr}, {srd(SWS)}, s{90+j} offen offset:{s*1024} {self.c.o_flags}", id=("os", h, j, s)), []))
        return ops

    def kread(self, h, n, T, s):
        return I(f"ds_read_b128 {R('a', aK + 16*T + 4*s, 4)}, v{vKA} offset:{512*T + 64*s}", id=("kr", h, n, T, s))
    def vread(self, h, f, v):
        return I(f"ds_read_b64_tr_b16 {R('a', aV + 4*(f % NV) + 2*v, 2)}, v{vVA} offset:{512*v + 32*(f % 8)}", id=("vr", h, f, v))

    def attn_schedule(self):
        NW = 8
        ms, cstart, cend, pv, sslot, wstart = self.attn_mfmas(0, NW, first=False, lastw=False)
        n = len(ms)
        mem = {}
        def put(g, key):
            while g in mem: g += 1
            mem[g] = key; return g
        rel = {}
        W = self.W = wstart[1]
        cs = lambda dn, T, j: cstart[(2 + dn, T, j)] - W
        bar = rel["bar"] = cs(1, 1, 0) + 3
        bodyo = rel["bodyo"] = cs(2, 0, 0)
        for i in range(4): rel[("dK", i)] = put(bar + self.c.kpos[0] + i * self.c.kpos[1], 1)
        for i in range(4): rel[("dV", i)] = put(self.c.vpos[0] + i * self.c.vpos[1], 1)
        first = {f: pv[(2 + f // 8, f % 8, 0)] - W for f in range(-4, 16)}
        lastu = {f: pv[(2 + f // 8, f % 8, 4 if (f // 8) % 2 == 0 else 3)] - W for f in range(-4, 16)}
        for f in range(16):
            g = max(first[f - 2], lastu[f - 4] + 1)
            for v in range(2):
                gg = g % W
                g2 = put(gg, 1)
                rel[("vr", f, v)] = g + (g2 - gg)
                g = rel[("vr", f, v)] + 2
                assert rel[("vr", f, v)] <= first[f] - 7, (f, v, rel[("vr", f, v)], first[f])
        for (dn, T), g0 in (((1, 1), 1), ((2, 0), bar + 3), ((2, 1), bodyo + 1), ((3, 0), cs(2, 1, 0) + 1)):
            for s in range(4):
                rel[("kr", dn, T, s)] = put(g0 + 6 * s, 1)
                assert rel[("kr", dn, T, s)] <= cs(dn, T, 0) + s - 7
        rel["barv"] = rel[("vr", 0, 0)] + W - 2
        assert rel["barv"] - rel[("vr", 15, 1)] >= 5 and rel[("dV", 3)] < bar
        rel[("ka", 0)] = rel[("kr", 1, 1, 3)] + 1
        rel[("ka", 1)] = rel[("kr", 2, 1, 3)] + 1
        rel[("va", 0)] = rel[("vr", 7, 1)]
        rel[("va", 1)] = rel[("vr", 15, 1)]
        assert rel[("vr", 8, 0)] > rel[("va", 0)] and rel[("vr", 0, 0)] + W > rel[("va", 1)]
        used = [0] * W
        for k, g in rel.items():
            if isinstance(k, str): continue
            used[g % W] += 2 if k[0] in ("dK", "dV") else 1
        used[W - 1] += 2
        tiles = sorted(cend, key=lambda t: cend[t])
        place = {}
        eq = []
        sm = []
        ti = 0
        for g in range(n):
            while ti < len(tiles) and cend[tiles[ti]] + self.c.edelay <= g:
                eq += [(tiles[ti], r) for r in range(4)]; ti += 1
            u = used[g % W]
            rdy = [x for x in sm if x[1] <= g]
            backlog = 3.5 * len(eq) + len(sm)
            budget = 3 if (backlog > self.c.backlog and g % W != W - 1) else 2
            def take_small():
                rdy.sort(); x = rdy.pop(0); sm.remove(x); place[x[2]] = g
            def take_e():
                t, r = eq.pop(0); place[("e", t, r)] = g
                if t[2] not in self.c.ones: sm.append(((cend[t], 1, r), g + 1, ("a", t, r)))
                if r % 2: sm.append(((cend[t], 0, r), g + 1, ("c", t, r // 2)))
            if u == 0 and eq and len(rdy) < 4:
                take_e(); u += 2
            elif u == 1 and budget == 3 and eq and len(rdy) < 2:
                take_e(); u += 2
            while u < budget and rdy:
                take_small(); u += 1
        def wrel(m):
            d = {}
            for k, g in place.items():
                nn, T, j = k[1]
                if nn in (2*m+1, 2*m+2): d[(k[0], nn - 2*m, T, j, k[2])] = g - W * m
            return d
        a, b = wrel(4), wrel(5)
        assert a == b, "VALU schedule not periodic"
        rel.update(a)
        self.rel = rel

    def head(self, h):
        e = self.e; rel = self.rel; c = self.c; W = self.W
        nloop_end = 13 if h == 1 else 15
        nloop_start = 1
        e(f"L_head{h}:")
        e(f"s_mov_b32 s{sOFF}, {(16*h+4)*16384}", f"s_mov_b32 s{sKO}, {(16*h+4)*16384}", f"s_mov_b32 s{sWIN}, 0",
          f"s_mov_b32 s{sD}, s{sDA}", f"s_add_u32 s{sDUM}, s{sKVW}, {SCR}", f"s_add_u32 s{sM0}, s{sKVW}, {VBASE}",
          f"s_and_b32 s3, s{sHP}, {c.stag}", f"s_lshl_b32 s{sXK}, {c.kmask[h]}, s3",
          f"s_xor_b32 s3, s3, {(c.stag + 1) // 2}", f"s_lshl_b32 s{sXM0}, {c.vmask[h]}, s3")
        assert max(c.kmask[h], c.vmask[h]) << c.stag < 1 << nloop_end and c.kmask[h] and not (c.kmask[h] | c.vmask[h]) & 1
        unit = {}; nxt = {"dK": 16*h + 4, "dV": 16*h + 4}
        for m in range(16):
            for kind, mask in (("dV", c.vmask[h] | 1), ("dK", c.kmask[h])):
                if mask >> m & 1: unit[(kind, m)] = None if m else "x"
                elif nxt[kind] < 32: unit[(kind, m)] = nxt[kind]; nxt[kind] += 1
                else: unit[(kind, m)] = "x"; assert m >= nloop_end
        if h == 0:
            self.refill = [(k[1], u) for u in range(16, 20) for k in ("dK", "dV") if u >= nxt[k]]
        self.stamp()
        for T in range(2):
            for s in range(4): e(self.kread(h, 0, T, s))
        e(f"v_add_u32 v{vKA}, s{sH}, v{vKA}")
        tS = lambda T, j: vO + (j*2 + T) * 4
        refill = self.dma_kv_static(*self.refill[-1]) if h == 1 else []
        for j in range(5):
            for T in range(2):
                for s in range(4):
                    nd = [("kr", h, 0, T, s)] + ([("qsr", 1, 3)] if (h == 0 and j == 4) else [])
                    e(I(mfma(("v", tS(T, j)), ("a", aK + 16*T + 4*s), ("a", aQ[h] + (j*4+s)*4), 0 if s == 0 else None), needs=nd))
                    if refill and j in (1, 4) and T == 0:
                        if s == 0: e(*refill[0][0])
                        if s == 1: e(*refill[0][1], refill.pop(0)[2])
        ms, cstart, cend, pv, sslot, wstart = self.attn_mfmas(h, 16)
        G = Gaps(ms)
        early = []
        lastw = 15
        full, fcs, fce, fpv, _, _ = self.attn_mfmas(h, 16, lastw=False)
        dropped = set()
        for k, st in fcs.items():
            if k[0] == 32: dropped.update(range(st, st + 4))
        amap = []; a = -1
        for g in range(len(full)):
            if g not in dropped: a += 1
            amap.append(a)
        def at(m, g):
            p = W * m + g
            if p < 0: return None
            return amap[p]
        seq = []
        for m in range(-1, 16):
            items = []
            for k, g in rel.items():
                if isinstance(k, str): continue
                kind = k[0]
                if kind == "kr":
                    n = 2*m + k[1]
                    if n < 1 or n > 31: continue
                    items.append((g, "mem", self.kread(h, n, k[2], k[3])))
                elif kind == "vr":
                    if m < 0: continue
                    items.append((g, "mem", self.vread(h, 16*m + k[1], k[2])))
                elif kind in ("dK", "dV"):
                    if m < 0 or unit[(kind, m)] == "x": continue
                    i = k[1]; u = unit[(kind, m)]
                    items.append((g, "mem", I(f"buffer_load_dwordx4 v{vDMA}, {srd(SV if kind == 'dV' else SK)}, s{sCUR} offen offset:{i*1024} {c.kv_flags} lds",
                                              id=(kind[1], u, i) if u else None)))
                elif kind == "ka":
                    if m < 0 or (m == 15 and k[1] == 1): continue
                    items.append((g, "val", I(f"v_add_u32 v{vKA}, s{sD if k[1] == 0 else sH}, v{vKA}")))
                elif kind == "va":
                    if m < 0: continue
                    items.append((g, "val", I(f"v_add_u32 v{vVA}, s{sH if k[1] == 0 else sD}, v{vVA}")))
                else:
                    n = 2*m + k[1]
                    if n < 1 or n > 31: continue
                    T, j, r = k[2], k[3], k[4]
                    g_key = g
                    while n == 31 and kind != "a" and at(m, g) > pv[(n, 0, j)] - (2 if kind == "c" else 3): g -= 1
                    S = vS + 4 * sslot[(n, T, j)]
                    if kind == "e": x = I(f"v_exp_f32 v{S+r}, v{S+r}")
                    elif kind == "a": x = I(f"v_add_f32 v{vL+j}, v{vL+j}, v{S+r}")
                    else:
                        x = I(f"v_cvt_pk_bf16_f32 v{vP[n % 2] + 4*j + 2*T + r}, v{S+2*r}, v{S+2*r+1}")
                        assert at(m, g) <= pv[(n, 0, j)] - 2, ("late cvt", n, T, j)
                    x.key = (W*m + g_key, cend[(n, T, j)], {"e": 2, "c": 0, "a": 1}[kind], r)
                    nxt = [t for t in cstart if cstart[t] > cstart[(n, T, j)] and sslot[t] == sslot[(n, T, j)]]
                    if nxt: assert at(m, g) < min(cstart[t] for t in nxt), ("S slot reuse", n, T, j)
                    items.append((g, "val", x))
            items.sort(key=lambda t: t[0])
            for g, where, x in items:
                p = at(m, g)
                if p is None: early.append(x)
                else: getattr(G, where)[p].append(x)
            if m >= 0:
                M = 16*h + m
                g = at(m, rel["bar"])
                G.waitneeds[g] += [("kr", h, 2*m+1, 1, 3)]
                if M < 31: G.waitneeds[g] += [("K", M+1, i) for i in range(4)]
                G.sal[g + 1].append(I("s_barrier"))
                if m < 15:
                    gv = at(m, rel["barv"])
                    G.waitneeds[gv] += [("vr", h, 16*m + 15, 1)] + [("V", M+1, i) for i in range(4)]
                    G.sal[gv + 1].append(I("s_barrier"))
                if c.wtrace and not (h == 1 and m >= 13):
                    G.val[g + 1] += [I("s_memrealtime s[96:97]"), I(f"s_mov_b32 m0, s{sWIN}"), I("s_waitcnt lgkmcnt(0)"), I(f"v_writelane_b32 v{15 if h == 0 else 6}, s96, m0")]
                if h == 1 and m == c.touch_win and c.touch13 and c.stop_after != "A":
                    G.val[at(m, 2)] += [I("v_lshlrev_b32 v12, 7, v0")]
                    G.val[at(m, 3)] += [I("v_and_b32 v14, 0x380, v12")]
                    G.val[at(m, 5)] += [I("v_add_u32 v14, 0x2000, v14")]
                    for gg, va in ((at(m, c.touch_pos), 12), (at(m, c.touch_pos + 6), 14)):
                        while G.mem[gg]: gg += 1
                        G.mem[gg].append(I(f"buffer_load_dword v9, v{va}, {srd(SWQ)}, s{sT3} offen {c.touch_flags}", id=("touch", va)))
                def group(kind, sptr, smask, base, lo, first):
                    return [(I(t), lo, first - 1) for t in (
                        f"s_bfe_u32 s{sT}, s{sptr}, 0x2000e", f"s_mul_i32 s{sT}, s{sT}, {PITCH}", f"s_add_u32 s{sT}, s{sT}, s{base}",
                        f"s_bitcmp1_b32 s{smask}, s{sWIN}", f"s_cselect_b32 m0, s{sDUM}, s{sT}", f"s_cselect_b32 s{sCUR}, s{sTHR}, s{sptr}",
                        f"s_cselect_b32 s{sT}, 0, 0x4000", f"s_add_u32 s{sptr}, s{sptr}, s{sT}")]
                lo = at(m, 0)
                if unit[("dV", m)] != "x":
                    for i in range(1, 4):
                        seq.append((I("s_add_u32 m0, m0, 32"), at(m, rel[("dV", i - 1)]) + 1, at(m, rel[("dV", i)]) - 1))
                    lo = at(m, rel[("dV", 3)]) + 1
                if c.wtrace: lo = g + 2
                if unit[("dK", m)] != "x":
                    seq += group("dK", sKO, sXK, sKVW, lo, at(m, rel[("dK", 0)]))
                    for i in range(1, 4):
                        seq.append((I("s_add_u32 m0, m0, 32"), at(m, rel[("dK", i - 1)]) + 1, at(m, rel[("dK", i)]) - 1))
                    lo = at(m, rel[("dK", 3)]) + 1
                if h == 1 and m >= 14 and c.stop_after != "A":
                    assert len(c.ones) == 5
                    vt = [4, 5, 6, 7, 8, 9, 12, 14, 15]
                    if m == 14:
                        for t in range(9):
                            G.val[g + 2 + t].append(I(f"v_accvgpr_read_b32 v{vt[t]}, a{240+t}", needs=[] if t else ([("touch", 14)] if c.touch13 else []) + ([("ct", 2)] if c.retouch and c.code_prefetch else [])))
                        tim = [(at(m, c.wo_pos[0] + c.wo_pos[1] * k), o) for k, o in enumerate(self.dma_wo(0, vt))]
                    else:
                        tim = [(at(m, 2 + 4 * k), o) for k, o in enumerate(self.dma_wo(2, vt))]
                        tim += [(g + 4 + 6 * k, o) for k, o in enumerate(self.dma_wo(1, vt))]
                    gg = lo
                    for t, (p_, same, vm, post) in tim:
                        gg = max(gg + 2, t)
                        while G.mem[gg]: gg += 1
                        G.mem[gg].append(vm)
                        for x in p_: seq.append((x, gg - 1, gg - 1))
                        for x in same: seq.append((x, gg - 1, gg))
                    lo = gg + 1
                if m == 15: continue
                seq.append((I(f"s_add_u32 s{sWIN}, s{sWIN}, 1"), lo, at(m, W - 12)))
                if unit[("dV", m + 1)] != "x" or m < nloop_end: seq += group("dV", sOFF, sXM0, sM0, lo, at(m, W - 4))
                g1 = max(lo, at(m, rel[("va", 1)]) + 1)
                for t in (f"s_and_b32 s{sT}, s{sWIN}, 3", f"s_cmp_eq_u32 s{sT}, 3"): seq.append((I(t), lo, at(m, W - 3)))
                seq.append((I(f"s_cselect_b32 s{sD}, s{sDB}, s{sDA}"), g1, at(m, W - 2)))
                if nloop_start <= m < nloop_end:
                    seq.append((I(f"s_cmp_lg_u32 s{sWIN}, {nloop_end}"), g1, at(m, W - 2)))
        if h == 1:
            for k, o in enumerate(self.o_stores(0, 13)):
                gg = wstart[13] + c.o0_pos[0] + k * c.o0_pos[1]
                while G.mem[gg] or any(x.k == "e" for x in G.val[gg]): gg += 1
                G.mem[gg].append(o[2])
        if h == 0: self.code_touch(G, wstart[15] + 1, "L_hepi0", 10, 11, ("ct", 1))
        else: self.code_touch(G, wstart[13] + 1, "L_hepi1", 4, 5, ("ct", 2))
        e(*[x for x in early if x.k == "ds"])
        assert all(x.k == "ds" for x in early)
        tm = lambda j: vS + j
        tt = lambda j: vS + 8 + j
        for j in range(5):
            b = tS(0, j)
            e(f"v_max3_f32 v{tm(j)}, v{b}, v{b+1}, v{vNM+4*j}", f"v_max3_f32 v{tt(j)}, v{b+2}, v{b+3}, v{b+4}",
              f"v_max3_f32 v{tm(j)}, v{b+5}, v{b+6}, v{tm(j)}", f"v_max3_f32 v{tm(j)}, v{b+7}, v{tt(j)}, v{tm(j)}")
        self.xlane([tm(j) for j in range(5)], [tt(j) for j in range(5)], "v_max_f32")
        for j in range(5):
            for r in range(4): e(f"v_sub_f32 v{vNM+4*j+r}, 0, v{tm(j)}")
        for j in range(5):
            b = tS(0, j)
            for r in range(0, 8, 2): e(f"v_pk_add_f32 v[{b+r}:{b+r+1}], v[{b+r}:{b+r+1}], v[{vNM+4*j}:{vNM+4*j+1}]")
            dm = refill.pop(0) if (refill and j in (0, 4)) else None
            if dm: e(*dm[0])
            for r in range(8): e(f"v_exp_f32 v{b+r}, v{b+r}")
            if dm: e(dm[2])
        for j in range(5):
            b = tS(0, j)
            for r in range(4): e(f"v_cvt_pk_bf16_f32 v{vP[0]+4*j+r}, v{b+2*r}, v{b+2*r+1}")
            if j in c.ones: continue
            e(f"v_pk_add_f32 v[{b}:{b+1}], v[{b}:{b+1}], v[{b+2}:{b+3}]", f"v_pk_add_f32 v[{b+4}:{b+5}], v[{b+4}:{b+5}], v[{b+6}:{b+7}]",
              f"v_pk_add_f32 v[{b}:{b+1}], v[{b}:{b+1}], v[{b+4}:{b+5}]", f"v_add_f32 v{vL+j}, v{b}, v{b+1}")
        full_o = (h == 1 and c.stop_after != "A")
        if h == 1:
            e("v_lshlrev_b32 v13, 4, v0")
            for j in range(4): e(f"s_add_u32 s{90+j}, s{sOB}, {j*4096}")
            e(f"s_mul_i32 s3, s{sHP}, 288", f"s_sub_u32 s{SWQ}, s{SWO}, s3", f"s_subb_u32 s{SWQ+1}, s{SWO+1}, 0", f"s_add_u32 s{SWQ+2}, s{SWO+2}, s3",
              f"s_lshr_b32 s3, s{sG}, 3", f"s_lshl_b32 s{sT}, s{sKQ}, 5", f"s_add_u32 s3, s3, s{sT}",
              f"s_mul_i32 s3, s3, {32*1152}", f"s_mul_i32 s{sT}, s{sW}, {8*1152}", f"s_add_u32 s{sT3}, s3, s{sT}")
        if full_o:
            self.dbg_off(sWM0)
            dload = f"buffer_load_dword v11, off, {srd(SDBG)}, s{sWM0} sc1"
            e(I(dload, id=("dbgp",)))
        self.stamp()
        for g in range(len(ms)):
            G.val[g].sort(key=lambda x: x.key or (0, 0, 0, 0))
        if c.wtrace:
            g = wstart[16] - 3 if h == 0 else wstart[13] + 20
            G.val[g] += [I("v_lshlrev_b32 v7, 2, v0"), I(f"s_add_u32 s99, s{sSTO}, {0x100000 * (h + 1)}"), I(f"buffer_store_dword v{15 if h == 0 else 6}, v7, {srd(SWS)}, s99 offen", k="x")]
        if full_o:
            test = ["v_readfirstlane_b32 s3, v11", "s_cmp_ge_u32 s3, 16"]
            g = wstart[14] + 3
            G.val[g] += [I(test[0], needs=[("dbgp",)])]
            G.val[g + 9] += [I(test[1]), I("s_cbranch_scc0 L_sp_dbg"), I("L_sb_dbg:")]
            self.spin("dbg", [dload], test)
        pre = []
        G.place_waits(self.ws, pre)
        G.unify_waits([wstart[m] for m in range(nloop_start, nloop_end)], W)
        G.place_salu(seq)
        self.raw(pre)
        win = [[x.t for x in G.flat(wstart[m], wstart[m+1])] for m in range(16)]
        import re
        for m in range(nloop_start, nloop_end - 1):
            assert len(win[m]) == len(win[nloop_end - 1]), f"window {m} differs"
            for x, y in zip(win[m], win[nloop_end - 1]):
                if x == y: continue
                nx, ny = re.search(r"vmcnt\((\d+)\)", x), re.search(r"vmcnt\((\d+)\)", y)
                assert nx and ny and int(nx.group(1)) >= int(ny.group(1)) and re.sub(r"vmcnt\(\d+\)", "", x) == re.sub(r"vmcnt\(\d+\)", "", y), (m, x, y)
        print(f"head {h}: window est cycles", G.cost(wstart[1], wstart[2]), "instrs", len(win[1]), file=sys.stderr)
        self.raw(G.flat(0, wstart[nloop_start]))
        self.raw([I(f"s_branch L_loop{h}"), I(".p2align 6"), I(f"L_loop{h}:")])
        body = G.flat(wstart[nloop_end - 1], wstart[nloop_end])
        assert body[-1].k == "m", body[-3:]
        self.raw(body)
        self.raw([I(f"s_cbranch_scc1 L_loop{h}")])
        self.checks.append((f"loop{h}", body + body))
        self.raw(fix_hazards(G.flat(wstart[nloop_end], wstart[16])))
        e(f"L_hepi{h}:")
        self.stamp()
        self.head_epilogue(h)

    def xlane(self, xs, ts, op):
        e = self.e
        for sw in ("v_permlane32_swap_b32", "v_permlane16_swap_b32"):
            for x, t in zip(xs, ts): e(f"v_mov_b32 v{t}, v{x}")
            if len(xs) < 3: e("s_nop 1")
            for k, (x, t) in enumerate(zip(xs, ts)): e(f"{sw} v{t}, v{x}")
            for x, t in zip(xs, ts): e(f"{op} v{x}, v{x}, v{t}")

    def head_epilogue(self, h):
        e = self.e
        O = lambda j, dt: vO + (j*8 + dt) * 4
        if self.c.ones: e("s_nop 7")
        for j in sorted(self.c.ones, key=lambda j: (j + 1) % 5): e(f"v_accvgpr_read_b32 v{vL+j}, a{aL+4*j}")
        self.xlane([vL + j for j in range(5)], [vS + j for j in range(5)], "v_add_f32")
        ct = [("ct", 1)] if (h == 0 and self.c.retouch and self.c.code_prefetch) else []
        e(f"v_add_f32 v10, v{vL}, v{vL+1}", I(f"v_add_f32 v11, v{vL+2}, v{vL+3}", needs=ct),
          f"v_add_f32 v10, v10, v{vL+4}", "v_add_f32 v10, v10, v11",
          f"v_cmp_nge_f32 vcc, s{sTHR}, v10", "s_cmp_lg_u64 vcc, 0", f"s_cselect_b32 s3, 1, 0",
          f"v_mov_b32 v12, s3", f"s_lshl_b32 s3, s{sW}, 2", f"s_add_u32 s3, s3, {MISC + 2048}", "v_mov_b32 v13, s3",
          I("ds_write_b32 v13, v12", id=("fw", h)))
        e(f"v_add_u32 v9, {SCR}, v{vDMA}")
        e(f"v_xor_b32 v10, 4096, v{vDMA}", f"v_add_u32 v10, {SCR}, v10")
        e(f"v_lshrrev_b32 v11, 1, v{vDMA}", "v_and_b32 v11, 0x1f8, v11", f"s_lshl_b32 s3, s{sW}, 9", f"s_add_u32 s3, s3, {MISC}",
          "v_add_u32 v11, s3, v11", f"v_mov_b32 v12, v{vL+4}", f"v_mov_b32 v13, v{vNM+16}",
          I("ds_write_b64 v11, v[12:13]", id=("lw", h)), "v_xor_b32 v11, 512, v11")
        e(f"s_cmp_eq_u32 s{sPI}, 1", f"s_cbranch_scc1 L_he1_{h}")
        st = (dict((k, list(v)) for k, v in self.ws.q.items()), dict(self.ws.done), dict(self.ws.pos))
        for pi in range(2):
            if pi == 1:
                e(f"L_he1_{h}:")
                self.ws.q, self.ws.done, self.ws.pos = st
            for k in range(4):
                e(I(f"ds_write_b128 v10, {R('v', O(4, 4*(1-pi) + k), 4)} offset:{k*1024}", id=("ow", h, k)))
            if pi == 1:
                e("s_nop 1")
                for r in range(16): e(f"v_mov_b32 v{O(4, 0) + r}, v{O(4, 4) + r}")
            if pi == 0: e("s_branch L_he2_%d" % h)
        e(f"L_he2_{h}:")
        for j in range(4): e(f"v_rcp_f32 v{vL+j}, v{vL+j}")
        pub = h == 1 and self.c.stop_after != "A"
        e(I("s_barrier", needs=[("ow", h, 3)] + ([("os", 0, 3, 3)] if pub else [])))
        if pub: self.raw(self.publish(1))
        e(f"v_mov_b32 v14, {MISC + 2048}")
        e(I(f"ds_read_b128 v[{vS}:{vS+3}], v14", id=("fr", h)))
        e(I(f"ds_read_b64 v[14:15], v11", id=("lr", h)))
        for k in range(4):
            e(I(f"ds_read_b128 {R('v', O(4, 4 + k), 4)}, v9 offset:{k*1024}", id=("or", h, k)))
        e(I(f"v_or3_b32 v{vS}, v{vS}, v{vS+1}, v{vS+2}", needs=[("fr", h)]), f"v_or_b32 v{vS}, v{vS}, v{vS+3}", "s_nop 0",
          f"v_readfirstlane_b32 s3, v{vS}", f"s_andn2_b32 s3, s3, s{sREDO}", f"s_cbranch_scc1 L_redo{h}",
          f"s_mov_b32 s{sREDO}, 0")
        refill = sum([self.dma_kv_static(*u) for u in self.refill[:-1]], []) if h == 0 else []
        nref = len(refill)
        e(I("v_min_f32 v11, v13, v15", needs=[("lr", h)]), "v_sub_f32 v13, v11, v13", "v_sub_f32 v15, v11, v15",
          "v_exp_f32 v13, v13", "v_exp_f32 v15, v15", "s_nop 0", "v_mul_f32 v12, v12, v13", "v_fmac_f32 v12, v14, v15",
          "v_rcp_f32 v12, v12", "s_nop 0", "v_mul_f32 v14, v12, v15", "v_mul_f32 v12, v12, v13")
        b0, b1 = O(4, 0), O(4, 4)
        for r in range(0, 16, 2):
            e(f"v_pk_mul_f32 v[{b0+r}:{b0+r+1}], v[{b0+r}:{b0+r+1}], v[12:13] op_sel_hi:[1,0]")
        for r in range(0, 16, 2):
            e(I(f"v_pk_fma_f32 v[{b0+r}:{b0+r+1}], v[{b1+r}:{b1+r+1}], v[14:15], v[{b0+r}:{b0+r+1}] op_sel_hi:[1,0,1]", needs=[("or", h, r // 4)]))
        for r in range(8): e(f"v_cvt_pk_bf16_f32 v{b0+r}, v{b0+2*r}, v{b0+2*r+1}")
        e(f"v_and_b32 v13, 0x3ff, v{vDMA}", f"s_lshl_b32 s3, s{sPI}, 11", f"s_add_u32 s3, s3, s{sOS}")
        if h: e(f"s_add_u32 s3, s3, 73728")
        for k in range(2):
            e(I(f"ds_write_b128 v9, v[{b0+4*k}:{b0+4*k+3}] offset:{k*1024}", id=("pw", h, k)))
            e(I(f"buffer_store_dwordx4 v[{b0+4*k}:{b0+4*k+3}], v13, {srd(SWS)}, s3 offen offset:{k*1024} {self.c.o_flags}", id=("os", h, 4, k)))
        if h == 1:
            for j in range(4): e(f"s_add_u32 s{90+j}, s{sOB}, {73728 + j*4096}")
        for j in range(4):
            e(f"s_add_u32 s3, s{sOB}, {h*73728 + j*4096}")
            for s in range(4):
                b = O(j, 2*s)
                p = (vL + j) & ~1
                sel = "op_sel:[0,1] op_sel_hi:[1,1]" if (vL + j) & 1 else "op_sel_hi:[1,0]"
                for r in range(0, 8, 2):
                    e(f"v_pk_mul_f32 v[{b+r}:{b+r+1}], v[{b+r}:{b+r+1}], v[{p}:{p+1}] {sel}")
                d = 16 + (j*4 + s) * 4
                for r in range(4): e(f"v_cvt_pk_bf16_f32 v{d+r}, v{b+2*r}, v{b+2*r+1}")
                if h == 1 and self.c.o1_epi and self.c.stop_after != "A":
                    k0, k1 = ((j*4 + s) * self.c.o1_epi) // 16, ((j*4 + s + 1) * self.c.o1_epi) // 16
                    for k in range(k0, k1): e(self.o_stores(1, 13)[k][2])
                if self.c.stop_after == "A" and h == 1:
                    e(I(f"buffer_store_dwordx4 v[{d}:{d+3}], v13, {srd(SWS)}, s3 offen offset:{s*1024} sc1", id=("os", h, j, s)))
                if h == 0:
                    dm = refill.pop(0) if (refill and (nref - len(refill)) * 16 < (j*4 + s + 1) * nref) else None
                    if dm: e(*dm[0], *dm[1])
                    for r in range(4): e(f"v_accvgpr_write_b32 a{(j*4+s)*4 + r}, v{d+r}")
                    if dm: e(dm[2])
        assert not refill
        e(I("s_barrier", needs=[("pw", h, 1)] + ([("V", 16, 3)] if h == 0 else [])))
        e(f"s_lshl_b32 s3, s{sPI}, 12", "v_subrev_u32 v9, s3, v9")
        for s in range(4):
            dst = R("a", 64 + 4*s, 4) if h == 0 else R("v", 80 + 4*s, 4)
            e(I(f"ds_read_b128 {dst}, v9 offset:{(s >> 1)*4096 + (s & 1)*1024}", id=("pr", h, s)))
        if h == 0:
            e("s_nop 1")
            for j in range(5): e(f"v_mov_b32 v{vNM+4*j}, 0xff800000")

    def redo(self, h):
        e = self.e
        save = self.ws; self.ws = WaitState()
        e(f"L_redo{h}:", "s_waitcnt vmcnt(0) lgkmcnt(0)", "s_barrier", f"s_mov_b32 s{sREDO}, 1")
        self.kv_addr_init()
        for j in range(5): e(f"v_mov_b32 v{vNM+4*j}, 0xff800000")
        e(f"s_mov_b32 s{sOFF}, {16*h*16384}", f"s_mov_b32 s{sD}, s{sH}", f"L_rl{h}:")
        for i in range(4):
            e(f"s_add_u32 m0, s{sKVW}, {32*i}", "s_nop 0",
              f"buffer_load_dwordx4 v{vDMA}, {srd(SK)}, s{sOFF} offen offset:{i*1024} lds")
        e("s_waitcnt vmcnt(0)", "s_barrier")
        for half in range(2):
            for T in range(2):
                for s in range(4): e(self.kread(h, 0, T, s))
            e("s_waitcnt lgkmcnt(0)", f"v_add_u32 v{vKA}, s{sD}, v{vKA}", f"s_sub_u32 s{sD}, 0, s{sD}")
            for j in range(5):
                for T in range(2):
                    for s in range(4):
                        e(mfma(("v", vO + (j*2+T)*4), ("a", aK + 16*T + 4*s), ("a", aQ[h] + (j*4+s)*4), 0 if s == 0 else None))
            e("s_nop 7")
            for j in range(5):
                b = vO + j*8
                for r in range(0, 8, 2): e(f"v_max3_f32 v{vNM+4*j}, v{b+r}, v{b+r+1}, v{vNM+4*j}")
        e("s_barrier", f"s_add_u32 s{sOFF}, s{sOFF}, 16384", f"s_cmp_lg_u32 s{sOFF}, {16*(h+1)*16384}", f"s_cbranch_scc1 L_rl{h}")
        for M in range(16*h, 16*h + 4):
            self.emit_dma_straight(self.dma_kv_static("K", M) + self.dma_kv_static("V", M))
        e("s_waitcnt vmcnt(0)", "s_barrier", f"s_branch L_head{h}")
        self.ws = save

    def wo_hh(self, i):
        return [(0, 0), (0, 1), (1, 0), (2, 0), (3, 0), (1, 1), (2, 1), (3, 1)][i]
    def dma_wo(self, i, vbase):
        p, par = self.wo_hh(i)
        ops = []
        for t in range(9):
            pre = [I(f"s_add_u32 m0, s{sOM0}, {(i % 4)*OST + t*1024}")] if t % 4 == 0 else []
            same = [I(f"s_add_u32 s{sT3}, s{sWR+p}, {par*128*1152}")] if t == 0 else []
            ops.append((pre, same, I(f"buffer_load_dwordx4 v{vbase[t]}, {srd(SWO)}, s{sT3} offen offset:{(t % 4)*1024} {self.c.wo_flags} lds", id=("wo", i, t)), []))
        return ops
    def oacc(self, j, i):
        if j < 4: return ("v", 96 + (j*9 + i) * 4)
        return ("v", 240 + 4*i) if i < 4 else ("a", 160)

    def o_stream(self, N, ws):
        c = self.c
        vLN, vA1, vA0, vWO, vPL = self.o_regs
        aA, NR = 164, 12
        L = N - 1; gL = 164 * L
        sC2, sC3, sX1, sNEED, sF2, sWB, sRB, sSTEP, sN, sXX, sU, sU2, sPF, sPS, sCNT = 47, 48, 49, 51, 52, 55, 56, 57, 59, 63, 66, 67, 72, 73, 74
        Bbuf = lambda i: ("v", 16) if i == 1 else (("a", 0) if (i == 0 or i % 2 == 1) else ("a", 80))
        def areg(f):
            r = f - 36 * L
            if r < 12: return aA + 4 * (f % NR)
            return 80 - Bbuf(L)[1] + 4 * (r - 12) if r < 32 else 212 + 4 * (r - 32)
        ms = []; start = {}; last = {}; tend = {}
        def chain(i, n, j):
            for s in range(4):
                f = 36*i + 4*n + s
                start.setdefault(f, len(ms)); last[f] = len(ms)
                k, b = Bbuf(i)
                nd = [("oa", f + 3, 1)] if s == 0 else []
                if i >= 2: nd.append(("ob", i, 3, j))
                elif j == 4: nd.append(("pr", i, s))
                ms.append(I(mfma(self.oacc(j, n), ("a", areg(f)), (k, b + (j*4+s)*4), 0 if (i == 0 and s == 0) else None), needs=nd))
            tend[(j, n)] = len(ms) - 1
        for i in range(L):
            for n in range(9):
                for j in ([1, 2, 3, 4, 0] if n <= 4 else [1, 2, 3, 0]): chain(i, n, j)
        for n in range(9):
            for j in ([4] if 1 <= n <= 4 else []) + [1, 2, 3]: chain(L, n, j)
        chain(L, 0, 4)
        for n in range(9): chain(L, n, 0)
        G = Gaps(ms)
        def aread(f, v):
            n, s = divmod(f % 36, 4)
            va, off = (vA0[n], 0) if n < 4 else (vA1, 32*(n-4))
            return I(f"ds_read_b64_tr_b16 {R('a', areg(f) + 2*v, 2)}, v{va} offset:{s*9216 + v*4608 + off}", id=("oa", f, v))
        pre = [I("s_barrier", needs=[("wo", 0, 8), ("pr", 1, 3)])]
        for i in range(N):
            for r in range(36):
                for v in range(2):
                    f = 36*i + r
                    n = r // 4; k = 2*(r % 4) + v
                    if n < 2: g = 164*i - 17 + 8*n + k
                    elif i == L: g = 164*i + ((8*(n - 2) + k) * 3) // 2
                    elif n >= 6: g = start[36*i + 4*n - 4] - 4 - 3 * (n - 5) + (3 * k) // 2
                    else: g = start[36*i + 4*n - 4] - 8 + 2 * k
                    if g < 0: pre.append(aread(f, v)); continue
                    assert g <= start[f - f % 4] - 8, (f, g, start[f])
                    assert f < NR or f >= 36*L + 12 or g >= last[f - NR], (f, g)
                    G.mem[g].append(aread(f, v))
        seq = []
        gb = 143
        vCA, vCD, vCR, vLW, vCL = 16, 17, 18, 19, 20
        for i in range(L):
            g0 = 164 * i
            ev = []
            def grp(lo, hi, *ts): ev.append((g0 + lo, [(I(t), g0 + lo, g0 + hi) for t in ts]))
            def free(g):
                while G.mem[g]: g += 1
                return g
            tim = []
            if i >= 1:
                nm = "o1" if i == 1 else f"g{i % 2}"
                load = f"buffer_load_dword v{vPL}, off, {srd(SWS)}, s{sF2} sc1"
                test = [f"v_readfirstlane_b32 s{sT2}, v{vPL}", f"s_cmp_ge_u32 s{sT2}, s{sNEED}"]
                G.val[g0] += [I(test[0], needs=[("poll", i)])]
                G.val[g0 + 1] += [I(test[1]), I(f"s_cbranch_scc0 L_sp_{nm}"), I(f"L_sb_{nm}:")]
                if N == 8 and i <= 3: self.spin(nm, [load], test)
                k, b = Bbuf(i + 1)
                ob = []
                for j in (1, 2, 3, 4, 0):
                    for s in range(4):
                        same = [] if s else ([f"s_xor_b32 s{sT2}, s{sX1}, {j*4096}", f"s_add_u32 s{sT2}, s{sT2}, s{sPF}"] if j < 4 else [f"s_mov_b32 s{sT2}, s{sPS}"])
                        ob.append(([], same, I(f"buffer_load_dwordx4 {R(k, b + (j*4+s)*4, 4)}, v{vLN}, {srd(SWS)}, s{sT2} offen offset:{s*1024} {c.ob_flags}", id=("ob", i + 1, s, j))))
                tim += [(g0 + 4 + k * c.bstep, o) for k, o in enumerate(ob)]
                grp(8, 24, f"s_and_b32 s{sU}, s{sC2}, 3", f"s_xor_b32 s{sU}, s{sU}, s{sKQ}", f"s_lshl_b32 s{sU}, s{sU}, 2",
                    f"s_bfe_u32 s{sU2}, s{sC2}, 0x20002", f"s_xor_b32 s{sU2}, s{sU2}, s{sHP}", f"s_add_u32 s{sU}, s{sU}, s{sU2}")
                grp(9, 24, f"s_lshl_b32 s{sU}, s{sU}, 1", f"s_bfe_u32 s{sU2}, s{sC2}, 0x10004", f"s_add_u32 s{sU}, s{sU}, s{sU2}",
                    f"s_lshl_b32 s{sU}, s{sU}, 2", f"s_add_u32 s{sU}, s{sU}, s{sW}", f"s_mul_i32 s{sU}, s{sU}, {32*1152}")
                grp(10, 24, f"s_cmp_lt_u32 s{sC2}, 32", f"s_cselect_b32 s{sT3}, s{sU}, s{sTHR}")
                for t in range(9):
                    p_ = [f"s_add_u32 m0, s{sWB}, {t*1024}"] if t % 4 == 0 else []
                    tim.append((g0 + c.wstart + t * c.wstep, (p_, [], I(f"buffer_load_dwordx4 v{vWO+t}, {srd(SWO)}, s{sT3} offen offset:{(t % 4)*1024} {c.wo_flags} lds", id=("wo", i + 2, t)))))
            else:
                st = self.o_stores(1, vLN)[c.o1_epi:]
                tim += [(g0 + 1 + (k * c.st_span) // len(st), o[:3]) for k, o in enumerate(st)]
            tp = 90 if i else c.poll1
            if i: grp(62, tp - 2, f"s_and_b32 s{sU}, s{sC2}, 3", f"s_lshl_b32 s{sU}, s{sU}, 7", f"s_xor_b32 s{sF2}, s{sFL}, s{sU}")
            if i: grp(69, tp - 2, f"s_and_b32 s{sU}, s{sC2}, 12", f"s_lshl_b32 s{sU}, s{sU}, 8", f"s_xor_b32 s{sF2}, s{sF2}, s{sU}")
            tim.append((g0 + tp, ([], [], I(f"buffer_load_dword v{vPL}, off, {srd(SWS)}, s{sF2} sc1", id=("poll", i + 1)))))
            nb = []
            if i >= 2:
                if c.steal:
                    grp(5, 20, f"s_cmp_lt_u32 s{sN+2}, s{sN+1}", f"s_cselect_b32 s{sXX}, 2, 1", f"s_min_u32 s{sU}, s{sN+1}, s{sN+2}")
                    grp(6, 20, f"s_cmp_lt_u32 s{sN+3}, s{sU}", f"s_cselect_b32 s{sXX}, 3, s{sXX}",
                        f"s_min_u32 s{sU}, s{sU}, s{sN+3}", f"s_cmp_lt_u32 s{sU}, 3", f"s_cselect_b32 s{sXX}, s{sXX}, 64")
                else: grp(6, 20, f"s_mov_b32 s{sXX}, 64")
                grp(7, 20, f"s_cmp_lt_u32 s{sN}, 3", f"s_cselect_b32 s{sXX}, 0, s{sXX}", f"s_cmp_lt_u32 s{sC2}, 32", f"s_cselect_b32 s{sXX}, s{sXX}, 64",
                    f"s_cmp_eq_u32 s{sXX}, s{sW}", f"s_cselect_b32 s{sN}, 1, 0", f"s_cselect_b32 s{sN+1}, 1, 0", f"s_atomic_add s{sN}, s[{SK}:{SK+1}], 0 glc" if not c.diag_noatom else f"s_sub_u32 s{sN}, s{sCNT}, 3")
                for k, t in enumerate([f"v_mov_b32 v{vLW}, s{sW}", f"v_lshlrev_b32 v{vLW}, 2, v{vLW}", f"v_add_u32 v{vLW}, {4*OST}, v{vLW}",
                                       f"v_lshrrev_b32 v{vCL}, 2, v{vLN}", f"v_and_b32 v{vCL}, 12, v{vCL}", f"v_add_u32 v{vCL}, {4*OST}, v{vCL}"]):
                    G.val[g0 + 50 + 2*k].append(I(t))
                G.val[g0 + gb - 7] += [I("s_waitcnt lgkmcnt(0)"), I(f"v_mov_b32 v{vCR}, s{sN}")]
                G.val[g0 + gb - 6] += [I(f"v_add_u32 v{vCR}, s{sN+1}, v{vCR}")]
                g = free(g0 + gb - 5); assert g < g0 + gb
                G.mem[g].append(I(f"ds_write_b32 v{vLW}, v{vCR} offset:{64 * (i % 2)}", id=("cw", i)))
                nb = [("cw", i)]
                G.mem[g0 + gb + 3].append(I(f"ds_read_b32 v{vCR}, v{vCL} offset:{64 * (i % 2)}", id=("cr", i)))
                G.val[g0 + 153].append(I(f"v_readlane_b32 s{sU2}, v{vCR}, s{sXX}", needs=[("cr", i)]))
                for k in range(4): G.val[g0 + 154 + k].append(I(f"v_readlane_b32 s{sN+k}, v{vCR}, {k}"))
                grp(154, 160, f"s_lshl_b32 s{sU}, s{sU2}, 2", f"s_or_b32 s{sU}, s{sU}, s{sXX}", f"s_or_b32 s{sU}, s{sU}, 16",
                    f"s_cmp_le_u32 s{sU2}, 3", f"s_cselect_b32 s{sC3}, s{sU}, 64")
            grp(104, 128, f"s_cmp_eq_u32 s{sRB}, {3*OST}", f"s_cselect_b32 s{sSTEP}, {-3*OST & 0xffffffff:#x}, s{sWIN}", f"s_add_u32 s{sRB}, s{sRB}, s{sSTEP}")
            for k, va in enumerate(vA0 + [vA1]):
                G.val[g0 + gb - 12 + k].append(I(f"v_add_u32 v{va}, s{sSTEP}, v{va}"))
            G.waitneeds[g0 + gb + 1] += [("oa", 36*i + 35, 1), ("wo", i + 1, 8)] + nb
            if i == 1: G.waitneeds[g0 + gb + 1] += [("os", 1, 3, 3)]
            G.sal[g0 + gb + 2].append(I("s_barrier"))
            if i < 2: self.stamp_gap(G, g0 + gb + 2)
            if i >= 2 and c.stamps and not c.steal:
                k0 = self.nstamp - 2
                x = [I(t) for t in (f"s_memtime s[{sST}:{sST+1}]", "s_memrealtime s[96:97]", f"s_lshl_b32 s99, s{sCNT}, 3", f"s_add_u32 s99, s99, s{sSTO}", "s_waitcnt lgkmcnt(0)",
                     f"v_accvgpr_write_b32 a252, s{sST}", f"v_accvgpr_write_b32 a253, s96",
                     f"buffer_store_dwordx2 a[252:253], off, {srd(SWS)}, s99 offset:{(k0 - 1)*8}")]
                G.val[g0 + gb + 2] += x[:-1]; G.mem[g0 + gb + 3].insert(0, x[-1])
            if i == 1: G.val[g0 + gb + 3] += self.publish(2)
            G.waitneeds[g0 + 162] += ms[g0 + 164].needs
            tim.sort(key=lambda t: t[0])
            g = g0 + 1; gsame = 108
            for t, (p_, same, vm) in tim:
                g = free(max(g + 2, t))
                assert g < g0 + 147, (i, g - g0)
                G.mem[g].append(vm)
                if p_: ev.append((g - 1.5, [(I(x), g - 1, g - 1) for x in p_]))
                if same: ev.append((g - 1.5, [(I(x), g - 1, g) for x in same])); gsame = max(gsame, g - g0)
            grp(gsame + 1, 152, f"s_and_b32 s{sU}, s{sC2}, 3", f"s_lshl_b32 s{sX1}, s{sU}, 12", f"s_xor_b32 s{sU}, s{sU}, s{sKQ}", f"s_lshl_b32 s{sU}, s{sU}, 2",
                f"s_bfe_u32 s{sU2}, s{sC2}, 0x20002", f"s_xor_b32 s{sU2}, s{sU2}, s{sHP}", f"s_add_u32 s{sU}, s{sU}, s{sU2}", f"s_lshl_b32 s{sU}, s{sU}, 1",
                f"s_bfe_u32 s{sNEED}, s{sC2}, 0x10004", f"s_add_u32 s{sU}, s{sU}, s{sNEED}", f"s_mul_i32 s{sU}, s{sU}, 73728",
                f"s_add_u32 s{sPF}, s{sU}, s{sOB}", f"s_add_u32 s{sPS}, s{sU}, s{sOS}", f"s_add_u32 s{sNEED}, s{sNEED}, 1")
            grp(147, 153, f"s_cmp_ge_u32 s{sRB}, {2*OST}", f"s_cselect_b32 s{sWB}, {-2*OST & 0xffffffff:#x}, s{sDUM}",
                f"s_add_u32 s{sWB}, s{sWB}, s{sRB}", f"s_add_u32 s{sWB}, s{sWB}, s{sOM0}")
            if i >= 2:
                if c.stamps: grp(158, 162, f"s_add_u32 s{sCNT}, s{sCNT}, 1")
                grp(159, 162, f"s_cmp_lt_u32 s{sC2}, 32", f"s_mov_b32 s{sC2}, s{sC3}")
            else: grp(159, 162, f"s_mov_b32 s{sC2}, {4 * (i + 2)}")
            ev.sort(key=lambda t: t[0])
            for k, (t, items) in enumerate(ev):
                cap = min([x[2] for _, it in ev[k+1:] for x in it] + [10**9])
                seq += [(x, lo, min(hi, cap)) for x, lo, hi in items]
        vL8, vOS, vE, vOW, vFA = 82, 83, 84, 90, 95
        load7 = lambda g: 2 * sum(x.k == "vm" for x in G.mem[g]) + sum(x.k == "ds" for x in G.mem[g]) + len(G.val[g])
        def putv(g, t):
            while load7(g) >= 2: g += 1
            G.val[g].append(I(t)); return g
        sal7 = [f"s_sub_u32 s84, s{sRB}, s{sSTEP}", f"s_mul_i32 s{sT}, s{sKQ}, {4*5120}", f"s_add_u32 s{sT}, s{sT}, s{sPB}"]
        if c.stamps: sal7 = [f"s_mov_b32 s{sC3}, s{sCNT}"] + sal7
        for j in range(1, 4):
            sal7 += [f"s_xor_b32 s3, s{sKQ}, {j}", f"s_mul_i32 s3, s3, {16*5120}", f"s_add_u32 s{89+j}, s3, s{sT}"]
        n_first = len(sal7)
        sal7 += [f"s_lshr_b32 s3, s{sG}, 3", f"s_lshl_b32 s{sT2}, s{sBR}, 5", f"s_add_u32 s3, s3, s{sT2}", "s_lshl_b32 s3, s3, 13",
                 f"s_lshl_b32 s{sT2}, s{sW}, 9", f"s_add_u32 s3, s3, s{sT2}", f"s_add_u32 s{sT3}, s3, {WS_SH}",
                 f"s_lshl_b32 s3, s{sKQ}, 11", f"s_add_u32 s93, s3, s{sT3}",
                 f"s_mul_i32 s{sT}, s{sKQ}, {16*5120}", f"s_add_u32 s{sT}, s{sT}, s{sPB}"]
        for j in range(1, 4):
            sal7 += [f"s_xor_b32 s{sT2}, s{sKQ}, {j}", f"s_mul_i32 s3, s{sT2}, {4*5120}", f"s_add_u32 s{sFP+j-1}, s3, s{sT}",
                     f"s_lshl_b32 s3, s{sT2}, 11", f"s_add_u32 s{sOP+j-1}, s3, s{sT3}"]
        sal7 += [f"s_mul_i32 s{sT}, s{sBR}, 1152", f"s_mul_i32 s3, s{sHP}, 288", f"s_add_u32 s{sT}, s{sT}, s3",
                 f"s_mul_i32 s3, s{sB}, {288*2304}", f"s_add_u32 s{sT}, s{sT}, s3",
                 f"s_lshl_b32 s3, s{sROW+4}, 1", f"s_add_u32 s82, s{sT}, s3", f"s_lshl_b32 s3, s{sROW}, 1", f"s_add_u32 s81, s{sT}, s3",
                 f"s_lshl_b32 s3, s{sKQ}, 5", f"s_add_u32 s3, s3, s{sD}", f"s_add_u32 s83, s3, s82",
                 f"s_lshl_b32 s3, s{sW}, 2", f"s_add_u32 s{sFL}, s{sFL}, s3", f"s_add_u32 s84, s84, s{sOM0}"]
        for k, t in enumerate(sal7): seq.append((I(t), gL, gL + (24 if k < n_first else 66)))
        pk, pairs = self.pk, self.pairs
        msgs = []
        for k in range(5):
            for j in range(1, 4):
                d = 16 + ((j-1)*5 + k) * 4
                g = 0
                for q, (tj, tn) in enumerate(pairs(j, 0)[k]):
                    gg = tend[(tj, tn)] + 6
                    for t in pk(d + 2*q, self.oacc(tj, tn)[1]): gg = putv(gg, t)
                    g = max(g, gg)
                msgs.append((g + 1, k, j, I(f"buffer_store_dwordx4 v[{d}:{d+3}], v{vLN}, {srd(SWS)}, s{89+j} offen offset:{(k % 4)*1024} {c.p_flags}", id=("ps", j, k))))
        gg = tend[(4, 4)] + 5
        for r in range(4): gg = putv(gg, f"v_accvgpr_read_b32 v{76+r}, a{160+r}")
        for t in pk(80, 76): gg = putv(gg + 1, t)
        msgs.append((gg + 1, 5, 0, I(f"buffer_store_dwordx2 v[80:81], v{vL8}, {srd(SWS)}, s93 offen {c.p_flags}", id=("ps", 4, 0))))
        msgs.sort(key=lambda t: t[0])
        g = 0
        for t, k, j, vm in msgs:
            g = max(g + 2, t)
            while G.mem[g] or len(G.val[g]) > 1: g += 1
            G.mem[g].append(vm)
            if k == 4: seq.append((I(f"s_add_u32 s{89+j}, s{89+j}, 4096"), g - 1, g))
            assert g > gL + (25 if k < 5 else 67)
        G.mem[g + 2].append(I(self.fpoll, id=("fpoll",)))
        setup = [f"v_lshrrev_b32 v{vL8}, 1, v{vLN}", f"v_lshrrev_b32 v3, 4, v{vLN}",
                 f"v_mov_b32 v{vFA}, s{sFQ}", f"v_writelane_b32 v{vFA}, s{sFQ+1}, 1", f"v_writelane_b32 v{vFA}, s{sFQ+2}, 2",
                 f"v_mov_b32 v7, s{sW}", f"v_lshl_add_u32 v{vFA}, v7, 2, v{vFA}",
                 "v_lshrrev_b32 v4, 4, v3", "v_bfe_u32 v5, v3, 2, 2",
                 "v_cmp_eq_u32 vcc, v4, v5", "v_and_b32 v6, 1, v3", "v_lshlrev_b32 v6, 4, v6", "v_mov_b32 v7, 0x3f80",
                 "v_lshlrev_b32 v6, v6, v7", "v_cndmask_b32 v6, 0, v6, vcc", "v_and_b32 v7, 2, v3", "v_cmp_eq_u32 vcc, 0, v7",
                 f"v_mov_b32 v{vE}, 0", f"v_mov_b32 v{vE+1}, 0", f"v_cndmask_b32 v{vE+2}, 0, v6, vcc", f"v_sub_u32 v{vE+3}, v6, v{vE+2}",
                 f"v_mov_b32 v{vE+4}, 0", f"v_mov_b32 v{vE+5}, 0",
                 f"v_and_b32 v{vOS}, 15, v3", f"v_mul_u32_u24 v{vOS}, 2304, v{vOS}", f"v_lshl_add_u32 v{vOS}, v4, 3, v{vOS}"]
        for t in range(5):
            v = vOW + t
            setup += [f"v_add_u32 v7, {64*t}, v3", f"v_mul_u32_u24 v{v}, 3641, v7", f"v_lshrrev_b32 v{v}, 16, v{v}",
                      f"v_mul_u32_u24 v{v}, 2016, v{v}", f"v_lshl_add_u32 v{v}, v7, 4, v{v}"]
        setup += ["v_lshrrev_b32 v7, 5, v3", f"v_lshl_add_u32 v{vOW+4}, v7, 28, v{vOW+4}"]
        gg = gL
        for t in setup: gg = putv(gg, t)
        assert gg < g
        tr = [f"v_lshrrev_b32 v9, 4, v{vLN}", "v_and_b32 v10, 15, v9", "v_mul_u32_u24 v10, 288, v10", "v_lshrrev_b32 v9, 4, v9",
              "v_lshl_add_u32 v10, v9, 3, v10", "v_add_u32 v10, s84, v10", f"v_add_u32 v8, s84, v{vLN}",
              f"v_mov_b32 v11, s{sKQ}", f"v_add_u32 v7, s{sD}, v10"]
        for n in range(4): tr += [f"v_xor_b32 v{3+n}, {n}, v11", f"v_lshl_add_u32 v{3+n}, v{3+n}, 5, v7"]
        tr += [f"v_mov_b32 v11, s{sPI}", "v_xor_b32 v11, 1, v11", "v_lshl_add_u32 v7, v11, 7, v10"]
        gg = g + 3
        for t in tr + [f"v_mov_b32 v{134 + 4*j + r}, 0" for j in range(1, 4) for r in range(2)] + ["v_mov_b32 v11, 1"]: gg = putv(gg, t)
        seq += [(I(f"s_mov_b32 s{sKO}, 0"), g + 1, len(ms) - 1), (I(f"s_mov_b32 s{sWIN}, 0"), g + 1, len(ms) - 1),
                (I(f"s_mov_b32 s{sSPIN}, 0x40000"), g + 1, len(ms) - 1)]
        pre = linear_waits(pre, ws)
        G.place_waits(ws, pre)
        G.unify_waits([164 * i for i in range(2, L)], 164)
        G.place_salu(seq, dense=True)
        return G, pre

    def phase_o(self):
        import copy
        e = self.e; c = self.c
        vLN, vA1 = 1, 2
        vA0 = [13, 14, 0, 12]
        vWO, vPL = 3, 15
        vL8, vOS, vE, vOW, vFA = 82, 83, 84, 90, 95
        self.o_regs = (vLN, vA1, vA0, vWO, vPL)
        def pk(dst, t):
            return [f"v_cvt_pk_bf16_f32 v{dst}, v{t}, v{t+1}", f"v_cvt_pk_bf16_f32 v{dst+1}, v{t+2}, v{t+3}"]
        pairs = lambda j, x: [((j, 0 ^ x), (j, 1 ^ x)), ((j, 2 ^ x), (j, 3 ^ x)), ((4, j), (j, 4)), ((j, 5), (j, 6)), ((j, 7), (j, 8))]
        self.pk, self.pairs = pk, pairs
        poll = self.fpoll = f"buffer_load_dword v{vPL}, v{vFA}, {srd(SWS)}, 0 offen offset:16 sc1"
        e(f"v_lshrrev_b32 v12, 2, v0", "v_mul_u32_u24 v12, 288, v12", "v_and_b32 v14, 3, v0", "v_lshl_add_u32 v12, v14, 3, v12",
          f"v_lshlrev_b32 v{vLN}, 4, v0",
          f"s_lshl_b32 s3, s{sPI}, 7", "s_xor_b32 s3, s3, 128", f"v_add_u32 v{vA1}, s3, v12", f"s_mul_i32 s{sD}, s{sPI}, 160")
        for i in range(4):
            e(f"s_xor_b32 s3, s{sKQ}, {i}", "s_lshl_b32 s3, s3, 5", f"s_add_u32 s3, s3, s{sD}", f"v_add_u32 v{vA0[i]}, s3, v12")
        for t in range(9): e(f"v_accvgpr_read_b32 v{vWO+t}, a{240+t}")
        e(f"s_lshl_b32 s3, s{sKQ}, 2", f"s_add_u32 s3, s3, s{sHP}", "s_mul_i32 s3, s3, 147456", f"s_sub_u32 s{sOB}, s{sOB}, s3", f"s_sub_u32 s{sOS}, s{sOS}, s3",
          "s_mov_b32 s47, 4", f"s_xor_b32 s52, s{sFL}, {1 << 10}", "s_mov_b32 s56, 0", "s_mov_b32 s59, 0", "s_mov_b32 s60, 0", "s_mov_b32 s61, 0", "s_mov_b32 s62, 0",
          f"s_mov_b32 s{sWIN}, {OST}", f"s_mov_b32 s{sDUM}, {2*OST}", "s_mov_b32 s74, 3",
          f"s_lshl_b32 s3, s{sW}, 7", f"s_xor_b32 s3, s3, s{sFL}", "s_add_u32 s3, s3, 4", f"s_add_u32 s{SK}, s{SWS}, s3", f"s_addc_u32 s{SK+1}, s{SWS+1}, 0")
        ns = self.nstamp
        G7, _ = self.o_stream(7, copy.deepcopy(self.ws))
        self.nstamp = ns
        G, pre = self.o_stream(8, self.ws)
        txt = lambda G, i: [x.t for x in G.flat(164 * i, 164 * (i + 1))]
        assert txt(G, 2) == txt(G, 4) == txt(G, 6) == txt(G7, 2) == txt(G7, 4) and txt(G, 3) == txt(G, 5) == txt(G7, 3) == txt(G7, 5)
        st = lambda G, i: G.flat(164 * i, 164 * (i + 1))
        assert all(st(G, i)[-1].k == "m" for i in (1, 2, 3))
        self.raw(pre + st(G, 0) + st(G, 1) + [I("s_branch L_gz"), I(".p2align 6"), I("L_gz:")] + st(G, 2) + [I("s_cbranch_scc0 L_lastx")])
        self.raw(st(G, 3) + [I("s_cbranch_scc1 L_gz")] + st(G7, 6) + [I("s_branch L_otail"), I(".p2align 6"), I("L_lastx:")] + st(G, 7) + [I("L_otail:")])
        self.checks += [("o8", G.flat()), ("o7", G7.flat())]
        print("phase O est cycles", G.cost(), [G.cost(164*i, 164*i + 164) for i in range(8)], file=sys.stderr)
        if c.stamps and not c.steal:
            self.nstamp += 5; e("; s_memtime s_memtime s_memtime")
        if c.stamps:
            e("v_accvgpr_write_b32 a252, s48", f"buffer_store_dword a252, off, {srd(SWS)}, s{sSTO} offset:248")
        self.stamp()
        sDONE, sAPP, sPEND = sKO, sWIN, sT
        e("s_waitcnt vmcnt(0)", f"buffer_store_dword v11, off, {srd(SWS)}, s{sFL} offset:16 sc1")
        self.stamp()
        e("s_branch L_gchk", "L_gather:", "s_waitcnt vmcnt(0)")
        for j in range(1, 4):
            e(f"s_cmp_eq_u32 s{sAPP}, {j-1}", f"s_cbranch_scc0 L_gm{j}", f"s_bitcmp1_b32 s{sDONE}, {j-1}", f"s_cbranch_scc0 L_gchk", f"s_mov_b32 s{sAPP}, {j}")
            for k, (t0, t1) in enumerate(pairs(0, j)):
                d = 16 + ((j-1)*5 + k) * 4
                e(mfma(self.oacc(*t0), ("v", vE + 2), ("v", d)), mfma(self.oacc(*t1), ("v", vE), ("v", d)))
            e(mfma(("v", 76), ("v", vE + 2), ("v", 132 + 4*j)), f"L_gm{j}:")
        e("s_branch L_gdone", "L_gchk:",
          f"v_cmp_ne_u32 vcc, 0, v{vPL}", f"s_sub_u32 s{sSPIN}, s{sSPIN}, 1", f"s_cselect_b32 s3, 7, 0", "s_or_b32 s3, s3, vcc_lo", "s_and_b32 s3, s3, 7",
          f"s_andn2_b32 s{sPEND}, s3, s{sDONE}", f"s_or_b32 s{sDONE}, s{sDONE}, s3")
        for j in range(1, 4):
            e(f"s_bitcmp1_b32 s{sPEND}, {j-1}", f"s_cbranch_scc0 L_gl{j}")
            for k in range(5):
                d = 16 + ((j-1)*5 + k) * 4
                if k == 4: e(f"s_add_u32 s{sFP+j-1}, s{sFP+j-1}, 4096")
                e(f"buffer_load_dwordx4 v[{d}:{d+3}], v{vLN}, {srd(SWS)}, s{sFP+j-1} offen offset:{(k % 4)*1024} sc1")
            e(f"buffer_load_dwordx2 v[{132+4*j}:{133+4*j}], v{vL8}, {srd(SWS)}, s{sOP+j-1} offen sc1", f"L_gl{j}:")
        e(poll, "s_branch L_gather", "L_gdone:")
        self.stamp()
        e("s_nop 7")
        for n in range(9):
            t = self.oacc(0, n)[1]
            e(*pk(t, t), I(f"ds_write_b64 v{3 + min(n, 4)}, v[{t}:{t+1}] offset:{32 * max(0, n - 4)}", id=("tw", n)))
        for t in range(5): e(I(f"ds_read_b128 v[{16+4*t}:{19+4*t}], v8 offset:{1024*t}", id=("tr", t)))
        t = self.oacc(4, 0)[1]
        e(*pk(t, t), *pk(76, 76), f"v_cmp_eq_u32 vcc, s{sKQ}, v9")
        for k in range(5):
            e(I(f"buffer_store_dwordx4 v[{16+4*k}:{19+4*k}], v{vOW+k}, {srd(SOUT)}, s81 offen {c.out_flags}", needs=[("tr", k)]))
        e(f"buffer_store_dwordx2 v[{t}:{t+1}], v{vOS}, {srd(SOUT)}, s83 offen {c.out_flags}")
        e(f"s_cmp_eq_u32 s{sPI}, 1", "s_cbranch_scc1 L_fin",
          "s_and_saveexec_b64 s[90:91], vcc", f"buffer_store_dwordx2 v[76:77], v{vOS}, {srd(SOUT)}, s82 offen offset:128 {c.out_flags}",
          "s_mov_b64 exec, s[90:91]", "L_fin:")

    def build(self):
        self.setup()
        self.phase_q()
        self.attn_schedule()
        self.head(0)
        self.head(1)
        self.stamp()
        if self.c.stop_after != "A":
            self.phase_o()
        self.e("s_waitcnt vmcnt(0) lgkmcnt(0)")
        self.stamp()
        if self.c.amp is not None:
            print("n stamps", self.nstamp, file=sys.stderr)
            if self.c.amp[0] < 0: self.e("s_mov_b32 s96, s98")
            self.e(f"s_and_b32 s3, s{sG}, {self.c.amp[1]}", f"s_cmp_lg_u32 s3, {self.c.amp[2]}", "s_cbranch_scc1 L_end",
                   "s_sub_u32 s96, s96, s98", "s_mul_i32 s96, s96, 4", "s_add_u32 s96, s96, 20000", "L_amp:", "s_memrealtime s[100:101]", "s_waitcnt lgkmcnt(0)",
                   "s_sub_u32 s100, s100, s98", "s_cmp_lt_u32 s100, s96", "s_cbranch_scc1 L_amp")
        self.e("s_endpgm")
        self.raw(self.tailcode)
        self.redo(0)
        self.redo(1)
        self.e("L_end:")
        probs = check_hazards(self.out, "main") + check_scc(self.out, "scc")
        for nm, seq in self.checks: probs += check_hazards(seq, nm)
        for p in probs: print(p, file=sys.stderr)
        assert not probs
        hdr = open("cdna_kernels/" + NAME[:-7] + ".s.ref").read().split("; Override launch")[0]
        txt = hdr + f"; @launch grid=(256,1,1) block=(256,1,1) lds={LDS_BYTES}\n"
        txt += f""".amdgcn_target "amdgcn-amd-amdhsa--gfx950"
.text
.globl {NAME}
.p2align 8
.type {NAME},@function
{NAME}:
"""
        for x in self.out:
            if self.c.no_dma and x.k == "vm" and f"s{sOFF} offen" in x.t: continue
            txt += (x.t if x.k == "l" else "    " + " ".join(x.t.split())) + "\n"
        txt += f"""    s_endpgm
.section .rodata,"a"
.p2align 6
.amdhsa_kernel {NAME}
  .amdhsa_next_free_vgpr 512
  .amdhsa_next_free_sgpr 102
  .amdhsa_accum_offset 256
  .amdhsa_group_segment_fixed_size 0
  .amdhsa_kernarg_size 104
  .amdhsa_user_sgpr_count 2
  .amdhsa_user_sgpr_kernarg_segment_ptr 1
  .amdhsa_system_sgpr_workgroup_id_x 1
.end_amdhsa_kernel
"""
        return txt

def make(**kw):
    c = Cfg()
    for k, v in kw.items():
        assert hasattr(c, k), k
        setattr(c, k, v)
    return Gen(c).build()

if __name__ == "__main__":
    kw = {}
    out = sys.argv[1]
    for a in sys.argv[2:]:
        k, v = a.split("=", 1)
        try: v = eval(v)
        except Exception: pass
        kw[k] = v
    open(out, "w").write(make(**kw))
```

```python
import sys, struct, math
from asmlib import *

NAME = "concat_heads__mha_block_cached__gqa_block_cached__near_ridge_kernel"
def f2u(x): return struct.unpack("<I", struct.pack("<f", x))[0]

class Cfg:
    stamps = False
    stop_after = None
    kv_flags = "nt"
    x_flags = ""
    wq_flags = ""
    wo_flags = ""
    thr = 2.0 ** 30
    backlog = 30
    code_prefetch = True
    nfirst = 22
    touch13 = True
    touch_flags = ''
    o1_epi = 6
    st_span = 136
    poll1 = 2
    steal = True
    diag_noatom = False
    wstart = 20
    wstep = 13
    n0 = 10
    cp_split = True
    stamp0 = False
    ws_off = 0
    touch_win = 13
    kmask = (2, 2)
    vmask = (2, 2)
    stag = (3, 3)
    vpos = (4, 10)
    kpos = (8, 18)
    touch_pos = 40
    wo_pos = (60, 9)
    wq8 = False
    retouch = True
    o0_pos = (110, 12)
    ob_flags = 'sc1'
    p_flags = 'sc1'
    out_flags = 'sc1'
    nx0 = True
    bstep = 7
    ones = (0, 1, 2, 3, 4)
    edelay = 5
    cnt = [3, 3, 3, 3, 3, 3, 3, 3, 3, 5]
    onepos = (2, 5, 9, 9)
    wtrace = False
    fill = {15: 'K0', 16: 'K1', 17: 'K2 V3'}
    loop_q = True
    o_flags = 'sc1'
    amp = None
    kv_same = False
    no_dma = False

SX, SWQ, SK, SV, SWO, SWS, SOUT, SDBG = 4, 8, 12, 16, 20, 24, 28, 32
sW, sPI, sKQ, sB, sHP, sBR = 36, 37, 38, 39, 40, 41
sROW = 42
sH, sDA, sDB, sD, sM0, sOFF, sT, sT2 = 47, 48, 49, 50, 51, 52, 53, 54
sWM0 = 55
sC = 56
sTHR, sXK, sWK, sXM0, sREDO, sKVW = 58, 59, 60, 61, 62, 63
sOB = 64
sOS = 65
sG = 2
sST = 68
sSTO = 70
sFL = 71
sFP = 72
sFQ = 75
sOP = 78
sWR = 81
sPB = 85
sOM0 = 86
sT3 = 87
sSPIN = 88
sCT = 66
sKO, sWIN, sDUM, sCUR = 89, 94, 95, 67
PITCH = 17408
VBASE = 4 * PITCH
XB = (121856, 80896)
SCR = 8 * PITCH
MISC = 9 * PITCH
LDS_BYTES = 163840
HALF = 8448
WS_O = 0
WS_PART = 0x2800000
WS_SH = 0x3e00000
WS_FLAG = 0x3f00000
WS_STAMP = 0x4000000
OST = 36864
WS_BYTES = 292618240
vDMA, vKA, vVA = 1, 2, 3
vL = 4
vT = 9
vNM = 16
vS = 36
NS = 6
vP = (60, 80)
vO = 96
vXD, vWD, vXR, vWR0, vWR1 = 4, 5, 6, 7, 8
aQ = (0, 80)
aK = 160
aV = 192
NV = 4
aL = 208
aONE = 228

def srd(n): return f"s[{n}:{n+3}]"

class Gen:
    def __init__(self, cfg):
        self.c = cfg
        self.out = []
        self.ws = WaitState()
        self.nstamp = 0
        self.tailcode = []
        self.checks = []
    def e(self, *ts):
        for t in ts:
            for line in (t.split("\n") if isinstance(t, str) else [t]):
                if isinstance(line, str):
                    line = line.strip()
                    if not line: continue
                    line = I(line)
                self.out += linear_waits([line], self.ws)
    def raw(self, ins):
        self.out += ins
    def stamp_ins(self):
        k = self.nstamp; self.nstamp += 1
        return [I(x) for x in (f"s_memtime s[{sST}:{sST+1}]", "s_memrealtime s[96:97]", "s_waitcnt lgkmcnt(0)",
               f"v_accvgpr_write_b32 a252, s{sST}", f"v_accvgpr_write_b32 a253, s96",
               f"buffer_store_dwordx2 a[252:253], off, {srd(SWS)}, s{sSTO} offset:{k*8}")]
    def stamp(self):
        if self.c.amp is not None:
            k = self.nstamp; self.nstamp += 1
            if k == self.c.amp[0]: self.e("s_memrealtime s[96:97]", "s_waitcnt lgkmcnt(0)")
        if self.c.stamps: self.e(*self.stamp_ins())
    def stamp_gap(self, G, g):
        if not self.c.stamps: return
        x = self.stamp_ins()
        G.val[g] += x[:-1]
        G.mem[g + 1].insert(0, x[-1])

    def setup(self):
        c = self.c; e = self.e
        e(f"""
        s_cmp_ge_u32 s2, 256
        s_cbranch_scc1 L_end
        {"s_memtime s[96:97]" if c.stamps else ""}
        {"s_memrealtime s[98:99]" if (c.stamps or c.amp) else ""}
        s_load_dwordx16 s[64:79], s[0:1], 0
        s_load_dwordx8 s[80:87], s[0:1], 64
        s_load_dwordx2 s[88:89], s[0:1], 96
        v_lshrrev_b32 v9, 6, v0
        v_and_b32 v0, 63, v0
        s_and_b32 s3, s2, 7
        v_readfirstlane_b32 s{sW}, v9
        s_lshr_b32 s{sBR}, s3, 2
        s_and_b32 s{sKQ}, s3, 3
        s_lshr_b32 s3, s2, 3
        s_lshr_b32 s{sB}, s3, 2
        s_and_b32 s{sHP}, s3, 3
        s_and_b32 s{sPI}, s{sW}, 1
        """)
        e(f"s_mov_b32 s{sD}, 0")
        if c.code_prefetch:
            e(f"""
            s_getpc_b64 s[100:101]
            L_pc:
            s_mov_b32 s92, s100
            s_mov_b32 s93, s101
            s_mov_b32 s94, L_end-L_pc
            s_mov_b32 s95, 0x20000
            """)
            if c.cp_split:
                e(f"""
                s_and_b32 s3, s3, 7
                s_lshl_b32 s3, s3, 2
                s_add_u32 s{sD}, s3, s{sW}
                v_cmp_gt_u32 vcc, 20, v0
                s_mul_i32 s3, s{sD}, {20*128}
                v_lshlrev_b32 v10, 7, v0
                v_mov_b32 v11, 0x1000000
                v_cndmask_b32 v10, v11, v10, vcc
                buffer_load_dword v15, v10, s[92:95], s3 offen
                """)
            else:
                e(f"""
                v_lshlrev_b32 v10, 7, v0
                s_lshl_b32 s3, s{sW}, 13
                v_add_u32 v10, s3, v10
                buffer_load_dword v15, v10, s[92:95], 0 offen
                s_mov_b32 s3, 0x8000
                buffer_load_dword v15, v10, s[92:95], s3 offen
                s_mov_b32 s3, 0x10000
                buffer_load_dword v15, v10, s[92:95], s3 offen
                """)
        e(f"""
        v_lshrrev_b32 v9, 2, v0
        v_mul_u32_u24 v{vXD}, 1152, v9
        v_lshrrev_b32 v9, 4, v0
        v_and_b32 v9, 2, v9
        v_xor_b32 v9, v9, v0
        v_and_b32 v9, 3, v9
        v_lshl_add_u32 v{vXD}, v9, 4, v{vXD}
        v_lshrrev_b32 v9, 5, v0
        v_lshlrev_b32 v9, 15, v9
        v_and_b32 v14, 31, v0
        v_lshl_add_u32 v9, v14, 4, v9
        s_lshl_b32 s3, s{sW}, 16
        v_add_u32 v{vWD}, s3, v9
        s_mul_i32 s{sXM0}, s{sW}, 10240
        s_add_u32 s{sXM0}, s{sXM0}, {XB[1]}
        s_mul_i32 s{sWM0}, s{sW}, 4352
        {f"s_lshl_b32 s3, s{sPI}, 3" if c.wq8 else ""}
        {f"s_add_u32 s{sWM0}, s{sWM0}, s3" if c.wq8 else ""}
        s_lshr_b32 s3, s{sW}, 1
        s_mul_i32 s3, s3, 144
        s_add_u32 s{sROW+4}, s3, 128
        s_mul_i32 s{sROW+4}, s{sROW+4}, 1152
        s_lshl_b32 s{sT}, s{sPI}, 6
        s_add_u32 s3, s3, s{sT}
        """)
        for j in range(4):
            e(f"s_xor_b32 s{sT}, s{sKQ}, {j}", f"s_lshl_b32 s{sT}, s{sT}, 4", f"s_add_u32 s{sT}, s{sT}, s3",
              f"s_mul_i32 s{sROW+j}, s{sT}, 1152")
        e(f"s_mov_b32 s{sXK}, 0", f"s_mov_b32 s{sWK}, 0")
        e(f"""
        s_waitcnt lgkmcnt(0)
        {"s_memrealtime s[90:91]" if c.stamp0 else ""}
        s_cmp_eq_u32 s{sBR}, 0
        s_cselect_b64 s[{SX}:{SX+1}], s[64:65], s[74:75]
        s_cselect_b64 s[{SWQ}:{SWQ+1}], s[70:71], s[80:81]
        s_mul_i32 s3, s{sB}, 331776
        s_add_u32 s{SX}, s{SX}, s3
        s_addc_u32 s{SX+1}, s{SX+1}, 0
        s_mov_b32 s{SX+2}, 331776
        s_mov_b32 s{SX+3}, 0x20000
        s_lshl_b32 s{sT}, s{sKQ}, 2
        s_add_u32 s{sT}, s{sT}, s{sHP}
        s_lshl_b32 s3, s{sT}, 9
        s_add_u32 s{SWQ}, s{SWQ}, s3
        s_addc_u32 s{SWQ+1}, s{SWQ+1}, 0
        s_sub_u32 s{SWQ+2}, {576*8192}, s3
        s_mov_b32 s{SWQ+3}, 0x20000
        """)

    def setup2(self):
        e = self.e; c = self.c
        cc = f2u(math.log2(math.e) / math.sqrt(128.0))
        e(f"""
        s_cmp_eq_u32 s{sBR}, 0
        s_cselect_b64 s[{SK}:{SK+1}], s[66:67], s[76:77]
        s_cselect_b64 s[{SV}:{SV+1}], s[68:69], s[78:79]
        s_cselect_b64 s[{SWO}:{SWO+1}], s[72:73], s[82:83]
        s_mul_i32 s{sKVW}, s{sW}, 4224
        v_lshrrev_b32 v9, 2, v0
        v_and_b32 v9, 2, v9
        v_lshrrev_b32 v14, 4, v0
        v_xor_b32 v9, v9, v14
        v_and_b32 v14, 15, v0
        v_lshl_add_u32 v9, v14, 2, v9
        v_lshlrev_b32 v9, 4, v9
        v_add_u32 v{vXR}, s{sXM0}, v9
        v_lshrrev_b32 v9, 2, v0
        v_mul_u32_u24 v9, 1088, v9
        v_and_b32 v14, 3, v0
        v_lshl_add_u32 v9, v14, 4, v9
        {"v_bfe_u32 v14, v0, 4, 1" if c.wq8 else ""}
        {"v_lshl_add_u32 v9, v14, 3, v9" if c.wq8 else ""}
        s_lshl_b32 s3, s{sPI}, 8
        v_add_u32 v{vWR0}, s3, v9
        s_xor_b32 s3, s3, 256
        v_add_u32 v{vWR1}, s3, v9
        s_lshl_b32 s3, s{sW}, 12
        v_lshlrev_b32 v9, 4, v0
        v_add_u32 v{vDMA}, s3, v9
        s_mov_b32 s{sC}, {cc:#x}
        s_mov_b32 s{sC+1}, {cc:#x}
        s_mov_b32 s{sTHR}, {f2u(c.thr):#x}
        s_mul_i32 s{sH}, s{sPI}, {-2*HALF}
        s_add_u32 s{sH}, s{sH}, {HALF}
        s_sub_u32 s{sDA}, {PITCH}, s{sH}
        s_sub_u32 s{sDB}, {-3*PITCH}, s{sH}
        s_lshl_b32 s{sT}, s{sKQ}, 2
        s_add_u32 s{sT}, s{sT}, s{sHP}
        s_lshl_b32 s3, s{sB}, 4
        s_add_u32 s{sT}, s{sT}, s3
        s_lshl_b32 s3, s{sT}, 19
        {"s_mov_b32 s3, 0" if self.c.kv_same else ""}
        s_add_u32 s{SK}, s{SK}, s3
        s_addc_u32 s{SK+1}, s{SK+1}, 0
        s_mov_b32 s{SK+2}, 524288
        s_mov_b32 s{SK+3}, 0x20000
        s_add_u32 s{SV}, s{SV}, s3
        s_addc_u32 s{SV+1}, s{SV+1}, 0
        s_mov_b32 s{SV+2}, 524288
        s_mov_b32 s{SV+3}, 0x20000
        s_mov_b32 s{SWO+2}, {4096*1152}
        s_mov_b32 s{SWO+3}, 0x20000
        s_mov_b32 s{SOUT}, s84
        s_mov_b32 s{SOUT+1}, s85
        s_mov_b32 s{SOUT+2}, {8*288*1152*2}
        s_mov_b32 s{SOUT+3}, 0x20000
        s_mov_b32 s{SDBG}, s86
        s_mov_b32 s{SDBG+1}, s87
        s_mov_b32 s{SDBG+2}, 256
        s_mov_b32 s{SDBG+3}, 0x20000
        s_add_u32 s{SWS}, s88, {self.c.ws_off}
        s_addc_u32 s{SWS+1}, s89, 0
        s_mov_b32 s{SWS+2}, {WS_BYTES - self.c.ws_off}
        s_mov_b32 s{SWS+3}, 0x20000
        s_lshl_b32 s3, s{sBR}, 7
        s_add_u32 s{sT}, s{sT}, s3
        s_mul_i32 s{sOB}, s{sT}, 147456
        s_lshr_b32 s3, s{sW}, 1
        s_mul_i32 s3, s3, 36864
        s_add_u32 s{sOB}, s{sOB}, s3
        s_add_u32 s{sOS}, s{sOB}, 32768
        s_lshl_b32 s3, s{sPI}, 14
        s_add_u32 s{sOB}, s{sOB}, s3
        s_mov_b32 s{sCT}, s{sD}
        s_lshl_b32 s3, s2, 2
        s_add_u32 s3, s3, s{sW}
        s_lshl_b32 s3, s3, 8
        s_add_u32 s{sSTO}, s3, {WS_STAMP}
        s_mov_b32 s{sREDO}, 0
        s_mul_i32 s3, s{sHP}, 288
        s_add_u32 s{SWO}, s{SWO}, s3
        s_addc_u32 s{SWO+1}, s{SWO+1}, 0
        s_sub_u32 s{SWO+2}, s{SWO+2}, s3
        s_lshl_b32 s{sFL}, s2, 7
        s_add_u32 s{sFL}, s{sFL}, {WS_FLAG}
        s_mul_i32 s{sOM0}, s{sW}, 9216
        s_mul_i32 s{sT2}, s{sW}, {32*1152}
        s_mul_i32 s3, s{sKQ}, {1024*1152}
        s_add_u32 s{sT2}, s{sT2}, s3
        """)
        for p in range(2):
            e(f"s_xor_b32 s3, s{sHP}, {p}", f"s_mul_i32 s{sT}, s3, {256*1152}", f"s_add_u32 s{sWR+p}, s{sT}, s{sT2}")
        for p in range(1, 4): e(f"s_xor_b32 s{sFQ+p-1}, s{sFL}, {p << 7}")
        e(f"""
        s_lshr_b32 s3, s2, 3
        s_lshl_b32 s{sT}, s{sBR}, 5
        s_add_u32 s3, s3, s{sT}
        s_mul_i32 s{sPB}, s3, {64*5120}
        s_mul_i32 s{sT}, s{sW}, 5120
        s_add_u32 s{sPB}, s{sPB}, s{sT}
        s_add_u32 s{sPB}, s{sPB}, {WS_PART}
        """)
        for t in range(9):
            e(f"v_add_u32 v9, {64*t}, v0", "v_mul_u32_u24 v9, 3641, v9", "v_lshrrev_b32 v9, 16, v9",
              "v_mul_u32_u24 v9, 864, v9", "v_lshl_add_u32 v9, v0, 4, v9")
            if t >= 4: e(f"v_add_u32 v9, {1024*(t - t % 4)}, v9")
            e(f"v_accvgpr_write_b32 a{240+t}, v9")
        e("v_and_b32 v9, 15, v0", "v_cmp_eq_u32 vcc, 0, v9", "v_mov_b32 v9, 0x3f803f80", "s_nop 0", "v_cndmask_b32 v9, 0, v9, vcc")
        for r in range(4): e(f"v_accvgpr_write_b32 a{aONE+r}, v9")
        if self.c.stop_after != "A":
            e("v_mov_b32 v9, 0", "v_and_b32 v10, 7, v0", "v_lshlrev_b32 v10, 2, v10",
              I(f"buffer_store_dword v9, v10, {srd(SWS)}, s{sFL} offen sc1", id=("flclr",)))
        self.kv_addr_init()

    def dbg_off(self, d):
        self.e(f"s_lshl_b32 s3, s{sBR}, 3", f"s_add_u32 s3, s3, s{sB}", f"s_lshl_b32 s{d}, s3, 4")

    def announce_cleared(self):
        e = self.e
        e(f"s_cmp_lg_u32 s{sW}, 0", "s_cbranch_scc1 L_ann")
        self.dbg_off(3)
        e("v_mov_b32 v11, 1", "v_lshlrev_b32 v10, 8, v0")
        self.raw([I(f"buffer_atomic_add v11, v10, {srd(SDBG)}, s3 offen sc1")])
        e("L_ann:")

    def publish(self, val):
        lab = f"L_pub{val}"
        return [I(f"s_cmp_lg_u32 s{sW}, 0"), I(f"s_cbranch_scc1 {lab}"), I(f"v_accvgpr_write_b32 a255, {val}"),
                I(f"buffer_store_dword a255, off, {srd(SWS)}, s{sFL} sc1", k="x"), I(f"{lab}:")]

    def spin(self, name, load, test):
        self.tailcode += [I(f"L_sp_{name}:"), I(f"s_mov_b32 s{sSPIN}, 0x40000"), I(f"L_spl_{name}:"), I("s_sleep 1")]
        self.tailcode += [I(x) for x in load] + [I("s_waitcnt vmcnt(0)")] + [I(x) for x in test]
        self.tailcode += [I(f"s_cbranch_scc1 L_sb_{name}"), I(f"s_sub_u32 s{sSPIN}, s{sSPIN}, 1"), I(f"s_cmp_lg_u32 s{sSPIN}, 0"),
                          I(f"s_cbranch_scc1 L_spl_{name}"), I(f"s_branch L_sb_{name}")]

    def kv_addr_init(self):
        e = self.e
        e(f"""
        v_and_b32 v9, 7, v0
        v_mul_u32_u24 v9, 1056, v9
        v_and_b32 v14, 8, v0
        v_lshl_add_u32 v9, v14, 5, v9
        v_and_b32 v14, 48, v0
        s_mul_i32 s3, s{sPI}, {HALF}
        v_add3_u32 v{vKA}, v9, v14, s3
        v_bfe_u32 v9, v0, 2, 3
        v_mul_u32_u24 v9, 1056, v9
        v_and_b32 v14, 32, v0
        v_lshl_add_u32 v9, v14, 3, v9
        v_and_b32 v14, 3, v0
        v_lshl_add_u32 v9, v14, 3, v9
        s_add_u32 s3, s3, {VBASE}
        v_add_u32 v{vVA}, s3, v9
        """)

    def dma_wq(self, i):
        slot = (i + 2) % 4
        ops = []
        for r in range(4):
            pre = [I(f"s_add_u32 m0, s{sWM0}, {slot*PITCH + r*1088}")]
            vm = I(f"buffer_load_dwordx4 v{vWD}, {srd(SWQ)}, s{sWK} offen {self.c.wq_flags} lds", id=("wq", i, r))
            ops.append((pre, [], vm, [I(f"s_add_u32 s{sWK}, s{sWK}, {8192 if r < 3 else 29*8192}")]))
        return ops
    def dma_x(self, st, js):
        boff = 0 if st == 1 else XB[0] - XB[1]
        ops = []
        for j in js:
            prev = st - (2 if st == 2 else 1)
            needs = [("xr", 2*prev, j), ("xr", 2*prev + 1, j)] if st >= 2 else []
            ops.append(([I(f"s_add_u32 m0, s{sXM0}, {boff + j*2048}")], [I(f"s_add_u32 s{sT2}, s{sROW+j}, s{sXK}")],
                        I(f"buffer_load_dwordx4 v{vXD}, {srd(SX)}, s{sT2} offen {self.c.x_flags} lds", id=("x", 2*st, j), needs=needs), []))
            post = [I(f"s_add_u32 s{sXK}, s{sXK}, 128")] if j == 4 else []
            ops.append(([I(f"s_add_u32 m0, s{sXM0}, {boff + j*2048 + 1024 - 64}")], [],
                        I(f"buffer_load_dwordx4 v{vXD}, {srd(SX)}, s{sT2} offen offset:64 {self.c.x_flags} lds", id=("x", 2*st+1, j)), post))
        return ops
    def dma_kv_static(self, which, M):
        base = (M % 4) * PITCH + (VBASE if which == "V" else 0)
        ops = []
        for i in range(4):
            same = [I(f"s_mov_b32 s{sCUR}, {M*16384}")] if i == 0 else []
            ops.append(([I(f"s_add_u32 m0, s{sKVW}, {base + 32*i}")], same,
                        I(f"buffer_load_dwordx4 v{vDMA}, {srd(SK if which == 'K' else SV)}, s{sCUR} offen offset:{i*1024} {self.c.kv_flags} lds", id=(which, M, i)), []))
        return ops
    def emit_dma_straight(self, ops):
        for pre, same, vm, post in ops:
            self.e(*pre)
            self.e(*(same or [I("s_nop 0")]))
            self.e(vm, *post)

    def qacc(self, tp, j):
        idn = tp * 4 + j if j < 4 else 64 + tp
        return ("v", 16 + 4 * idn) if idn < 60 else ("a", 160 + 4 * (idn - 60))

    def phase_q(self):
        e = self.e
        NR = 8
        aB, aA = 0, 80
        first = self.dma_wq(0) + self.dma_x(0, range(5)) + self.dma_wq(1) + self.dma_x(1, range(5)) + self.dma_wq(2) + self.dma_wq(3)
        self.emit_dma_straight(first[:self.c.n0])
        if self.c.stamp0: e("s_memrealtime s[92:93]", "s_waitcnt lgkmcnt(0)")
        self.setup2()
        self.emit_dma_straight(first[self.c.n0:self.c.nfirst])
        if self.c.stamps:
            self.nstamp = 1
            e("v_mov_b32 v15, s96", f"buffer_store_dword v15, off, {srd(SWS)}, s{sSTO}", "v_mov_b32 v15, s98", f"buffer_store_dword v15, off, {srd(SWS)}, s{sSTO} offset:4")
            if self.c.stamp0:
                self.nstamp = 3
                e("; s_memtime s_memtime", "v_mov_b32 v15, s90", f"buffer_store_dword v15, off, {srd(SWS)}, s{sSTO} offset:12", "v_mov_b32 v15, s92", f"buffer_store_dword v15, off, {srd(SWS)}, s{sSTO} offset:20")
        self.stamp()
        ms = []; start = {}; last = {}
        for i in range(18):
            for tp in range(16):
                f = 16 * i + tp
                start[f] = len(ms)
                for j in range(5 if tp < 8 else 4):
                    ms.append(I(mfma(self.qacc(tp, j), ("a", aA + 4 * (f % NR)), ("a", aB + 20 * (i % 4) + 4 * j), 0 if i == 0 else None),
                                needs=[("ar", f, 0), ("ar", f, 1), ("xr", i, j)]))
                last[f] = len(ms) - 1
        G = Gaps(ms)
        pre = []
        def aread(f, v):
            i, tp = divmod(f, 16)
            t = tp % 8
            off = ((i + 2) % 4) * PITCH + 512 * v + 64 * (t >> 1) + 8 * (t & 1)
            return I(f"ds_read_b64_tr_b16 {R('a', aA + 4*(f % NR) + 2*v, 2)}, v{vWR0 if tp < 8 else vWR1} offset:{off}", id=("ar", f, v))
        def xread(i, j):
            off = (0 if i // 2 == 1 else XB[0] - XB[1]) + 1024 * (i % 2) + 2048 * j
            return I(f"ds_read_b128 {R('a', aB + 20*(i % 4) + 4*j, 4)}, v{vXR} offset:{off}", id=("xr", i, j), needs=[("x", i, j)])
        for j in range(5): pre.append(xread(0, j))
        pre.append(I("s_barrier", needs=[("wq", 0, r) for r in range(4)]))
        if self.c.stamp0: pre += self.stamp_ins()
        for i in range(18):
            for tp in range(16):
                for v in range(2):
                    f = 16 * i + tp
                    g = 72 * i - 13 + ((2 * tp + v) * 58) // 32
                    if g % 72 == 71: g -= 1
                    if g < 0: pre.append(aread(f, v)); continue
                    assert g <= start[f] - 8
                    assert f < NR or g >= last[f - NR], (f, g)
                    assert not G.mem[g]
                    G.mem[g].append(aread(f, v))
        def free(g):
            while G.mem[g] or g % 72 == 71: g += 1
            return g
        for j in range(5): G.mem[free(46 + 2*j if not self.c.nx0 else j)].append(xread(1, j))
        tim = [(2 + 2*k, o) for k, o in enumerate(first[self.c.nfirst:])]
        assert self.c.nfirst >= 18
        for st in range(8):
            for j in range(5):
                g = 144*st + (8 + 26*j if st else 108 + 5*j)
                for i in (2*st + 2, 2*st + 3):
                    g = free(g); G.mem[g].append(xread(i, j))
                if st + 2 <= 8:
                    o = self.dma_x(st + 2, [j])
                    t = g + 8 if st else (66 + 12*j if not self.c.nx0 else 24 + 25*j)
                    tim += [(t, o[0]), (t + 3, o[1])]
        for i in range(18):
            g = 72 * i + 56
            G.waitneeds[g] += [("ar", 16 * i + 15, 1)]
            if i < 17:
                G.waitneeds[g] += [("wq", i + 1, r) for r in range(4)]
                G.waitneeds[g + 14] += ms[72 * (i + 1)].needs
            G.sal[g + 1].append(I("s_barrier"))
            if i in ((0, 3, 8) if not self.c.loop_q else (0, 1, 14)): self.stamp_gap(G, g + 1)
            if i + 4 < 18: tim += [(g + 4 + 16*r, o) for r, o in enumerate(self.dma_wq(i + 4))]
            if 2 <= i < 14:
                M, p = divmod(i - 2, 4)
                post = [I(f"s_add_u32 s{sM0}, s{sM0}, {PITCH}"), I(f"s_add_u32 s{sOFF}, s{sOFF}, 16384")] if p == 3 else []
                tim += [(g + 8, ([I(f"s_add_u32 m0, s{sM0}, {32*p}")], [],
                                  I(f"buffer_load_dwordx4 v{vDMA}, {srd(SV)}, s{sOFF} offen offset:{p*1024} {self.c.kv_flags} lds", id=("V", M, p)), post))]
            us = sum([self.dma_kv_static(u[0], int(u[1])) for u in self.c.fill.get(i + 1, "").split()], [])
            tim += [(g + 4 + (k * (64 if i < 17 else 12)) // len(us), o) for k, o in enumerate(us)]
        tim.sort(key=lambda t: t[0])
        seq = []; g = -1; pend = []
        for t, (p, same, vm, post) in tim:
            prev = g
            g = free(max(t, g + (3 if g > 58 else 2)))
            G.mem[g].append(vm)
            for x in pend: seq.append((x, prev + 1, g - 1))
            if self.c.loop_q and prev % 288 < 144 <= g % 288 and 288 < g < 1200:
                seq.append((I(f"s_cmp_lg_u32 s{sXK}, {9*128}"), prev + 1, (g // 144) * 144 - 2))
                prev = (g // 144) * 144 - 1
            for x in p: seq.append((x, max(prev + 1, g - 2), g - 1))
            for x in same: seq.append((x, g - 1, g))
            pend = post
        assert not pend
        e(f"s_add_u32 s{sM0}, s{sKVW}, {VBASE}", f"s_mov_b32 s{sOFF}, 0")
        if self.c.retouch and self.c.code_prefetch:
            g = 72 * 14 + 44
            G.val[g] += [I(f"s_mov_b32 s{SX}, s100"), I(f"s_mov_b32 s{SX+1}, s101")]
            G.val[g + 1] += [I(f"s_mov_b32 s{SX+2}, L_end-L_pc")]
            self.code_touch(G, g + 2, "L_qepi", 10, 11, ("ct", 0))
        self.e(*pre)
        pre2 = []
        G.place_waits(self.ws, pre2)
        if self.c.loop_q: G.unify_waits([144, 432, 720], 288)
        G.place_salu(seq)
        self.raw(pre2)
        if self.c.loop_q:
            w = [[x.t for x in G.flat(a, a + 288)] for a in (144, 432, 720)]
            assert w[0] == w[1] == w[2], [(x, y, z) for x, y, z in zip(*w) if not x == y == z][:5]
            body = G.flat(144, 432)
            assert body[-1].k == "m" and G.flat(0, 144)[-1].k == "m"
            self.raw(G.flat(0, 144) + [I("s_branch L_qloop"), I(".p2align 6"), I("L_qloop:")] + body + [I("s_cbranch_scc1 L_qloop")] + G.flat(1008))
            self.checks.append(("qloop", body + body))
        else:
            self.raw(G.flat())
        print("phase Q est cycles", G.cost(), file=sys.stderr)
        e("L_qepi:")
        self.stamp()
        def pack(src0, src1, tmp):
            o = []
            for k, (kind, b) in enumerate((src0, src1)):
                if kind == "a":
                    for r in range(4): o.append(f"v_accvgpr_read_b32 v{12+r}, a{b+r}")
                    b = 12
                o.append(f"v_pk_mul_f32 v[{b}:{b+1}], v[{b}:{b+1}], s[{sC}:{sC+1}]")
                o.append(f"v_pk_mul_f32 v[{b+2}:{b+3}], v[{b+2}:{b+3}], s[{sC}:{sC+1}]")
                o.append(f"v_cvt_pk_bf16_f32 v{tmp+2*k}, v{b}, v{b+1}")
                o.append(f"v_cvt_pk_bf16_f32 v{tmp+2*k+1}, v{b+2}, v{b+3}")
            return o
        e(f"v_add_u32 v9, {SCR}, v{vDMA}")
        for s in range(4):
            e(*pack(self.qacc(2*s, 4), self.qacc(2*s+1, 4), 4))
            e(I(f"ds_write_b128 v9, v[4:7] offset:{s*1024}", id=("qsw", s)))
        e(f"s_cmp_eq_u32 s{sPI}, 1", "s_cbranch_scc1 L_qe1")
        done = " ".join(self.c.fill.values()).split()
        st = (dict((k, list(v)) for k, v in self.ws.q.items()), dict(self.ws.done), dict(self.ws.pos))
        for pi in range(2):
            if pi == 1:
                e("L_qe1:")
                self.ws.q, self.ws.done, self.ws.pos = st
            rest = sum([self.dma_kv_static(u[0], int(u[1])) for u in "K0 K1 K2 V3 K3".split() if u not in done], [])
            nrest = len(rest); cnt = 0
            for hh in range(2):
                h = hh ^ pi
                for j in range(4):
                    for s in range(4):
                        t0 = self.qacc(8*hh + 2*s, j); t1 = self.qacc(8*hh + 2*s + 1, j)
                        assert t0[0] == "v"
                        e(*pack(t0, t1, t0[1]))
                        cnt += 1
                        d = rest.pop(0) if (rest and (nrest - len(rest)) * 32 < cnt * nrest) else None
                        if d: e(*d[0], *d[1])
                        for r in range(4): e(f"v_accvgpr_write_b32 a{aQ[h] + (j*4+s)*4 + r}, v{t0[1]+r}")
                        if d: e(d[2])
            assert not rest
            if pi == 0: e("s_branch L_qe2")
        e("L_qe2:")
        self.stamp()
        e(I("s_barrier", needs=[("qsw", 3)] + [(k, 0, i) for k in "KV" for i in range(4)]))
        if self.c.stop_after != "A": self.announce_cleared()
        e(f"s_lshl_b32 s3, s{sPI}, 12", "v_subrev_u32 v9, s3, v9")
        for h in range(2):
            for s in range(4):
                e(I(f"ds_read_b128 {R('a', aQ[h] + (16+s)*4, 4)}, v9 offset:{h*4096 + s*1024}", id=("qsr", h, s)))
        for j in range(5): e(f"v_mov_b32 v{vNM+4*j}, 0xff800000")

    def attn_mfmas(self, h, nwin, first=True, lastw=True):
        ms = []; cstart = {}; cend = {}; pv = {}; wstart = []
        tcount = [0]; sslot = {}
        def chain(n, T, j):
            sl = tcount[0] % NS; tcount[0] += 1
            sslot[(n, T, j)] = sl
            cstart[(n, T, j)] = len(ms)
            for s in range(4):
                ms.append(I(mfma(("v", vS + 4*sl), ("a", aK + 16*T + 4*s), ("a", aQ[h] + (j*4+s)*4), ("v", vNM + 4*j) if s == 0 else None),
                            needs=[("kr", h, n, T, s)]))
            cend[(n, T, j)] = len(ms) - 1
        def pvm(n, dt, j):
            f = 8*n + dt
            pv[(n, dt, j)] = len(ms)
            ms.append(I(mfma(("v", vO + (j*8+dt)*4), ("a", aV + 4*(f % NV)), ("v", vP[n % 2] + 4*j), 0 if (n == 0 and first) else None),
                        needs=[("vr", h, f, 0), ("vr", h, f, 1)]))
        def onem(n, j):
            ms.append(I(mfma(("a", aL + 4*j), ("a", aONE), ("v", vP[n % 2] + 4*j), 0 if (n == 0 and first) else None)))
        for m in range(nwin):
            wstart.append(len(ms))
            for c in range(8):
                chain(2*m+1, c >> 2, c & 3)
                for j in range(5): pvm(2*m, c, j)
                if c - 2 in self.c.ones: onem(2*m, c - 2)
            lst = [(dt, j) for dt in range(8) for j in range(4)]
            cnt = self.c.cnt
            for c in range(10):
                if not (lastw and m == nwin - 1): chain(2*m+2, c // 5, c % 5)
                for _ in range(cnt[c]):
                    dt, j = lst.pop(0); pvm(2*m+1, dt, j)
                for j in range(4):
                    if self.c.onepos[j] == c and j in self.c.ones: onem(2*m+1, j)
        wstart.append(len(ms))
        return ms, cstart, cend, pv, sslot, wstart

    def code_touch(self, G, g, lab, vt, vd, idn):
        if not (self.c.retouch and self.c.code_prefetch): return
        if self.c.cp_split:
            G.val[g] += [I(f"v_lshrrev_b32 v{vt}, 3, v0")]
            G.val[g + 1] += [I(f"v_lshlrev_b32 v{vt}, 24, v{vt}")]
            G.val[g + 2] += [I(f"v_lshl_add_u32 v{vt}, v0, 7, v{vt}")]
            G.val[g + 3] += [I(f"v_mov_b32 v{vd}, s{sCT}")]
            G.val[g + 4] += [I(f"v_lshl_add_u32 v{vt}, v{vd}, 10, v{vt}"), I(f"s_mov_b32 s{sWK}, {lab}-L_pc")]
        else:
            G.val[g] += [I(f"v_lshlrev_b32 v{vt}, 3, v{vDMA}")]
            G.val[g + 1] += [I(f"v_and_b32 v{vd}, 0x1f80, v{vt}")]
            G.val[g + 2] += [I(f"v_lshrrev_b32 v{vt}, 2, v{vt}")]
            G.val[g + 3] += [I(f"v_and_b32 v{vt}, 0x6000, v{vt}")]
            G.val[g + 4] += [I(f"v_or_b32 v{vt}, v{vt}, v{vd}"), I(f"s_mov_b32 s{sWK}, {lab}-L_pc")]
        g += 6
        while G.mem[g]: g += 1
        G.mem[g].append(I(f"buffer_load_dword v{vd}, v{vt}, {srd(SX)}, s{sWK} offen", id=idn))

    def o_stores(self, h, vaddr):
        ops = []
        for j in range(4):
            for s in range(4):
                src = R("a", (j*4+s)*4, 4) if h == 0 else R("v", 16 + (j*4+s)*4, 4)
                ops.append(([], [], I(f"buffer_store_dwordx4 {src}, v{vaddr}, {srd(SWS)}, s{90+j} offen offset:{s*1024} {self.c.o_flags}", id=("os", h, j, s)), []))
        return ops

    def kread(self, h, n, T, s):
        return I(f"ds_read_b128 {R('a', aK + 16*T + 4*s, 4)}, v{vKA} offset:{512*T + 64*s}", id=("kr", h, n, T, s))
    def vread(self, h, f, v):
        return I(f"ds_read_b64_tr_b16 {R('a', aV + 4*(f % NV) + 2*v, 2)}, v{vVA} offset:{512*v + 32*(f % 8)}", id=("vr", h, f, v))

    def attn_schedule(self):
        NW = 8
        ms, cstart, cend, pv, sslot, wstart = self.attn_mfmas(0, NW, first=False, lastw=False)
        n = len(ms)
        mem = {}
        def put(g, key):
            while g in mem: g += 1
            mem[g] = key; return g
        rel = {}
        W = self.W = wstart[1]
        cs = lambda dn, T, j: cstart[(2 + dn, T, j)] - W
        bar = rel["bar"] = cs(1, 1, 0) + 3
        bodyo = rel["bodyo"] = cs(2, 0, 0)
        for i in range(4): rel[("dK", i)] = put(bar + self.c.kpos[0] + i * self.c.kpos[1], 1)
        for i in range(4): rel[("dV", i)] = put(self.c.vpos[0] + i * self.c.vpos[1], 1)
        first = {f: pv[(2 + f // 8, f % 8, 0)] - W for f in range(-4, 16)}
        lastu = {f: pv[(2 + f // 8, f % 8, 4 if (f // 8) % 2 == 0 else 3)] - W for f in range(-4, 16)}
        for f in range(16):
            g = max(first[f - 2], lastu[f - 4] + 1)
            for v in range(2):
                gg = g % W
                g2 = put(gg, 1)
                rel[("vr", f, v)] = g + (g2 - gg)
                g = rel[("vr", f, v)] + 2
                assert rel[("vr", f, v)] <= first[f] - 7, (f, v, rel[("vr", f, v)], first[f])
        for (dn, T), g0 in (((1, 1), 1), ((2, 0), bar + 3), ((2, 1), bodyo + 1), ((3, 0), cs(2, 1, 0) + 1)):
            for s in range(4):
                rel[("kr", dn, T, s)] = put(g0 + 6 * s, 1)
                assert rel[("kr", dn, T, s)] <= cs(dn, T, 0) + s - 7
        rel["barv"] = rel[("vr", 0, 0)] + W - 2
        assert rel["barv"] - rel[("vr", 15, 1)] >= 5 and rel[("dV", 3)] < bar
        rel[("ka", 0)] = rel[("kr", 1, 1, 3)] + 1
        rel[("ka", 1)] = rel[("kr", 2, 1, 3)] + 1
        rel[("va", 0)] = rel[("vr", 7, 1)]
        rel[("va", 1)] = rel[("vr", 15, 1)]
        assert rel[("vr", 8, 0)] > rel[("va", 0)] and rel[("vr", 0, 0)] + W > rel[("va", 1)]
        used = [0] * W
        for k, g in rel.items():
            if isinstance(k, str): continue
            used[g % W] += 2 if k[0] in ("dK", "dV") else 1
        used[W - 1] += 2
        tiles = sorted(cend, key=lambda t: cend[t])
        place = {}
        eq = []
        sm = []
        ti = 0
        for g in range(n):
            while ti < len(tiles) and cend[tiles[ti]] + self.c.edelay <= g:
                eq += [(tiles[ti], r) for r in range(4)]; ti += 1
            u = used[g % W]
            rdy = [x for x in sm if x[1] <= g]
            backlog = 3.5 * len(eq) + len(sm)
            budget = 3 if (backlog > self.c.backlog and g % W != W - 1) else 2
            def take_small():
                rdy.sort(); x = rdy.pop(0); sm.remove(x); place[x[2]] = g
            def take_e():
                t, r = eq.pop(0); place[("e", t, r)] = g
                if t[2] not in self.c.ones: sm.append(((cend[t], 1, r), g + 1, ("a", t, r)))
                if r % 2: sm.append(((cend[t], 0, r), g + 1, ("c", t, r // 2)))
            if u == 0 and eq and len(rdy) < 4:
                take_e(); u += 2
            elif u == 1 and budget == 3 and eq and len(rdy) < 2:
                take_e(); u += 2
            while u < budget and rdy:
                take_small(); u += 1
        def wrel(m):
            d = {}
            for k, g in place.items():
                nn, T, j = k[1]
                if nn in (2*m+1, 2*m+2): d[(k[0], nn - 2*m, T, j, k[2])] = g - W * m
            return d
        a, b = wrel(4), wrel(5)
        assert a == b, "VALU schedule not periodic"
        rel.update(a)
        self.rel = rel

    def head(self, h):
        e = self.e; rel = self.rel; c = self.c; W = self.W
        nloop_end = 13 if h == 1 else 15
        nloop_start = 1
        e(f"L_head{h}:")
        e(f"s_mov_b32 s{sOFF}, {(16*h+4)*16384}", f"s_mov_b32 s{sKO}, {(16*h+4)*16384}", f"s_mov_b32 s{sWIN}, 0",
          f"s_mov_b32 s{sD}, s{sDA}", f"s_add_u32 s{sDUM}, s{sKVW}, {SCR}", f"s_add_u32 s{sM0}, s{sKVW}, {VBASE}",
          f"s_lshr_b32 s{sT}, s{sG}, 3", f"s_and_b32 s3, s{sT}, {c.stag[0]}", f"s_lshl_b32 s{sXK}, {c.kmask[h]}, s3",
          f"s_xor_b32 s3, s{sT}, 2", f"s_and_b32 s3, s3, {c.stag[1]}", f"s_lshl_b32 s{sXM0}, {c.vmask[h]}, s3")
        assert max(c.kmask[h] << c.stag[0], c.vmask[h] << c.stag[1]) < 1 << nloop_end and c.kmask[h] and not (c.kmask[h] | c.vmask[h]) & 1
        unit = {}; nxt = {"dK": 16*h + 4, "dV": 16*h + 4}
        for m in range(16):
            for kind, mask in (("dV", c.vmask[h] | 1), ("dK", c.kmask[h])):
                if mask >> m & 1: unit[(kind, m)] = None if m else "x"
                elif nxt[kind] < 32: unit[(kind, m)] = nxt[kind]; nxt[kind] += 1
                else: unit[(kind, m)] = "x"; assert m >= nloop_end
        if h == 0:
            self.refill = [(k[1], u) for u in range(16, 20) for k in ("dK", "dV") if u >= nxt[k]]
        self.stamp()
        for T in range(2):
            for s in range(4): e(self.kread(h, 0, T, s))
        e(f"v_add_u32 v{vKA}, s{sH}, v{vKA}")
        tS = lambda T, j: vO + (j*2 + T) * 4
        refill = self.dma_kv_static(*self.refill[-1]) if h == 1 else []
        for j in range(5):
            for T in range(2):
                for s in range(4):
                    nd = [("kr", h, 0, T, s)] + ([("qsr", 1, 3)] if (h == 0 and j == 4) else [])
                    e(I(mfma(("v", tS(T, j)), ("a", aK + 16*T + 4*s), ("a", aQ[h] + (j*4+s)*4), 0 if s == 0 else None), needs=nd))
                    if refill and j in (1, 4) and T == 0:
                        if s == 0: e(*refill[0][0])
                        if s == 1: e(*refill[0][1], refill.pop(0)[2])
        ms, cstart, cend, pv, sslot, wstart = self.attn_mfmas(h, 16)
        G = Gaps(ms)
        early = []
        lastw = 15
        full, fcs, fce, fpv, _, _ = self.attn_mfmas(h, 16, lastw=False)
        dropped = set()
        for k, st in fcs.items():
            if k[0] == 32: dropped.update(range(st, st + 4))
        amap = []; a = -1
        for g in range(len(full)):
            if g not in dropped: a += 1
            amap.append(a)
        def at(m, g):
            p = W * m + g
            if p < 0: return None
            return amap[p]
        seq = []
        for m in range(-1, 16):
            items = []
            for k, g in rel.items():
                if isinstance(k, str): continue
                kind = k[0]
                if kind == "kr":
                    n = 2*m + k[1]
                    if n < 1 or n > 31: continue
                    items.append((g, "mem", self.kread(h, n, k[2], k[3])))
                elif kind == "vr":
                    if m < 0: continue
                    items.append((g, "mem", self.vread(h, 16*m + k[1], k[2])))
                elif kind in ("dK", "dV"):
                    if m < 0 or unit[(kind, m)] == "x": continue
                    i = k[1]; u = unit[(kind, m)]
                    items.append((g, "mem", I(f"buffer_load_dwordx4 v{vDMA}, {srd(SV if kind == 'dV' else SK)}, s{sCUR} offen offset:{i*1024} {c.kv_flags} lds",
                                              id=(kind[1], u, i) if u else None)))
                elif kind == "ka":
                    if m < 0 or (m == 15 and k[1] == 1): continue
                    items.append((g, "val", I(f"v_add_u32 v{vKA}, s{sD if k[1] == 0 else sH}, v{vKA}")))
                elif kind == "va":
                    if m < 0: continue
                    items.append((g, "val", I(f"v_add_u32 v{vVA}, s{sH if k[1] == 0 else sD}, v{vVA}")))
                else:
                    n = 2*m + k[1]
                    if n < 1 or n > 31: continue
                    T, j, r = k[2], k[3], k[4]
                    g_key = g
                    while n == 31 and kind != "a" and at(m, g) > pv[(n, 0, j)] - (2 if kind == "c" else 3): g -= 1
                    S = vS + 4 * sslot[(n, T, j)]
                    if kind == "e": x = I(f"v_exp_f32 v{S+r}, v{S+r}")
                    elif kind == "a": x = I(f"v_add_f32 v{vL+j}, v{vL+j}, v{S+r}")
                    else:
                        x = I(f"v_cvt_pk_bf16_f32 v{vP[n % 2] + 4*j + 2*T + r}, v{S+2*r}, v{S+2*r+1}")
                        assert at(m, g) <= pv[(n, 0, j)] - 2, ("late cvt", n, T, j)
                    x.key = (W*m + g_key, cend[(n, T, j)], {"e": 2, "c": 0, "a": 1}[kind], r)
                    nxt = [t for t in cstart if cstart[t] > cstart[(n, T, j)] and sslot[t] == sslot[(n, T, j)]]
                    if nxt: assert at(m, g) < min(cstart[t] for t in nxt), ("S slot reuse", n, T, j)
                    items.append((g, "val", x))
            items.sort(key=lambda t: t[0])
            for g, where, x in items:
                p = at(m, g)
                if p is None: early.append(x)
                else: getattr(G, where)[p].append(x)
            if m >= 0:
                M = 16*h + m
                g = at(m, rel["bar"])
                G.waitneeds[g] += [("kr", h, 2*m+1, 1, 3)]
                if M < 31: G.waitneeds[g] += [("K", M+1, i) for i in range(4)]
                G.sal[g + 1].append(I("s_barrier"))
                if m < 15:
                    gv = at(m, rel["barv"])
                    G.waitneeds[gv] += [("vr", h, 16*m + 15, 1)] + [("V", M+1, i) for i in range(4)]
                    G.sal[gv + 1].append(I("s_barrier"))
                if c.wtrace and not (h == 1 and m >= 13):
                    G.val[g + 1] += [I("s_memrealtime s[96:97]"), I(f"s_mov_b32 m0, s{sWIN}"), I("s_waitcnt lgkmcnt(0)"), I(f"v_writelane_b32 v{15 if h == 0 else 6}, s96, m0")]
                if h == 1 and m == c.touch_win and c.touch13 and c.stop_after != "A":
                    G.val[at(m, 2)] += [I("v_lshlrev_b32 v12, 7, v0")]
                    G.val[at(m, 3)] += [I("v_and_b32 v14, 0x380, v12")]
                    G.val[at(m, 5)] += [I("v_add_u32 v14, 0x2000, v14")]
                    for gg, va in ((at(m, c.touch_pos), 12), (at(m, c.touch_pos + 6), 14)):
                        while G.mem[gg]: gg += 1
                        G.mem[gg].append(I(f"buffer_load_dword v9, v{va}, {srd(SWQ)}, s{sT3} offen {c.touch_flags}", id=("touch", va)))
                def group(kind, sptr, smask, base, lo, first):
                    return [(I(t), lo, first - 1) for t in (
                        f"s_bfe_u32 s{sT}, s{sptr}, 0x2000e", f"s_mul_i32 s{sT}, s{sT}, {PITCH}", f"s_add_u32 s{sT}, s{sT}, s{base}",
                        f"s_bitcmp1_b32 s{smask}, s{sWIN}", f"s_cselect_b32 m0, s{sDUM}, s{sT}", f"s_cselect_b32 s{sCUR}, s{sTHR}, s{sptr}",
                        f"s_cselect_b32 s{sT}, 0, 0x4000", f"s_add_u32 s{sptr}, s{sptr}, s{sT}")]
                lo = at(m, 0)
                if unit[("dV", m)] != "x":
                    for i in range(1, 4):
                        seq.append((I("s_add_u32 m0, m0, 32"), at(m, rel[("dV", i - 1)]) + 1, at(m, rel[("dV", i)]) - 1))
                    lo = at(m, rel[("dV", 3)]) + 1
                if c.wtrace: lo = g + 2
                if unit[("dK", m)] != "x":
                    seq += group("dK", sKO, sXK, sKVW, lo, at(m, rel[("dK", 0)]))
                    for i in range(1, 4):
                        seq.append((I("s_add_u32 m0, m0, 32"), at(m, rel[("dK", i - 1)]) + 1, at(m, rel[("dK", i)]) - 1))
                    lo = at(m, rel[("dK", 3)]) + 1
                if h == 1 and m >= 14 and c.stop_after != "A":
                    assert len(c.ones) == 5
                    vt = [4, 5, 6, 7, 8, 9, 12, 14, 15]
                    if m == 14:
                        for t in range(9):
                            G.val[g + 2 + t].append(I(f"v_accvgpr_read_b32 v{vt[t]}, a{240+t}", needs=[] if t else ([("touch", 14)] if c.touch13 else []) + ([("ct", 2)] if c.retouch and c.code_prefetch else [])))
                        tim = [(at(m, c.wo_pos[0] + c.wo_pos[1] * k), o) for k, o in enumerate(self.dma_wo(0, vt))]
                    else:
                        tim = [(at(m, 2 + 4 * k), o) for k, o in enumerate(self.dma_wo(2, vt))]
                        tim += [(g + 4 + 6 * k, o) for k, o in enumerate(self.dma_wo(1, vt))]
                    gg = lo
                    for t, (p_, same, vm, post) in tim:
                        gg = max(gg + 2, t)
                        while G.mem[gg]: gg += 1
                        G.mem[gg].append(vm)
                        for x in p_: seq.append((x, gg - 1, gg - 1))
                        for x in same: seq.append((x, gg - 1, gg))
                    lo = gg + 1
                if m == 15: continue
                seq.append((I(f"s_add_u32 s{sWIN}, s{sWIN}, 1"), lo, at(m, W - 12)))
                if unit[("dV", m + 1)] != "x" or m < nloop_end: seq += group("dV", sOFF, sXM0, sM0, lo, at(m, W - 4))
                g1 = max(lo, at(m, rel[("va", 1)]) + 1)
                for t in (f"s_and_b32 s{sT}, s{sWIN}, 3", f"s_cmp_eq_u32 s{sT}, 3"): seq.append((I(t), lo, at(m, W - 3)))
                seq.append((I(f"s_cselect_b32 s{sD}, s{sDB}, s{sDA}"), g1, at(m, W - 2)))
                if nloop_start <= m < nloop_end:
                    seq.append((I(f"s_cmp_lg_u32 s{sWIN}, {nloop_end}"), g1, at(m, W - 2)))
        if h == 1:
            for k, o in enumerate(self.o_stores(0, 13)):
                gg = wstart[13] + c.o0_pos[0] + k * c.o0_pos[1]
                while G.mem[gg] or any(x.k == "e" for x in G.val[gg]): gg += 1
                G.mem[gg].append(o[2])
        if h == 0: self.code_touch(G, wstart[15] + 1, "L_hepi0", 10, 11, ("ct", 1))
        else: self.code_touch(G, wstart[13] + 1, "L_hepi1", 4, 5, ("ct", 2))
        e(*[x for x in early if x.k == "ds"])
        assert all(x.k == "ds" for x in early)
        tm = lambda j: vS + j
        tt = lambda j: vS + 8 + j
        for j in range(5):
            b = tS(0, j)
            e(f"v_max3_f32 v{tm(j)}, v{b}, v{b+1}, v{vNM+4*j}", f"v_max3_f32 v{tt(j)}, v{b+2}, v{b+3}, v{b+4}",
              f"v_max3_f32 v{tm(j)}, v{b+5}, v{b+6}, v{tm(j)}", f"v_max3_f32 v{tm(j)}, v{b+7}, v{tt(j)}, v{tm(j)}")
        self.xlane([tm(j) for j in range(5)], [tt(j) for j in range(5)], "v_max_f32")
        for j in range(5):
            for r in range(4): e(f"v_sub_f32 v{vNM+4*j+r}, 0, v{tm(j)}")
        for j in range(5):
            b = tS(0, j)
            for r in range(0, 8, 2): e(f"v_pk_add_f32 v[{b+r}:{b+r+1}], v[{b+r}:{b+r+1}], v[{vNM+4*j}:{vNM+4*j+1}]")
            dm = refill.pop(0) if (refill and j in (0, 4)) else None
            if dm: e(*dm[0])
            for r in range(8): e(f"v_exp_f32 v{b+r}, v{b+r}")
            if dm: e(dm[2])
        for j in range(5):
            b = tS(0, j)
            for r in range(4): e(f"v_cvt_pk_bf16_f32 v{vP[0]+4*j+r}, v{b+2*r}, v{b+2*r+1}")
            if j in c.ones: continue
            e(f"v_pk_add_f32 v[{b}:{b+1}], v[{b}:{b+1}], v[{b+2}:{b+3}]", f"v_pk_add_f32 v[{b+4}:{b+5}], v[{b+4}:{b+5}], v[{b+6}:{b+7}]",
              f"v_pk_add_f32 v[{b}:{b+1}], v[{b}:{b+1}], v[{b+4}:{b+5}]", f"v_add_f32 v{vL+j}, v{b}, v{b+1}")
        full_o = (h == 1 and c.stop_after != "A")
        if h == 1:
            e("v_lshlrev_b32 v13, 4, v0")
            for j in range(4): e(f"s_add_u32 s{90+j}, s{sOB}, {j*4096}")
            e(f"s_mul_i32 s3, s{sHP}, 288", f"s_sub_u32 s{SWQ}, s{SWO}, s3", f"s_subb_u32 s{SWQ+1}, s{SWO+1}, 0", f"s_add_u32 s{SWQ+2}, s{SWO+2}, s3",
              f"s_lshr_b32 s3, s{sG}, 3", f"s_lshl_b32 s{sT}, s{sKQ}, 5", f"s_add_u32 s3, s3, s{sT}",
              f"s_mul_i32 s3, s3, {32*1152}", f"s_mul_i32 s{sT}, s{sW}, {8*1152}", f"s_add_u32 s{sT3}, s3, s{sT}")
        if full_o:
            self.dbg_off(sWM0)
            dload = f"buffer_load_dword v11, off, {srd(SDBG)}, s{sWM0} sc1"
            e(I(dload, id=("dbgp",)))
        self.stamp()
        for g in range(len(ms)):
            G.val[g].sort(key=lambda x: x.key or (0, 0, 0, 0))
        if c.wtrace:
            g = wstart[16] - 3 if h == 0 else wstart[13] + 20
            G.val[g] += [I("v_lshlrev_b32 v7, 2, v0"), I(f"s_add_u32 s99, s{sSTO}, {0x100000 * (h + 1)}"), I(f"buffer_store_dword v{15 if h == 0 else 6}, v7, {srd(SWS)}, s99 offen", k="x")]
        if full_o:
            test = ["v_readfirstlane_b32 s3, v11", "s_cmp_ge_u32 s3, 16"]
            g = wstart[14] + 3
            G.val[g] += [I(test[0], needs=[("dbgp",)])]
            G.val[g + 9] += [I(test[1]), I("s_cbranch_scc0 L_sp_dbg"), I("L_sb_dbg:")]
            self.spin("dbg", [dload], test)
        pre = []
        G.place_waits(self.ws, pre)
        G.unify_waits([wstart[m] for m in range(nloop_start, nloop_end)], W)
        G.place_salu(seq)
        self.raw(pre)
        win = [[x.t for x in G.flat(wstart[m], wstart[m+1])] for m in range(16)]
        import re
        for m in range(nloop_start, nloop_end - 1):
            assert len(win[m]) == len(win[nloop_end - 1]), f"window {m} differs"
            for x, y in zip(win[m], win[nloop_end - 1]):
                if x == y: continue
                nx, ny = re.search(r"vmcnt\((\d+)\)", x), re.search(r"vmcnt\((\d+)\)", y)
                assert nx and ny and int(nx.group(1)) >= int(ny.group(1)) and re.sub(r"vmcnt\(\d+\)", "", x) == re.sub(r"vmcnt\(\d+\)", "", y), (m, x, y)
        print(f"head {h}: window est cycles", G.cost(wstart[1], wstart[2]), "instrs", len(win[1]), file=sys.stderr)
        self.raw(G.flat(0, wstart[nloop_start]))
        self.raw([I(f"s_branch L_loop{h}"), I(".p2align 6"), I(f"L_loop{h}:")])
        body = G.flat(wstart[nloop_end - 1], wstart[nloop_end])
        assert body[-1].k == "m", body[-3:]
        self.raw(body)
        self.raw([I(f"s_cbranch_scc1 L_loop{h}")])
        self.checks.append((f"loop{h}", body + body))
        self.raw(fix_hazards(G.flat(wstart[nloop_end], wstart[16])))
        e(f"L_hepi{h}:")
        self.stamp()
        self.head_epilogue(h)

    def xlane(self, xs, ts, op):
        e = self.e
        for sw in ("v_permlane32_swap_b32", "v_permlane16_swap_b32"):
            for x, t in zip(xs, ts): e(f"v_mov_b32 v{t}, v{x}")
            if len(xs) < 3: e("s_nop 1")
            for k, (x, t) in enumerate(zip(xs, ts)): e(f"{sw} v{t}, v{x}")
            for x, t in zip(xs, ts): e(f"{op} v{x}, v{x}, v{t}")

    def head_epilogue(self, h):
        e = self.e
        O = lambda j, dt: vO + (j*8 + dt) * 4
        if self.c.ones: e("s_nop 7")
        for j in sorted(self.c.ones, key=lambda j: (j + 1) % 5): e(f"v_accvgpr_read_b32 v{vL+j}, a{aL+4*j}")
        self.xlane([vL + j for j in range(5)], [vS + j for j in range(5)], "v_add_f32")
        ct = [("ct", 1)] if (h == 0 and self.c.retouch and self.c.code_prefetch) else []
        e(f"v_add_f32 v10, v{vL}, v{vL+1}", I(f"v_add_f32 v11, v{vL+2}, v{vL+3}", needs=ct),
          f"v_add_f32 v10, v10, v{vL+4}", "v_add_f32 v10, v10, v11",
          f"v_cmp_nge_f32 vcc, s{sTHR}, v10", "s_cmp_lg_u64 vcc, 0", f"s_cselect_b32 s3, 1, 0",
          f"v_mov_b32 v12, s3", f"s_lshl_b32 s3, s{sW}, 2", f"s_add_u32 s3, s3, {MISC + 2048}", "v_mov_b32 v13, s3",
          I("ds_write_b32 v13, v12", id=("fw", h)))
        e(f"v_add_u32 v9, {SCR}, v{vDMA}")
        e(f"v_xor_b32 v10, 4096, v{vDMA}", f"v_add_u32 v10, {SCR}, v10")
        e(f"v_lshrrev_b32 v11, 1, v{vDMA}", "v_and_b32 v11, 0x1f8, v11", f"s_lshl_b32 s3, s{sW}, 9", f"s_add_u32 s3, s3, {MISC}",
          "v_add_u32 v11, s3, v11", f"v_mov_b32 v12, v{vL+4}", f"v_mov_b32 v13, v{vNM+16}",
          I("ds_write_b64 v11, v[12:13]", id=("lw", h)), "v_xor_b32 v11, 512, v11")
        e(f"s_cmp_eq_u32 s{sPI}, 1", f"s_cbranch_scc1 L_he1_{h}")
        st = (dict((k, list(v)) for k, v in self.ws.q.items()), dict(self.ws.done), dict(self.ws.pos))
        for pi in range(2):
            if pi == 1:
                e(f"L_he1_{h}:")
                self.ws.q, self.ws.done, self.ws.pos = st
            for k in range(4):
                e(I(f"ds_write_b128 v10, {R('v', O(4, 4*(1-pi) + k), 4)} offset:{k*1024}", id=("ow", h, k)))
            if pi == 1:
                e("s_nop 1")
                for r in range(16): e(f"v_mov_b32 v{O(4, 0) + r}, v{O(4, 4) + r}")
            if pi == 0: e("s_branch L_he2_%d" % h)
        e(f"L_he2_{h}:")
        for j in range(4): e(f"v_rcp_f32 v{vL+j}, v{vL+j}")
        pub = h == 1 and self.c.stop_after != "A"
        e(I("s_barrier", needs=[("ow", h, 3)] + ([("os", 0, 3, 3)] if pub else [])))
        if pub: self.raw(self.publish(1))
        e(f"v_mov_b32 v14, {MISC + 2048}")
        e(I(f"ds_read_b128 v[{vS}:{vS+3}], v14", id=("fr", h)))
        e(I(f"ds_read_b64 v[14:15], v11", id=("lr", h)))
        for k in range(4):
            e(I(f"ds_read_b128 {R('v', O(4, 4 + k), 4)}, v9 offset:{k*1024}", id=("or", h, k)))
        e(I(f"v_or3_b32 v{vS}, v{vS}, v{vS+1}, v{vS+2}", needs=[("fr", h)]), f"v_or_b32 v{vS}, v{vS}, v{vS+3}", "s_nop 0",
          f"v_readfirstlane_b32 s3, v{vS}", f"s_andn2_b32 s3, s3, s{sREDO}", f"s_cbranch_scc1 L_redo{h}",
          f"s_mov_b32 s{sREDO}, 0")
        refill = sum([self.dma_kv_static(*u) for u in self.refill[:-1]], []) if h == 0 else []
        nref = len(refill)
        e(I("v_min_f32 v11, v13, v15", needs=[("lr", h)]), "v_sub_f32 v13, v11, v13", "v_sub_f32 v15, v11, v15",
          "v_exp_f32 v13, v13", "v_exp_f32 v15, v15", "s_nop 0", "v_mul_f32 v12, v12, v13", "v_fmac_f32 v12, v14, v15",
          "v_rcp_f32 v12, v12", "s_nop 0", "v_mul_f32 v14, v12, v15", "v_mul_f32 v12, v12, v13")
        b0, b1 = O(4, 0), O(4, 4)
        for r in range(0, 16, 2):
            e(f"v_pk_mul_f32 v[{b0+r}:{b0+r+1}], v[{b0+r}:{b0+r+1}], v[12:13] op_sel_hi:[1,0]")
        for r in range(0, 16, 2):
            e(I(f"v_pk_fma_f32 v[{b0+r}:{b0+r+1}], v[{b1+r}:{b1+r+1}], v[14:15], v[{b0+r}:{b0+r+1}] op_sel_hi:[1,0,1]", needs=[("or", h, r // 4)]))
        for r in range(8): e(f"v_cvt_pk_bf16_f32 v{b0+r}, v{b0+2*r}, v{b0+2*r+1}")
        e(f"v_and_b32 v13, 0x3ff, v{vDMA}", f"s_lshl_b32 s3, s{sPI}, 11", f"s_add_u32 s3, s3, s{sOS}")
        if h: e(f"s_add_u32 s3, s3, 73728")
        for k in range(2):
            e(I(f"ds_write_b128 v9, v[{b0+4*k}:{b0+4*k+3}] offset:{k*1024}", id=("pw", h, k)))
            e(I(f"buffer_store_dwordx4 v[{b0+4*k}:{b0+4*k+3}], v13, {srd(SWS)}, s3 offen offset:{k*1024} {self.c.o_flags}", id=("os", h, 4, k)))
        if h == 1:
            for j in range(4): e(f"s_add_u32 s{90+j}, s{sOB}, {73728 + j*4096}")
        for j in range(4):
            e(f"s_add_u32 s3, s{sOB}, {h*73728 + j*4096}")
            for s in range(4):
                b = O(j, 2*s)
                p = (vL + j) & ~1
                sel = "op_sel:[0,1] op_sel_hi:[1,1]" if (vL + j) & 1 else "op_sel_hi:[1,0]"
                for r in range(0, 8, 2):
                    e(f"v_pk_mul_f32 v[{b+r}:{b+r+1}], v[{b+r}:{b+r+1}], v[{p}:{p+1}] {sel}")
                d = 16 + (j*4 + s) * 4
                for r in range(4): e(f"v_cvt_pk_bf16_f32 v{d+r}, v{b+2*r}, v{b+2*r+1}")
                if h == 1 and self.c.o1_epi and self.c.stop_after != "A":
                    k0, k1 = ((j*4 + s) * self.c.o1_epi) // 16, ((j*4 + s + 1) * self.c.o1_epi) // 16
                    for k in range(k0, k1): e(self.o_stores(1, 13)[k][2])
                if self.c.stop_after == "A" and h == 1:
                    e(I(f"buffer_store_dwordx4 v[{d}:{d+3}], v13, {srd(SWS)}, s3 offen offset:{s*1024} sc1", id=("os", h, j, s)))
                if h == 0:
                    dm = refill.pop(0) if (refill and (nref - len(refill)) * 16 < (j*4 + s + 1) * nref) else None
                    if dm: e(*dm[0], *dm[1])
                    for r in range(4): e(f"v_accvgpr_write_b32 a{(j*4+s)*4 + r}, v{d+r}")
                    if dm: e(dm[2])
        assert not refill
        e(I("s_barrier", needs=[("pw", h, 1)] + ([("V", 16, 3)] if h == 0 else [])))
        e(f"s_lshl_b32 s3, s{sPI}, 12", "v_subrev_u32 v9, s3, v9")
        for s in range(4):
            dst = R("a", 64 + 4*s, 4) if h == 0 else R("v", 80 + 4*s, 4)
            e(I(f"ds_read_b128 {dst}, v9 offset:{(s >> 1)*4096 + (s & 1)*1024}", id=("pr", h, s)))
        if h == 0:
            e("s_nop 1")
            for j in range(5): e(f"v_mov_b32 v{vNM+4*j}, 0xff800000")

    def redo(self, h):
        e = self.e
        save = self.ws; self.ws = WaitState()
        e(f"L_redo{h}:", "s_waitcnt vmcnt(0) lgkmcnt(0)", "s_barrier", f"s_mov_b32 s{sREDO}, 1")
        self.kv_addr_init()
        for j in range(5): e(f"v_mov_b32 v{vNM+4*j}, 0xff800000")
        e(f"s_mov_b32 s{sOFF}, {16*h*16384}", f"s_mov_b32 s{sD}, s{sH}", f"L_rl{h}:")
        for i in range(4):
            e(f"s_add_u32 m0, s{sKVW}, {32*i}", "s_nop 0",
              f"buffer_load_dwordx4 v{vDMA}, {srd(SK)}, s{sOFF} offen offset:{i*1024} lds")
        e("s_waitcnt vmcnt(0)", "s_barrier")
        for half in range(2):
            for T in range(2):
                for s in range(4): e(self.kread(h, 0, T, s))
            e("s_waitcnt lgkmcnt(0)", f"v_add_u32 v{vKA}, s{sD}, v{vKA}", f"s_sub_u32 s{sD}, 0, s{sD}")
            for j in range(5):
                for T in range(2):
                    for s in range(4):
                        e(mfma(("v", vO + (j*2+T)*4), ("a", aK + 16*T + 4*s), ("a", aQ[h] + (j*4+s)*4), 0 if s == 0 else None))
            e("s_nop 7")
            for j in range(5):
                b = vO + j*8
                for r in range(0, 8, 2): e(f"v_max3_f32 v{vNM+4*j}, v{b+r}, v{b+r+1}, v{vNM+4*j}")
        e("s_barrier", f"s_add_u32 s{sOFF}, s{sOFF}, 16384", f"s_cmp_lg_u32 s{sOFF}, {16*(h+1)*16384}", f"s_cbranch_scc1 L_rl{h}")
        for M in range(16*h, 16*h + 4):
            self.emit_dma_straight(self.dma_kv_static("K", M) + self.dma_kv_static("V", M))
        e("s_waitcnt vmcnt(0)", "s_barrier", f"s_branch L_head{h}")
        self.ws = save

    def wo_hh(self, i):
        return [(0, 0), (0, 1), (1, 0), (2, 0), (3, 0), (1, 1), (2, 1), (3, 1)][i]
    def dma_wo(self, i, vbase):
        p, par = self.wo_hh(i)
        ops = []
        for t in range(9):
            pre = [I(f"s_add_u32 m0, s{sOM0}, {(i % 4)*OST + t*1024}")] if t % 4 == 0 else []
            same = [I(f"s_add_u32 s{sT3}, s{sWR+p}, {par*128*1152}")] if t == 0 else []
            ops.append((pre, same, I(f"buffer_load_dwordx4 v{vbase[t]}, {srd(SWO)}, s{sT3} offen offset:{(t % 4)*1024} {self.c.wo_flags} lds", id=("wo", i, t)), []))
        return ops
    def oacc(self, j, i):
        if j < 4: return ("v", 96 + (j*9 + i) * 4)
        return ("v", 240 + 4*i) if i < 4 else ("a", 160)

    def o_stream(self, N, ws):
        c = self.c
        vLN, vA1, vA0, vWO, vPL = self.o_regs
        aA, NR = 164, 12
        L = N - 1; gL = 164 * L
        sC2, sC3, sX1, sNEED, sF2, sWB, sRB, sSTEP, sN, sXX, sU, sU2, sPF, sPS, sCNT = 47, 48, 49, 51, 52, 55, 56, 57, 59, 63, 66, 67, 72, 73, 74
        Bbuf = lambda i: ("v", 16) if i == 1 else (("a", 0) if (i == 0 or i % 2 == 1) else ("a", 80))
        def areg(f):
            r = f - 36 * L
            if r < 12: return aA + 4 * (f % NR)
            return 80 - Bbuf(L)[1] + 4 * (r - 12) if r < 32 else 212 + 4 * (r - 32)
        ms = []; start = {}; last = {}; tend = {}
        def chain(i, n, j):
            for s in range(4):
                f = 36*i + 4*n + s
                start.setdefault(f, len(ms)); last[f] = len(ms)
                k, b = Bbuf(i)
                nd = [("oa", f + 3, 1)] if s == 0 else []
                if i >= 2: nd.append(("ob", i, 3, j))
                elif j == 4: nd.append(("pr", i, s))
                ms.append(I(mfma(self.oacc(j, n), ("a", areg(f)), (k, b + (j*4+s)*4), 0 if (i == 0 and s == 0) else None), needs=nd))
            tend[(j, n)] = len(ms) - 1
        for i in range(L):
            for n in range(9):
                for j in ([1, 2, 3, 4, 0] if n <= 4 else [1, 2, 3, 0]): chain(i, n, j)
        for n in range(9):
            for j in ([4] if 1 <= n <= 4 else []) + [1, 2, 3]: chain(L, n, j)
        chain(L, 0, 4)
        for n in range(9): chain(L, n, 0)
        G = Gaps(ms)
        def aread(f, v):
            n, s = divmod(f % 36, 4)
            va, off = (vA0[n], 0) if n < 4 else (vA1, 32*(n-4))
            return I(f"ds_read_b64_tr_b16 {R('a', areg(f) + 2*v, 2)}, v{va} offset:{s*9216 + v*4608 + off}", id=("oa", f, v))
        pre = [I("s_barrier", needs=[("wo", 0, 8), ("pr", 1, 3)])]
        for i in range(N):
            for r in range(36):
                for v in range(2):
                    f = 36*i + r
                    n = r // 4; k = 2*(r % 4) + v
                    if n < 2: g = 164*i - 17 + 8*n + k
                    elif i == L: g = 164*i + ((8*(n - 2) + k) * 3) // 2
                    elif n >= 6: g = start[36*i + 4*n - 4] - 4 - 3 * (n - 5) + (3 * k) // 2
                    else: g = start[36*i + 4*n - 4] - 8 + 2 * k
                    if g < 0: pre.append(aread(f, v)); continue
                    assert g <= start[f - f % 4] - 8, (f, g, start[f])
                    assert f < NR or f >= 36*L + 12 or g >= last[f - NR], (f, g)
                    G.mem[g].append(aread(f, v))
        seq = []
        gb = 143
        vCA, vCD, vCR, vLW, vCL = 16, 17, 18, 19, 20
        for i in range(L):
            g0 = 164 * i
            ev = []
            def grp(lo, hi, *ts): ev.append((g0 + lo, [(I(t), g0 + lo, g0 + hi) for t in ts]))
            def free(g):
                while G.mem[g]: g += 1
                return g
            tim = []
            if i >= 1:
                nm = "o1" if i == 1 else f"g{i % 2}"
                load = f"buffer_load_dword v{vPL}, off, {srd(SWS)}, s{sF2} sc1"
                test = [f"v_readfirstlane_b32 s{sT2}, v{vPL}", f"s_cmp_ge_u32 s{sT2}, s{sNEED}"]
                G.val[g0] += [I(test[0], needs=[("poll", i)])]
                G.val[g0 + 1] += [I(test[1]), I(f"s_cbranch_scc0 L_sp_{nm}"), I(f"L_sb_{nm}:")]
                if N == 8 and i <= 3: self.spin(nm, [load], test)
                k, b = Bbuf(i + 1)
                ob = []
                for j in (1, 2, 3, 4, 0):
                    for s in range(4):
                        same = [] if s else ([f"s_xor_b32 s{sT2}, s{sX1}, {j*4096}", f"s_add_u32 s{sT2}, s{sT2}, s{sPF}"] if j < 4 else [f"s_mov_b32 s{sT2}, s{sPS}"])
                        ob.append(([], same, I(f"buffer_load_dwordx4 {R(k, b + (j*4+s)*4, 4)}, v{vLN}, {srd(SWS)}, s{sT2} offen offset:{s*1024} {c.ob_flags}", id=("ob", i + 1, s, j))))
                tim += [(g0 + 4 + k * c.bstep, o) for k, o in enumerate(ob)]
                grp(8, 24, f"s_and_b32 s{sU}, s{sC2}, 3", f"s_xor_b32 s{sU}, s{sU}, s{sKQ}", f"s_lshl_b32 s{sU}, s{sU}, 2",
                    f"s_bfe_u32 s{sU2}, s{sC2}, 0x20002", f"s_xor_b32 s{sU2}, s{sU2}, s{sHP}", f"s_add_u32 s{sU}, s{sU}, s{sU2}")
                grp(9, 24, f"s_lshl_b32 s{sU}, s{sU}, 1", f"s_bfe_u32 s{sU2}, s{sC2}, 0x10004", f"s_add_u32 s{sU}, s{sU}, s{sU2}",
                    f"s_lshl_b32 s{sU}, s{sU}, 2", f"s_add_u32 s{sU}, s{sU}, s{sW}", f"s_mul_i32 s{sU}, s{sU}, {32*1152}")
                grp(10, 24, f"s_cmp_lt_u32 s{sC2}, 32", f"s_cselect_b32 s{sT3}, s{sU}, s{sTHR}")
                for t in range(9):
                    p_ = [f"s_add_u32 m0, s{sWB}, {t*1024}"] if t % 4 == 0 else []
                    tim.append((g0 + c.wstart + t * c.wstep, (p_, [], I(f"buffer_load_dwordx4 v{vWO+t}, {srd(SWO)}, s{sT3} offen offset:{(t % 4)*1024} {c.wo_flags} lds", id=("wo", i + 2, t)))))
            else:
                st = self.o_stores(1, vLN)[c.o1_epi:]
                tim += [(g0 + 1 + (k * c.st_span) // len(st), o[:3]) for k, o in enumerate(st)]
            tp = 90 if i else c.poll1
            if i: grp(62, tp - 2, f"s_and_b32 s{sU}, s{sC2}, 3", f"s_lshl_b32 s{sU}, s{sU}, 7", f"s_xor_b32 s{sF2}, s{sFL}, s{sU}")
            if i: grp(69, tp - 2, f"s_and_b32 s{sU}, s{sC2}, 12", f"s_lshl_b32 s{sU}, s{sU}, 8", f"s_xor_b32 s{sF2}, s{sF2}, s{sU}")
            tim.append((g0 + tp, ([], [], I(f"buffer_load_dword v{vPL}, off, {srd(SWS)}, s{sF2} sc1", id=("poll", i + 1)))))
            nb = []
            if i >= 2:
                if c.steal:
                    grp(5, 20, f"s_cmp_lt_u32 s{sN+2}, s{sN+1}", f"s_cselect_b32 s{sXX}, 2, 1", f"s_min_u32 s{sU}, s{sN+1}, s{sN+2}")
                    grp(6, 20, f"s_cmp_lt_u32 s{sN+3}, s{sU}", f"s_cselect_b32 s{sXX}, 3, s{sXX}",
                        f"s_min_u32 s{sU}, s{sU}, s{sN+3}", f"s_cmp_lt_u32 s{sU}, 3", f"s_cselect_b32 s{sXX}, s{sXX}, 64")
                else: grp(6, 20, f"s_mov_b32 s{sXX}, 64")
                grp(7, 20, f"s_cmp_lt_u32 s{sN}, 3", f"s_cselect_b32 s{sXX}, 0, s{sXX}", f"s_cmp_lt_u32 s{sC2}, 32", f"s_cselect_b32 s{sXX}, s{sXX}, 64",
                    f"s_cmp_eq_u32 s{sXX}, s{sW}", f"s_cselect_b32 s{sN}, 1, 0", f"s_cselect_b32 s{sN+1}, 1, 0", f"s_atomic_add s{sN}, s[{SK}:{SK+1}], 0 glc" if not c.diag_noatom else f"s_sub_u32 s{sN}, s{sCNT}, 3")
                for k, t in enumerate([f"v_mov_b32 v{vLW}, s{sW}", f"v_lshlrev_b32 v{vLW}, 2, v{vLW}", f"v_add_u32 v{vLW}, {4*OST}, v{vLW}",
                                       f"v_lshrrev_b32 v{vCL}, 2, v{vLN}", f"v_and_b32 v{vCL}, 12, v{vCL}", f"v_add_u32 v{vCL}, {4*OST}, v{vCL}"]):
                    G.val[g0 + 50 + 2*k].append(I(t))
                G.val[g0 + gb - 7] += [I("s_waitcnt lgkmcnt(0)"), I(f"v_mov_b32 v{vCR}, s{sN}")]
                G.val[g0 + gb - 6] += [I(f"v_add_u32 v{vCR}, s{sN+1}, v{vCR}")]
                g = free(g0 + gb - 5); assert g < g0 + gb
                G.mem[g].append(I(f"ds_write_b32 v{vLW}, v{vCR} offset:{64 * (i % 2)}", id=("cw", i)))
                nb = [("cw", i)]
                G.mem[g0 + gb + 3].append(I(f"ds_read_b32 v{vCR}, v{vCL} offset:{64 * (i % 2)}", id=("cr", i)))
                G.val[g0 + 153].append(I(f"v_readlane_b32 s{sU2}, v{vCR}, s{sXX}", needs=[("cr", i)]))
                for k in range(4): G.val[g0 + 154 + k].append(I(f"v_readlane_b32 s{sN+k}, v{vCR}, {k}"))
                grp(154, 160, f"s_lshl_b32 s{sU}, s{sU2}, 2", f"s_or_b32 s{sU}, s{sU}, s{sXX}", f"s_or_b32 s{sU}, s{sU}, 16",
                    f"s_cmp_le_u32 s{sU2}, 3", f"s_cselect_b32 s{sC3}, s{sU}, 64")
            grp(104, 128, f"s_cmp_eq_u32 s{sRB}, {3*OST}", f"s_cselect_b32 s{sSTEP}, {-3*OST & 0xffffffff:#x}, s{sWIN}", f"s_add_u32 s{sRB}, s{sRB}, s{sSTEP}")
            for k, va in enumerate(vA0 + [vA1]):
                G.val[g0 + gb - 12 + k].append(I(f"v_add_u32 v{va}, s{sSTEP}, v{va}"))
            G.waitneeds[g0 + gb + 1] += [("oa", 36*i + 35, 1), ("wo", i + 1, 8)] + nb
            if i == 1: G.waitneeds[g0 + gb + 1] += [("os", 1, 3, 3)]
            G.sal[g0 + gb + 2].append(I("s_barrier"))
            if i < 2: self.stamp_gap(G, g0 + gb + 2)
            if i >= 2 and c.stamps and not c.steal:
                k0 = self.nstamp - 2
                x = [I(t) for t in (f"s_memtime s[{sST}:{sST+1}]", "s_memrealtime s[96:97]", f"s_lshl_b32 s99, s{sCNT}, 3", f"s_add_u32 s99, s99, s{sSTO}", "s_waitcnt lgkmcnt(0)",
                     f"v_accvgpr_write_b32 a252, s{sST}", f"v_accvgpr_write_b32 a253, s96",
                     f"buffer_store_dwordx2 a[252:253], off, {srd(SWS)}, s99 offset:{(k0 - 1)*8}")]
                G.val[g0 + gb + 2] += x[:-1]; G.mem[g0 + gb + 3].insert(0, x[-1])
            if i == 1: G.val[g0 + gb + 3] += self.publish(2)
            G.waitneeds[g0 + 162] += ms[g0 + 164].needs
            tim.sort(key=lambda t: t[0])
            g = g0 + 1; gsame = 108
            for t, (p_, same, vm) in tim:
                g = free(max(g + 2, t))
                assert g < g0 + 147, (i, g - g0)
                G.mem[g].append(vm)
                if p_: ev.append((g - 1.5, [(I(x), g - 1, g - 1) for x in p_]))
                if same: ev.append((g - 1.5, [(I(x), g - 1, g) for x in same])); gsame = max(gsame, g - g0)
            grp(gsame + 1, 152, f"s_and_b32 s{sU}, s{sC2}, 3", f"s_lshl_b32 s{sX1}, s{sU}, 12", f"s_xor_b32 s{sU}, s{sU}, s{sKQ}", f"s_lshl_b32 s{sU}, s{sU}, 2",
                f"s_bfe_u32 s{sU2}, s{sC2}, 0x20002", f"s_xor_b32 s{sU2}, s{sU2}, s{sHP}", f"s_add_u32 s{sU}, s{sU}, s{sU2}", f"s_lshl_b32 s{sU}, s{sU}, 1",
                f"s_bfe_u32 s{sNEED}, s{sC2}, 0x10004", f"s_add_u32 s{sU}, s{sU}, s{sNEED}", f"s_mul_i32 s{sU}, s{sU}, 73728",
                f"s_add_u32 s{sPF}, s{sU}, s{sOB}", f"s_add_u32 s{sPS}, s{sU}, s{sOS}", f"s_add_u32 s{sNEED}, s{sNEED}, 1")
            grp(147, 153, f"s_cmp_ge_u32 s{sRB}, {2*OST}", f"s_cselect_b32 s{sWB}, {-2*OST & 0xffffffff:#x}, s{sDUM}",
                f"s_add_u32 s{sWB}, s{sWB}, s{sRB}", f"s_add_u32 s{sWB}, s{sWB}, s{sOM0}")
            if i >= 2:
                if c.stamps: grp(158, 162, f"s_add_u32 s{sCNT}, s{sCNT}, 1")
                grp(159, 162, f"s_cmp_lt_u32 s{sC2}, 32", f"s_mov_b32 s{sC2}, s{sC3}")
            else: grp(159, 162, f"s_mov_b32 s{sC2}, {4 * (i + 2)}")
            ev.sort(key=lambda t: t[0])
            for k, (t, items) in enumerate(ev):
                cap = min([x[2] for _, it in ev[k+1:] for x in it] + [10**9])
                seq += [(x, lo, min(hi, cap)) for x, lo, hi in items]
        vL8, vOS, vE, vOW, vFA = 82, 83, 84, 90, 95
        load7 = lambda g: 2 * sum(x.k == "vm" for x in G.mem[g]) + sum(x.k == "ds" for x in G.mem[g]) + len(G.val[g])
        def putv(g, t):
            while load7(g) >= 2: g += 1
            G.val[g].append(I(t)); return g
        sal7 = [f"s_sub_u32 s84, s{sRB}, s{sSTEP}", f"s_mul_i32 s{sT}, s{sKQ}, {4*5120}", f"s_add_u32 s{sT}, s{sT}, s{sPB}"]
        if c.stamps: sal7 = [f"s_mov_b32 s{sC3}, s{sCNT}"] + sal7
        for j in range(1, 4):
            sal7 += [f"s_xor_b32 s3, s{sKQ}, {j}", f"s_mul_i32 s3, s3, {16*5120}", f"s_add_u32 s{89+j}, s3, s{sT}"]
        n_first = len(sal7)
        sal7 += [f"s_lshr_b32 s3, s{sG}, 3", f"s_lshl_b32 s{sT2}, s{sBR}, 5", f"s_add_u32 s3, s3, s{sT2}", "s_lshl_b32 s3, s3, 13",
                 f"s_lshl_b32 s{sT2}, s{sW}, 9", f"s_add_u32 s3, s3, s{sT2}", f"s_add_u32 s{sT3}, s3, {WS_SH}",
                 f"s_lshl_b32 s3, s{sKQ}, 11", f"s_add_u32 s93, s3, s{sT3}",
                 f"s_mul_i32 s{sT}, s{sKQ}, {16*5120}", f"s_add_u32 s{sT}, s{sT}, s{sPB}"]
        for j in range(1, 4):
            sal7 += [f"s_xor_b32 s{sT2}, s{sKQ}, {j}", f"s_mul_i32 s3, s{sT2}, {4*5120}", f"s_add_u32 s{sFP+j-1}, s3, s{sT}",
                     f"s_lshl_b32 s3, s{sT2}, 11", f"s_add_u32 s{sOP+j-1}, s3, s{sT3}"]
        sal7 += [f"s_mul_i32 s{sT}, s{sBR}, 1152", f"s_mul_i32 s3, s{sHP}, 288", f"s_add_u32 s{sT}, s{sT}, s3",
                 f"s_mul_i32 s3, s{sB}, {288*2304}", f"s_add_u32 s{sT}, s{sT}, s3",
                 f"s_lshl_b32 s3, s{sROW+4}, 1", f"s_add_u32 s82, s{sT}, s3", f"s_lshl_b32 s3, s{sROW}, 1", f"s_add_u32 s81, s{sT}, s3",
                 f"s_lshl_b32 s3, s{sKQ}, 5", f"s_add_u32 s3, s3, s{sD}", f"s_add_u32 s83, s3, s82",
                 f"s_lshl_b32 s3, s{sW}, 2", f"s_add_u32 s{sFL}, s{sFL}, s3", f"s_add_u32 s84, s84, s{sOM0}"]
        for k, t in enumerate(sal7): seq.append((I(t), gL, gL + (24 if k < n_first else 66)))
        pk, pairs = self.pk, self.pairs
        msgs = []
        for k in range(5):
            for j in range(1, 4):
                d = 16 + ((j-1)*5 + k) * 4
                g = 0
                for q, (tj, tn) in enumerate(pairs(j, 0)[k]):
                    gg = tend[(tj, tn)] + 6
                    for t in pk(d + 2*q, self.oacc(tj, tn)[1]): gg = putv(gg, t)
                    g = max(g, gg)
                msgs.append((g + 1, k, j, I(f"buffer_store_dwordx4 v[{d}:{d+3}], v{vLN}, {srd(SWS)}, s{89+j} offen offset:{(k % 4)*1024} {c.p_flags}", id=("ps", j, k))))
        gg = tend[(4, 4)] + 5
        for r in range(4): gg = putv(gg, f"v_accvgpr_read_b32 v{76+r}, a{160+r}")
        for t in pk(80, 76): gg = putv(gg + 1, t)
        msgs.append((gg + 1, 5, 0, I(f"buffer_store_dwordx2 v[80:81], v{vL8}, {srd(SWS)}, s93 offen {c.p_flags}", id=("ps", 4, 0))))
        msgs.sort(key=lambda t: t[0])
        g = 0
        for t, k, j, vm in msgs:
            g = max(g + 2, t)
            while G.mem[g] or len(G.val[g]) > 1: g += 1
            G.mem[g].append(vm)
            if k == 4: seq.append((I(f"s_add_u32 s{89+j}, s{89+j}, 4096"), g - 1, g))
            assert g > gL + (25 if k < 5 else 67)
        G.mem[g + 2].append(I(self.fpoll, id=("fpoll",)))
        setup = [f"v_lshrrev_b32 v{vL8}, 1, v{vLN}", f"v_lshrrev_b32 v3, 4, v{vLN}",
                 f"v_mov_b32 v{vFA}, s{sFQ}", f"v_writelane_b32 v{vFA}, s{sFQ+1}, 1", f"v_writelane_b32 v{vFA}, s{sFQ+2}, 2",
                 f"v_mov_b32 v7, s{sW}", f"v_lshl_add_u32 v{vFA}, v7, 2, v{vFA}",
                 "v_lshrrev_b32 v4, 4, v3", "v_bfe_u32 v5, v3, 2, 2",
                 "v_cmp_eq_u32 vcc, v4, v5", "v_and_b32 v6, 1, v3", "v_lshlrev_b32 v6, 4, v6", "v_mov_b32 v7, 0x3f80",
                 "v_lshlrev_b32 v6, v6, v7", "v_cndmask_b32 v6, 0, v6, vcc", "v_and_b32 v7, 2, v3", "v_cmp_eq_u32 vcc, 0, v7",
                 f"v_mov_b32 v{vE}, 0", f"v_mov_b32 v{vE+1}, 0", f"v_cndmask_b32 v{vE+2}, 0, v6, vcc", f"v_sub_u32 v{vE+3}, v6, v{vE+2}",
                 f"v_mov_b32 v{vE+4}, 0", f"v_mov_b32 v{vE+5}, 0",
                 f"v_and_b32 v{vOS}, 15, v3", f"v_mul_u32_u24 v{vOS}, 2304, v{vOS}", f"v_lshl_add_u32 v{vOS}, v4, 3, v{vOS}"]
        for t in range(5):
            v = vOW + t
            setup += [f"v_add_u32 v7, {64*t}, v3", f"v_mul_u32_u24 v{v}, 3641, v7", f"v_lshrrev_b32 v{v}, 16, v{v}",
                      f"v_mul_u32_u24 v{v}, 2016, v{v}", f"v_lshl_add_u32 v{v}, v7, 4, v{v}"]
        setup += ["v_lshrrev_b32 v7, 5, v3", f"v_lshl_add_u32 v{vOW+4}, v7, 28, v{vOW+4}"]
        gg = gL
        for t in setup: gg = putv(gg, t)
        assert gg < g
        tr = [f"v_lshrrev_b32 v9, 4, v{vLN}", "v_and_b32 v10, 15, v9", "v_mul_u32_u24 v10, 288, v10", "v_lshrrev_b32 v9, 4, v9",
              "v_lshl_add_u32 v10, v9, 3, v10", "v_add_u32 v10, s84, v10", f"v_add_u32 v8, s84, v{vLN}",
              f"v_mov_b32 v11, s{sKQ}", f"v_add_u32 v7, s{sD}, v10"]
        for n in range(4): tr += [f"v_xor_b32 v{3+n}, {n}, v11", f"v_lshl_add_u32 v{3+n}, v{3+n}, 5, v7"]
        tr += [f"v_mov_b32 v11, s{sPI}", "v_xor_b32 v11, 1, v11", "v_lshl_add_u32 v7, v11, 7, v10"]
        gg = g + 3
        for t in tr + [f"v_mov_b32 v{134 + 4*j + r}, 0" for j in range(1, 4) for r in range(2)] + ["v_mov_b32 v11, 1"]: gg = putv(gg, t)
        seq += [(I(f"s_mov_b32 s{sKO}, 0"), g + 1, len(ms) - 1), (I(f"s_mov_b32 s{sWIN}, 0"), g + 1, len(ms) - 1),
                (I(f"s_mov_b32 s{sSPIN}, 0x40000"), g + 1, len(ms) - 1)]
        pre = linear_waits(pre, ws)
        G.place_waits(ws, pre)
        G.unify_waits([164 * i for i in range(2, L)], 164)
        G.place_salu(seq, dense=True)
        return G, pre

    def phase_o(self):
        import copy
        e = self.e; c = self.c
        vLN, vA1 = 1, 2
        vA0 = [13, 14, 0, 12]
        vWO, vPL = 3, 15
        vL8, vOS, vE, vOW, vFA = 82, 83, 84, 90, 95
        self.o_regs = (vLN, vA1, vA0, vWO, vPL)
        def pk(dst, t):
            return [f"v_cvt_pk_bf16_f32 v{dst}, v{t}, v{t+1}", f"v_cvt_pk_bf16_f32 v{dst+1}, v{t+2}, v{t+3}"]
        pairs = lambda j, x: [((j, 0 ^ x), (j, 1 ^ x)), ((j, 2 ^ x), (j, 3 ^ x)), ((4, j), (j, 4)), ((j, 5), (j, 6)), ((j, 7), (j, 8))]
        self.pk, self.pairs = pk, pairs
        poll = self.fpoll = f"buffer_load_dword v{vPL}, v{vFA}, {srd(SWS)}, 0 offen offset:16 sc1"
        e(f"v_lshrrev_b32 v12, 2, v0", "v_mul_u32_u24 v12, 288, v12", "v_and_b32 v14, 3, v0", "v_lshl_add_u32 v12, v14, 3, v12",
          f"v_lshlrev_b32 v{vLN}, 4, v0",
          f"s_lshl_b32 s3, s{sPI}, 7", "s_xor_b32 s3, s3, 128", f"v_add_u32 v{vA1}, s3, v12", f"s_mul_i32 s{sD}, s{sPI}, 160")
        for i in range(4):
            e(f"s_xor_b32 s3, s{sKQ}, {i}", "s_lshl_b32 s3, s3, 5", f"s_add_u32 s3, s3, s{sD}", f"v_add_u32 v{vA0[i]}, s3, v12")
        for t in range(9): e(f"v_accvgpr_read_b32 v{vWO+t}, a{240+t}")
        e(f"s_lshl_b32 s3, s{sKQ}, 2", f"s_add_u32 s3, s3, s{sHP}", "s_mul_i32 s3, s3, 147456", f"s_sub_u32 s{sOB}, s{sOB}, s3", f"s_sub_u32 s{sOS}, s{sOS}, s3",
          "s_mov_b32 s47, 4", f"s_xor_b32 s52, s{sFL}, {1 << 10}", "s_mov_b32 s56, 0", "s_mov_b32 s59, 0", "s_mov_b32 s60, 0", "s_mov_b32 s61, 0", "s_mov_b32 s62, 0",
          f"s_mov_b32 s{sWIN}, {OST}", f"s_mov_b32 s{sDUM}, {2*OST}", "s_mov_b32 s74, 3",
          f"s_lshl_b32 s3, s{sW}, 7", f"s_xor_b32 s3, s3, s{sFL}", "s_add_u32 s3, s3, 4", f"s_add_u32 s{SK}, s{SWS}, s3", f"s_addc_u32 s{SK+1}, s{SWS+1}, 0")
        ns = self.nstamp
        G7, _ = self.o_stream(7, copy.deepcopy(self.ws))
        self.nstamp = ns
        G, pre = self.o_stream(8, self.ws)
        txt = lambda G, i: [x.t for x in G.flat(164 * i, 164 * (i + 1))]
        assert txt(G, 2) == txt(G, 4) == txt(G, 6) == txt(G7, 2) == txt(G7, 4) and txt(G, 3) == txt(G, 5) == txt(G7, 3) == txt(G7, 5)
        st = lambda G, i: G.flat(164 * i, 164 * (i + 1))
        assert all(st(G, i)[-1].k == "m" for i in (1, 2, 3))
        self.raw(pre + st(G, 0) + st(G, 1) + [I("s_branch L_gz"), I(".p2align 6"), I("L_gz:")] + st(G, 2) + [I("s_cbranch_scc0 L_lastx")])
        self.raw(st(G, 3) + [I("s_cbranch_scc1 L_gz")] + st(G7, 6) + [I("s_branch L_otail"), I(".p2align 6"), I("L_lastx:")] + st(G, 7) + [I("L_otail:")])
        self.checks += [("o8", G.flat()), ("o7", G7.flat())]
        print("phase O est cycles", G.cost(), [G.cost(164*i, 164*i + 164) for i in range(8)], file=sys.stderr)
        if c.stamps and not c.steal:
            self.nstamp += 5; e("; s_memtime s_memtime s_memtime")
        if c.stamps:
            e("v_accvgpr_write_b32 a252, s48", f"buffer_store_dword a252, off, {srd(SWS)}, s{sSTO} offset:248")
        self.stamp()
        sDONE, sAPP, sPEND = sKO, sWIN, sT
        e("s_waitcnt vmcnt(0)", f"buffer_store_dword v11, off, {srd(SWS)}, s{sFL} offset:16 sc1")
        self.stamp()
        e("s_branch L_gchk", "L_gather:", "s_waitcnt vmcnt(0)")
        for j in range(1, 4):
            e(f"s_cmp_eq_u32 s{sAPP}, {j-1}", f"s_cbranch_scc0 L_gm{j}", f"s_bitcmp1_b32 s{sDONE}, {j-1}", f"s_cbranch_scc0 L_gchk", f"s_mov_b32 s{sAPP}, {j}")
            for k, (t0, t1) in enumerate(pairs(0, j)):
                d = 16 + ((j-1)*5 + k) * 4
                e(mfma(self.oacc(*t0), ("v", vE + 2), ("v", d)), mfma(self.oacc(*t1), ("v", vE), ("v", d)))
            e(mfma(("v", 76), ("v", vE + 2), ("v", 132 + 4*j)), f"L_gm{j}:")
        e("s_branch L_gdone", "L_gchk:",
          f"v_cmp_ne_u32 vcc, 0, v{vPL}", f"s_sub_u32 s{sSPIN}, s{sSPIN}, 1", f"s_cselect_b32 s3, 7, 0", "s_or_b32 s3, s3, vcc_lo", "s_and_b32 s3, s3, 7",
          f"s_andn2_b32 s{sPEND}, s3, s{sDONE}", f"s_or_b32 s{sDONE}, s{sDONE}, s3")
        for j in range(1, 4):
            e(f"s_bitcmp1_b32 s{sPEND}, {j-1}", f"s_cbranch_scc0 L_gl{j}")
            for k in range(5):
                d = 16 + ((j-1)*5 + k) * 4
                if k == 4: e(f"s_add_u32 s{sFP+j-1}, s{sFP+j-1}, 4096")
                e(f"buffer_load_dwordx4 v[{d}:{d+3}], v{vLN}, {srd(SWS)}, s{sFP+j-1} offen offset:{(k % 4)*1024} sc1")
            e(f"buffer_load_dwordx2 v[{132+4*j}:{133+4*j}], v{vL8}, {srd(SWS)}, s{sOP+j-1} offen sc1", f"L_gl{j}:")
        e(poll, "s_branch L_gather", "L_gdone:")
        self.stamp()
        e("s_nop 7")
        for n in range(9):
            t = self.oacc(0, n)[1]
            e(*pk(t, t), I(f"ds_write_b64 v{3 + min(n, 4)}, v[{t}:{t+1}] offset:{32 * max(0, n - 4)}", id=("tw", n)))
        for t in range(5): e(I(f"ds_read_b128 v[{16+4*t}:{19+4*t}], v8 offset:{1024*t}", id=("tr", t)))
        t = self.oacc(4, 0)[1]
        e(*pk(t, t), *pk(76, 76), f"v_cmp_eq_u32 vcc, s{sKQ}, v9")
        for k in range(5):
            e(I(f"buffer_store_dwordx4 v[{16+4*k}:{19+4*k}], v{vOW+k}, {srd(SOUT)}, s81 offen {c.out_flags}", needs=[("tr", k)]))
        e(f"buffer_store_dwordx2 v[{t}:{t+1}], v{vOS}, {srd(SOUT)}, s83 offen {c.out_flags}")
        e(f"s_cmp_eq_u32 s{sPI}, 1", "s_cbranch_scc1 L_fin",
          "s_and_saveexec_b64 s[90:91], vcc", f"buffer_store_dwordx2 v[76:77], v{vOS}, {srd(SOUT)}, s82 offen offset:128 {c.out_flags}",
          "s_mov_b64 exec, s[90:91]", "L_fin:")

    def build(self):
        self.setup()
        self.phase_q()
        self.attn_schedule()
        self.head(0)
        self.head(1)
        self.stamp()
        if self.c.stop_after != "A":
            self.phase_o()
        self.e("s_waitcnt vmcnt(0) lgkmcnt(0)")
        self.stamp()
        if self.c.amp is not None:
            print("n stamps", self.nstamp, file=sys.stderr)
            if self.c.amp[0] < 0: self.e("s_mov_b32 s96, s98")
            self.e(f"s_and_b32 s3, s{sG}, {self.c.amp[1]}", f"s_cmp_lg_u32 s3, {self.c.amp[2]}", "s_cbranch_scc1 L_end",
                   "s_sub_u32 s96, s96, s98", "s_mul_i32 s96, s96, 4", "s_add_u32 s96, s96, 20000", "L_amp:", "s_memrealtime s[100:101]", "s_waitcnt lgkmcnt(0)",
                   "s_sub_u32 s100, s100, s98", "s_cmp_lt_u32 s100, s96", "s_cbranch_scc1 L_amp")
        self.e("s_endpgm")
        self.raw(self.tailcode)
        self.redo(0)
        self.redo(1)
        self.e("L_end:")
        probs = check_hazards(self.out, "main") + check_scc(self.out, "scc")
        for nm, seq in self.checks: probs += check_hazards(seq, nm)
        for p in probs: print(p, file=sys.stderr)
        assert not probs
        hdr = open("cdna_kernels/" + NAME[:-7] + ".s.ref").read().split("; Override launch")[0]
        txt = hdr + f"; @launch grid=(256,1,1) block=(256,1,1) lds={LDS_BYTES}\n"
        txt += f""".amdgcn_target "amdgcn-amd-amdhsa--gfx950"
.text
.globl {NAME}
.p2align 8
.type {NAME},@function
{NAME}:
"""
        for x in self.out:
            if self.c.no_dma and x.k == "vm" and f"s{sOFF} offen" in x.t: continue
            txt += (x.t if x.k == "l" else "    " + " ".join(x.t.split())) + "\n"
        txt += f"""    s_endpgm
.section .rodata,"a"
.p2align 6
.amdhsa_kernel {NAME}
  .amdhsa_next_free_vgpr 512
  .amdhsa_next_free_sgpr 102
  .amdhsa_accum_offset 256
  .amdhsa_group_segment_fixed_size 0
  .amdhsa_kernarg_size 104
  .amdhsa_user_sgpr_count 2
  .amdhsa_user_sgpr_kernarg_segment_ptr 1
  .amdhsa_system_sgpr_workgroup_id_x 1
.end_amdhsa_kernel
"""
        return txt

def make(**kw):
    c = Cfg()
    for k, v in kw.items():
        assert hasattr(c, k), k
        setattr(c, k, v)
    return Gen(c).build()

if __name__ == "__main__":
    kw = {}
    out = sys.argv[1]
    for a in sys.argv[2:]:
        k, v = a.split("=", 1)
        try: v = eval(v)
        except Exception: pass
        kw[k] = v
    open(out, "w").write(make(**kw))
```

```python
import sys, struct, math
from asmlib import *

NAME = "concat_heads__mha_block_cached__gqa_block_cached__near_ridge_kernel"
def f2u(x): return struct.unpack("<I", struct.pack("<f", x))[0]

class Cfg:
    stamps = False
    stop_after = None
    kv_flags = "nt"
    x_flags = ""
    wq_flags = ""
    wo_flags = ""
    thr = 2.0 ** 30
    backlog = 30
    code_prefetch = True
    nfirst = 22
    touch13 = True
    touch_flags = ''
    o1_epi = 6
    st_span = 136
    poll1 = 2
    steal = True
    touchq = False
    touch_pair = False
    pub2 = 1
    vpoll = False
    diag_bhot = False
    diag_nost = ()
    wbl2 = False
    remap = True
    half = 0
    lite = False
    diag_noatom = False
    wstart = 20
    wstep = 13
    n0 = 10
    cp_split = True
    stamp0 = False
    ws_off = 0
    touch_win = 13
    kmask = (2, 2)
    vmask = (2, 2)
    stag = (3, 3)
    vpos = (4, 10)
    kpos = (8, 18)
    touch_pos = 40
    wo_pos = (60, 9)
    wq8 = False
    retouch = True
    o0_pos = (110, 12)
    ob_flags = 'sc1'
    p_flags = 'sc1'
    out_flags = 'sc1'
    nx0 = True
    bstep = 7
    ones = (0, 1, 2, 3, 4)
    edelay = 5
    cnt = [3, 3, 3, 3, 3, 3, 3, 3, 3, 5]
    onepos = (2, 5, 9, 9)
    wtrace = False
    fill = {15: 'K0', 16: 'K1', 17: 'K2 V3'}
    loop_q = True
    o_flags = 'sc1'
    amp = None
    kv_same = False
    no_dma = False

SX, SWQ, SK, SV, SWO, SWS, SOUT, SDBG = 4, 8, 12, 16, 20, 24, 28, 32
sW, sPI, sKQ, sB, sHP, sBR = 36, 37, 38, 39, 40, 41
sROW = 42
sH, sDA, sDB, sD, sM0, sOFF, sT, sT2 = 47, 48, 49, 50, 51, 52, 53, 54
sWM0 = 55
sC = 56
sTHR, sXK, sWK, sXM0, sREDO, sKVW = 58, 59, 60, 61, 62, 63
sOB = 64
sOS = 65
sG = 2
sST = 68
sSTO = 70
sFL = 71
sFP = 72
sFQ = 75
sOP = 78
sWR = 81
sPB = 85
sOM0 = 86
sT3 = 87
sSPIN = 88
sCT = 66
sKO, sWIN, sDUM, sCUR = 89, 94, 95, 67
PITCH = 17408
VBASE = 4 * PITCH
XB = (121856, 80896)
SCR = 8 * PITCH
MISC = 9 * PITCH
LDS_BYTES = 163840
HALF = 8448
WS_O = 0
WS_PART = 0x2800000
WS_SH = 0x3e00000
WS_FLAG = 0x3f00000
WS_STAMP = 0x4000000
OST = 36864
WS_BYTES = 292618240
vDMA, vKA, vVA = 1, 2, 3
vL = 4
vT = 9
vNM = 16
vS = 36
NS = 6
vP = (60, 80)
vO = 96
vXD, vWD, vXR, vWR0, vWR1 = 4, 5, 6, 7, 8
aQ = (0, 80)
aK = 160
aV = 192
NV = 4
aL = 208
aONE = 228

def srd(n): return f"s[{n}:{n+3}]"

class Gen:
    def __init__(self, cfg):
        self.c = cfg
        self.out = []
        self.ws = WaitState()
        self.nstamp = 0
        self.tailcode = []
        self.checks = []
    def e(self, *ts):
        for t in ts:
            for line in (t.split("\n") if isinstance(t, str) else [t]):
                if isinstance(line, str):
                    line = line.strip()
                    if not line: continue
                    line = I(line)
                self.out += linear_waits([line], self.ws)
    def raw(self, ins):
        self.out += ins
    def stamp_ins(self):
        k = self.nstamp; self.nstamp += 1
        return [I(x) for x in (f"s_memtime s[{sST}:{sST+1}]", "s_memrealtime s[96:97]", "s_waitcnt lgkmcnt(0)",
               f"v_accvgpr_write_b32 a252, s{sST}", f"v_accvgpr_write_b32 a253, s96",
               f"buffer_store_dwordx2 a[252:253], off, {srd(SWS)}, s{sSTO} offset:{k*8}")]
    def stamp(self):
        if self.c.amp is not None:
            k = self.nstamp; self.nstamp += 1
            if k == self.c.amp[0]: self.e("s_memrealtime s[96:97]", "s_waitcnt lgkmcnt(0)")
        if self.c.stamps: self.e(*self.stamp_ins())
    def stamp_gap(self, G, g):
        if not self.c.stamps: return
        x = self.stamp_ins()
        G.val[g] += x[:-1]
        G.mem[g + 1].insert(0, x[-1])

    def setup(self):
        c = self.c; e = self.e
        e(f"""
        s_cmp_ge_u32 s2, 256
        s_cbranch_scc1 L_end
        {"s_memtime s[96:97]" if c.stamps else ""}
        {"s_memrealtime s[98:99]" if (c.stamps or c.amp or c.lite) else ""}
        s_load_dwordx16 s[64:79], s[0:1], 0
        s_load_dwordx8 s[80:87], s[0:1], 64
        s_load_dwordx2 s[88:89], s[0:1], 96
        v_lshrrev_b32 v9, 6, v0
        v_and_b32 v0, 63, v0
        {"s_and_b32 s3, s2, 3" if c.remap else ""}
        {"s_bcnt1_i32_b32 s3, s3" if c.remap else ""}
        {"s_lshl_b32 s3, s3, 2" if c.remap else ""}
        {"s_and_b32 s3, s3, 4" if c.remap else ""}
        {"s_xor_b32 s2, s2, s3" if c.remap else ""}
        s_and_b32 s3, s2, 7
        v_readfirstlane_b32 s{sW}, v9
        s_lshr_b32 s{sBR}, s3, 2
        s_and_b32 s{sKQ}, s3, 3
        s_lshr_b32 s3, s2, 3
        s_lshr_b32 s{sB}, s3, 2
        s_and_b32 s{sHP}, s3, 3
        s_and_b32 s{sPI}, s{sW}, 1
        """)
        e(f"s_mov_b32 s{sD}, 0")
        if c.code_prefetch:
            e(f"""
            s_getpc_b64 s[100:101]
            L_pc:
            s_mov_b32 s92, s100
            s_mov_b32 s93, s101
            s_mov_b32 s94, L_end-L_pc
            s_mov_b32 s95, 0x20000
            """)
            if c.cp_split:
                e(f"""
                s_and_b32 s3, s3, 7
                s_lshl_b32 s3, s3, 2
                s_add_u32 s{sD}, s3, s{sW}
                v_cmp_gt_u32 vcc, 20, v0
                s_mul_i32 s3, s{sD}, {20*128}
                v_lshlrev_b32 v10, 7, v0
                v_mov_b32 v11, 0x1000000
                v_cndmask_b32 v10, v11, v10, vcc
                buffer_load_dword v15, v10, s[92:95], s3 offen
                """)
            else:
                e(f"""
                v_lshlrev_b32 v10, 7, v0
                s_lshl_b32 s3, s{sW}, 13
                v_add_u32 v10, s3, v10
                buffer_load_dword v15, v10, s[92:95], 0 offen
                s_mov_b32 s3, 0x8000
                buffer_load_dword v15, v10, s[92:95], s3 offen
                s_mov_b32 s3, 0x10000
                buffer_load_dword v15, v10, s[92:95], s3 offen
                """)
        e(f"""
        v_lshrrev_b32 v9, 2, v0
        v_mul_u32_u24 v{vXD}, 1152, v9
        v_lshrrev_b32 v9, 4, v0
        v_and_b32 v9, 2, v9
        v_xor_b32 v9, v9, v0
        v_and_b32 v9, 3, v9
        v_lshl_add_u32 v{vXD}, v9, 4, v{vXD}
        v_lshrrev_b32 v9, 5, v0
        v_lshlrev_b32 v9, 15, v9
        v_and_b32 v14, 31, v0
        v_lshl_add_u32 v9, v14, 4, v9
        s_lshl_b32 s3, s{sW}, 16
        v_add_u32 v{vWD}, s3, v9
        s_mul_i32 s{sXM0}, s{sW}, 10240
        s_add_u32 s{sXM0}, s{sXM0}, {XB[1]}
        s_mul_i32 s{sWM0}, s{sW}, 4352
        {f"s_lshl_b32 s3, s{sPI}, 3" if c.wq8 else ""}
        {f"s_add_u32 s{sWM0}, s{sWM0}, s3" if c.wq8 else ""}
        s_lshr_b32 s3, s{sW}, 1
        s_mul_i32 s3, s3, 144
        s_add_u32 s{sROW+4}, s3, 128
        s_mul_i32 s{sROW+4}, s{sROW+4}, 1152
        s_lshl_b32 s{sT}, s{sPI}, 6
        s_add_u32 s3, s3, s{sT}
        """)
        for j in range(4):
            e(f"s_xor_b32 s{sT}, s{sKQ}, {j}", f"s_lshl_b32 s{sT}, s{sT}, 4", f"s_add_u32 s{sT}, s{sT}, s3",
              f"s_mul_i32 s{sROW+j}, s{sT}, 1152")
        e(f"s_mov_b32 s{sXK}, 0", f"s_mov_b32 s{sWK}, 0")
        e(f"""
        s_waitcnt lgkmcnt(0)
        {"s_memrealtime s[90:91]" if c.stamp0 else ""}
        s_cmp_eq_u32 s{sBR}, 0
        s_cselect_b64 s[{SX}:{SX+1}], s[64:65], s[74:75]
        s_cselect_b64 s[{SWQ}:{SWQ+1}], s[70:71], s[80:81]
        s_mul_i32 s3, s{sB}, 331776
        s_add_u32 s{SX}, s{SX}, s3
        s_addc_u32 s{SX+1}, s{SX+1}, 0
        s_mov_b32 s{SX+2}, 331776
        s_mov_b32 s{SX+3}, 0x20000
        s_lshl_b32 s{sT}, s{sKQ}, 2
        s_add_u32 s{sT}, s{sT}, s{sHP}
        s_lshl_b32 s3, s{sT}, 9
        s_add_u32 s{SWQ}, s{SWQ}, s3
        s_addc_u32 s{SWQ+1}, s{SWQ+1}, 0
        s_sub_u32 s{SWQ+2}, {576*8192}, s3
        s_mov_b32 s{SWQ+3}, 0x20000
        """)

    def setup2(self):
        e = self.e; c = self.c
        cc = f2u(math.log2(math.e) / math.sqrt(128.0))
        e(f"""
        s_cmp_eq_u32 s{sBR}, 0
        s_cselect_b64 s[{SK}:{SK+1}], s[66:67], s[76:77]
        s_cselect_b64 s[{SV}:{SV+1}], s[68:69], s[78:79]
        s_cselect_b64 s[{SWO}:{SWO+1}], s[72:73], s[82:83]
        s_mul_i32 s{sKVW}, s{sW}, 4224
        v_lshrrev_b32 v9, 2, v0
        v_and_b32 v9, 2, v9
        v_lshrrev_b32 v14, 4, v0
        v_xor_b32 v9, v9, v14
        v_and_b32 v14, 15, v0
        v_lshl_add_u32 v9, v14, 2, v9
        v_lshlrev_b32 v9, 4, v9
        v_add_u32 v{vXR}, s{sXM0}, v9
        v_lshrrev_b32 v9, 2, v0
        v_mul_u32_u24 v9, 1088, v9
        v_and_b32 v14, 3, v0
        v_lshl_add_u32 v9, v14, 4, v9
        {"v_bfe_u32 v14, v0, 4, 1" if c.wq8 else ""}
        {"v_lshl_add_u32 v9, v14, 3, v9" if c.wq8 else ""}
        s_lshl_b32 s3, s{sPI}, 8
        v_add_u32 v{vWR0}, s3, v9
        s_xor_b32 s3, s3, 256
        v_add_u32 v{vWR1}, s3, v9
        s_lshl_b32 s3, s{sW}, 12
        v_lshlrev_b32 v9, 4, v0
        v_add_u32 v{vDMA}, s3, v9
        s_mov_b32 s{sC}, {cc:#x}
        s_mov_b32 s{sC+1}, {cc:#x}
        s_mov_b32 s{sTHR}, {f2u(c.thr):#x}
        s_mul_i32 s{sH}, s{sPI}, {-2*HALF}
        s_add_u32 s{sH}, s{sH}, {HALF}
        s_sub_u32 s{sDA}, {PITCH}, s{sH}
        s_sub_u32 s{sDB}, {-3*PITCH}, s{sH}
        s_lshl_b32 s{sT}, s{sKQ}, 2
        s_add_u32 s{sT}, s{sT}, s{sHP}
        s_lshl_b32 s3, s{sB}, 4
        s_add_u32 s{sT}, s{sT}, s3
        s_lshl_b32 s3, s{sT}, 19
        {"s_mov_b32 s3, 0" if self.c.kv_same else ""}
        s_add_u32 s{SK}, s{SK}, s3
        s_addc_u32 s{SK+1}, s{SK+1}, 0
        s_mov_b32 s{SK+2}, 524288
        s_mov_b32 s{SK+3}, 0x20000
        s_add_u32 s{SV}, s{SV}, s3
        s_addc_u32 s{SV+1}, s{SV+1}, 0
        s_mov_b32 s{SV+2}, 524288
        s_mov_b32 s{SV+3}, 0x20000
        s_mov_b32 s{SWO+2}, {4096*1152}
        s_mov_b32 s{SWO+3}, 0x20000
        s_mov_b32 s{SOUT}, s84
        s_mov_b32 s{SOUT+1}, s85
        s_mov_b32 s{SOUT+2}, {8*288*1152*2}
        s_mov_b32 s{SOUT+3}, 0x20000
        s_mov_b32 s{SDBG}, s86
        s_mov_b32 s{SDBG+1}, s87
        s_mov_b32 s{SDBG+2}, 256
        s_mov_b32 s{SDBG+3}, 0x20000
        s_add_u32 s{SWS}, s88, {self.c.ws_off}
        s_addc_u32 s{SWS+1}, s89, 0
        s_mov_b32 s{SWS+2}, {WS_BYTES - self.c.ws_off}
        s_mov_b32 s{SWS+3}, 0x20000
        s_lshl_b32 s3, s{sBR}, 7
        s_add_u32 s{sT}, s{sT}, s3
        s_mul_i32 s{sOB}, s{sT}, 147456
        s_lshr_b32 s3, s{sW}, 1
        s_mul_i32 s3, s3, 36864
        s_add_u32 s{sOB}, s{sOB}, s3
        s_add_u32 s{sOS}, s{sOB}, 32768
        s_lshl_b32 s3, s{sPI}, 14
        s_add_u32 s{sOB}, s{sOB}, s3
        s_mov_b32 s{sCT}, s{sD}
        s_lshl_b32 s3, s2, 2
        s_add_u32 s3, s3, s{sW}
        s_lshl_b32 s3, s3, 8
        s_add_u32 s{sSTO}, s3, {WS_STAMP}
        s_mov_b32 s{sREDO}, 0
        s_mul_i32 s3, s{sHP}, 288
        s_add_u32 s{SWO}, s{SWO}, s3
        s_addc_u32 s{SWO+1}, s{SWO+1}, 0
        s_sub_u32 s{SWO+2}, s{SWO+2}, s3
        s_lshl_b32 s{sFL}, s2, 7
        s_add_u32 s{sFL}, s{sFL}, {WS_FLAG}
        s_mul_i32 s{sOM0}, s{sW}, 9216
        s_mul_i32 s{sT2}, s{sW}, {32*1152}
        s_mul_i32 s3, s{sKQ}, {1024*1152}
        s_add_u32 s{sT2}, s{sT2}, s3
        """)
        for p in range(2):
            e(f"s_xor_b32 s3, s{sHP}, {p}", f"s_mul_i32 s{sT}, s3, {256*1152}", f"s_add_u32 s{sWR+p}, s{sT}, s{sT2}")
        for p in range(1, 4): e(f"s_xor_b32 s{sFQ+p-1}, s{sFL}, {p << 7}")
        e(f"""
        s_lshr_b32 s3, s2, 3
        s_lshl_b32 s{sT}, s{sBR}, 5
        s_add_u32 s3, s3, s{sT}
        s_mul_i32 s{sPB}, s3, {64*5120}
        s_mul_i32 s{sT}, s{sW}, 5120
        s_add_u32 s{sPB}, s{sPB}, s{sT}
        s_add_u32 s{sPB}, s{sPB}, {WS_PART}
        """)
        for t in range(9):
            e(f"v_add_u32 v9, {64*t}, v0", "v_mul_u32_u24 v9, 3641, v9", "v_lshrrev_b32 v9, 16, v9",
              "v_mul_u32_u24 v9, 864, v9", "v_lshl_add_u32 v9, v0, 4, v9")
            if t >= 4: e(f"v_add_u32 v9, {1024*(t - t % 4)}, v9")
            e(f"v_accvgpr_write_b32 a{240+t}, v9")
        e("v_and_b32 v9, 15, v0", "v_cmp_eq_u32 vcc, 0, v9", "v_mov_b32 v9, 0x3f803f80", "s_nop 0", "v_cndmask_b32 v9, 0, v9, vcc")
        for r in range(4): e(f"v_accvgpr_write_b32 a{aONE+r}, v9")
        if self.c.stop_after != "A":
            e("v_mov_b32 v9, 0", "v_and_b32 v10, 7, v0", "v_lshlrev_b32 v10, 2, v10",
              I(f"buffer_store_dword v9, v10, {srd(SWS)}, s{sFL} offen sc1", id=("flclr",)))
        self.kv_addr_init()

    def dbg_off(self, d):
        self.e(f"s_lshl_b32 s3, s{sBR}, 3", f"s_add_u32 s3, s3, s{sB}", f"s_lshl_b32 s{d}, s3, 4")

    def announce_cleared(self):
        e = self.e
        e(f"s_cmp_lg_u32 s{sW}, 0", "s_cbranch_scc1 L_ann")
        self.dbg_off(3)
        e("v_mov_b32 v11, 1", "v_lshlrev_b32 v10, 8, v0")
        self.raw([I(f"buffer_atomic_add v11, v10, {srd(SDBG)}, s3 offen sc1")])
        e("L_ann:")

    def publish(self, val):
        lab = f"L_pub{val}"
        return [I(f"s_cmp_lg_u32 s{sW}, 0"), I(f"s_cbranch_scc1 {lab}"), I(f"v_accvgpr_write_b32 a255, {val}"),
                I(f"buffer_store_dword a255, off, {srd(SWS)}, s{sFL} sc1", k="x"), I(f"{lab}:")]

    def spin(self, name, load, test):
        self.tailcode += [I(f"L_sp_{name}:"), I(f"s_mov_b32 s{sSPIN}, 0x40000"), I(f"L_spl_{name}:"), I("s_sleep 1")]
        self.tailcode += [I(x) for x in load] + [I("s_waitcnt vmcnt(0)")] + [I(x) for x in test]
        self.tailcode += [I(f"s_cbranch_scc1 L_sb_{name}"), I(f"s_sub_u32 s{sSPIN}, s{sSPIN}, 1"), I(f"s_cmp_lg_u32 s{sSPIN}, 0"),
                          I(f"s_cbranch_scc1 L_spl_{name}"), I(f"s_branch L_sb_{name}")]

    def kv_addr_init(self):
        e = self.e
        e(f"""
        v_and_b32 v9, 7, v0
        v_mul_u32_u24 v9, 1056, v9
        v_and_b32 v14, 8, v0
        v_lshl_add_u32 v9, v14, 5, v9
        v_and_b32 v14, 48, v0
        s_mul_i32 s3, s{sPI}, {HALF}
        v_add3_u32 v{vKA}, v9, v14, s3
        v_bfe_u32 v9, v0, 2, 3
        v_mul_u32_u24 v9, 1056, v9
        v_and_b32 v14, 32, v0
        v_lshl_add_u32 v9, v14, 3, v9
        v_and_b32 v14, 3, v0
        v_lshl_add_u32 v9, v14, 3, v9
        s_add_u32 s3, s3, {VBASE}
        v_add_u32 v{vVA}, s3, v9
        """)

    def dma_wq(self, i):
        slot = (i + 2) % 4
        ops = []
        for r in range(4):
            pre = [I(f"s_add_u32 m0, s{sWM0}, {slot*PITCH + r*1088}")]
            vm = I(f"buffer_load_dwordx4 v{vWD}, {srd(SWQ)}, s{sWK} offen {self.c.wq_flags} lds", id=("wq", i, r))
            ops.append((pre, [], vm, [I(f"s_add_u32 s{sWK}, s{sWK}, {8192 if r < 3 else 29*8192}")]))
        return ops
    def dma_x(self, st, js):
        boff = 0 if st == 1 else XB[0] - XB[1]
        ops = []
        for j in js:
            prev = st - (2 if st == 2 else 1)
            needs = [("xr", 2*prev, j), ("xr", 2*prev + 1, j)] if st >= 2 else []
            ops.append(([I(f"s_add_u32 m0, s{sXM0}, {boff + j*2048}")], [I(f"s_add_u32 s{sT2}, s{sROW+j}, s{sXK}")],
                        I(f"buffer_load_dwordx4 v{vXD}, {srd(SX)}, s{sT2} offen {self.c.x_flags} lds", id=("x", 2*st, j), needs=needs), []))
            post = [I(f"s_add_u32 s{sXK}, s{sXK}, 128")] if j == 4 else []
            ops.append(([I(f"s_add_u32 m0, s{sXM0}, {boff + j*2048 + 1024 - 64}")], [],
                        I(f"buffer_load_dwordx4 v{vXD}, {srd(SX)}, s{sT2} offen offset:64 {self.c.x_flags} lds", id=("x", 2*st+1, j)), post))
        return ops
    def dma_kv_static(self, which, M):
        base = (M % 4) * PITCH + (VBASE if which == "V" else 0)
        ops = []
        for i in range(4):
            same = [I(f"s_mov_b32 s{sCUR}, {M*16384}")] if i == 0 else []
            ops.append(([I(f"s_add_u32 m0, s{sKVW}, {base + 32*i}")], same,
                        I(f"buffer_load_dwordx4 v{vDMA}, {srd(SK if which == 'K' else SV)}, s{sCUR} offen offset:{i*1024} {self.c.kv_flags} lds", id=(which, M, i)), []))
        return ops
    def emit_dma_straight(self, ops):
        for pre, same, vm, post in ops:
            self.e(*pre)
            self.e(*(same or [I("s_nop 0")]))
            self.e(vm, *post)

    def qacc(self, tp, j):
        idn = tp * 4 + j if j < 4 else 64 + tp
        return ("v", 16 + 4 * idn) if idn < 60 else ("a", 160 + 4 * (idn - 60))

    def phase_q(self):
        e = self.e
        NR = 8
        aB, aA = 0, 80
        first = self.dma_wq(0) + self.dma_x(0, range(5)) + self.dma_wq(1) + self.dma_x(1, range(5)) + self.dma_wq(2) + self.dma_wq(3)
        self.emit_dma_straight(first[:self.c.n0])
        if self.c.stamp0: e("s_memrealtime s[92:93]", "s_waitcnt lgkmcnt(0)")
        self.setup2()
        self.emit_dma_straight(first[self.c.n0:self.c.nfirst])
        if self.c.stamps:
            self.nstamp = 1
            e("v_mov_b32 v15, s96", f"buffer_store_dword v15, off, {srd(SWS)}, s{sSTO}", "v_mov_b32 v15, s98", f"buffer_store_dword v15, off, {srd(SWS)}, s{sSTO} offset:4")
            if self.c.stamp0:
                self.nstamp = 3
                e("; s_memtime s_memtime", "v_mov_b32 v15, s90", f"buffer_store_dword v15, off, {srd(SWS)}, s{sSTO} offset:12", "v_mov_b32 v15, s92", f"buffer_store_dword v15, off, {srd(SWS)}, s{sSTO} offset:20")
        self.stamp()
        ms = []; start = {}; last = {}
        for i in range(18):
            for tp in range(16):
                f = 16 * i + tp
                start[f] = len(ms)
                for j in range(5 if tp < 8 else 4):
                    ms.append(I(mfma(self.qacc(tp, j), ("a", aA + 4 * (f % NR)), ("a", aB + 20 * (i % 4) + 4 * j), 0 if i == 0 else None),
                                needs=[("ar", f, 0), ("ar", f, 1), ("xr", i, j)]))
                last[f] = len(ms) - 1
        G = Gaps(ms)
        pre = []
        def aread(f, v):
            i, tp = divmod(f, 16)
            t = tp % 8
            off = ((i + 2) % 4) * PITCH + 512 * v + 64 * (t >> 1) + 8 * (t & 1)
            return I(f"ds_read_b64_tr_b16 {R('a', aA + 4*(f % NR) + 2*v, 2)}, v{vWR0 if tp < 8 else vWR1} offset:{off}", id=("ar", f, v))
        def xread(i, j):
            off = (0 if i // 2 == 1 else XB[0] - XB[1]) + 1024 * (i % 2) + 2048 * j
            return I(f"ds_read_b128 {R('a', aB + 20*(i % 4) + 4*j, 4)}, v{vXR} offset:{off}", id=("xr", i, j), needs=[("x", i, j)])
        for j in range(5): pre.append(xread(0, j))
        pre.append(I("s_barrier", needs=[("wq", 0, r) for r in range(4)]))
        if self.c.stamp0: pre += self.stamp_ins()
        for i in range(18):
            for tp in range(16):
                for v in range(2):
                    f = 16 * i + tp
                    g = 72 * i - 13 + ((2 * tp + v) * 58) // 32
                    if g % 72 == 71: g -= 1
                    if g < 0: pre.append(aread(f, v)); continue
                    assert g <= start[f] - 8
                    assert f < NR or g >= last[f - NR], (f, g)
                    assert not G.mem[g]
                    G.mem[g].append(aread(f, v))
        def free(g):
            while G.mem[g] or g % 72 == 71: g += 1
            return g
        for j in range(5): G.mem[free(46 + 2*j if not self.c.nx0 else j)].append(xread(1, j))
        tim = [(2 + 2*k, o) for k, o in enumerate(first[self.c.nfirst:])]
        assert self.c.nfirst >= 18
        for st in range(8):
            for j in range(5):
                g = 144*st + (8 + 26*j if st else 108 + 5*j)
                for i in (2*st + 2, 2*st + 3):
                    g = free(g); G.mem[g].append(xread(i, j))
                if st + 2 <= 8:
                    o = self.dma_x(st + 2, [j])
                    t = g + 8 if st else (66 + 12*j if not self.c.nx0 else 24 + 25*j)
                    tim += [(t, o[0]), (t + 3, o[1])]
        for i in range(18):
            g = 72 * i + 56
            G.waitneeds[g] += [("ar", 16 * i + 15, 1)]
            if i < 17:
                G.waitneeds[g] += [("wq", i + 1, r) for r in range(4)]
                G.waitneeds[g + 14] += ms[72 * (i + 1)].needs
            G.sal[g + 1].append(I("s_barrier"))
            if i in ((0, 3, 8) if not self.c.loop_q else (0, 1, 14)): self.stamp_gap(G, g + 1)
            if i + 4 < 18: tim += [(g + 4 + 16*r, o) for r, o in enumerate(self.dma_wq(i + 4))]
            if 2 <= i < 14:
                M, p = divmod(i - 2, 4)
                post = [I(f"s_add_u32 s{sM0}, s{sM0}, {PITCH}"), I(f"s_add_u32 s{sOFF}, s{sOFF}, 16384")] if p == 3 else []
                tim += [(g + 8, ([I(f"s_add_u32 m0, s{sM0}, {32*p}")], [],
                                  I(f"buffer_load_dwordx4 v{vDMA}, {srd(SV)}, s{sOFF} offen offset:{p*1024} {self.c.kv_flags} lds", id=("V", M, p)), post))]
            if 2 <= i < 14 and self.c.touchq:
                tim += [(g - 30, ([], [], I(f"buffer_load_dword v13, v12, {srd(SWO)}, s{sT3} offen"), [I(f"s_add_u32 s{sT3}, s{sT3}, 768")]))]
            us = sum([self.dma_kv_static(u[0], int(u[1])) for u in self.c.fill.get(i + 1, "").split()], [])
            tim += [(g + 4 + (k * (64 if i < 17 else 12)) // len(us), o) for k, o in enumerate(us)]
        tim.sort(key=lambda t: t[0])
        seq = []; g = -1; pend = []
        for t, (p, same, vm, post) in tim:
            prev = g
            g = free(max(t, g + (3 if g > 58 else 2)))
            G.mem[g].append(vm)
            for x in pend: seq.append((x, prev + 1, g - 1))
            if self.c.loop_q and prev % 288 < 144 <= g % 288 and 288 < g < 1200:
                seq.append((I(f"s_cmp_lg_u32 s{sXK}, {9*128}"), prev + 1, (g // 144) * 144 - 2))
                prev = (g // 144) * 144 - 1
            for x in p: seq.append((x, max(prev + 1, g - 2), g - 1))
            for x in same: seq.append((x, g - 1, g))
            pend = post
        assert not pend
        e(f"s_add_u32 s{sM0}, s{sKVW}, {VBASE}", f"s_mov_b32 s{sOFF}, 0")
        if self.c.touchq:
            e(f"s_lshr_b32 s3, s{sG}, 3", f"s_lshl_b32 s{sT}, s{sKQ}, 5", f"s_add_u32 s3, s3, s{sT}",
              f"s_mul_i32 s3, s3, {32*1152}", f"s_mul_i32 s{sT}, s{sW}, {8*1152}", f"s_add_u32 s3, s3, s{sT}",
              f"s_mul_i32 s{sT}, s{sHP}, 288", f"s_sub_u32 s{sT3}, s3, s{sT}",
              "v_cmp_gt_u32 vcc, 6, v0", "v_lshlrev_b32 v12, 7, v0", "v_mov_b32 v13, 0x10000000", "v_cndmask_b32 v12, v13, v12, vcc")
        if self.c.retouch and self.c.code_prefetch:
            g = 72 * 14 + 44
            G.val[g] += [I(f"s_mov_b32 s{SX}, s100"), I(f"s_mov_b32 s{SX+1}, s101")]
            G.val[g + 1] += [I(f"s_mov_b32 s{SX+2}, L_end-L_pc")]
            self.code_touch(G, g + 2, "L_qepi", 10, 11, ("ct", 0))
        self.e(*pre)
        pre2 = []
        G.place_waits(self.ws, pre2)
        if self.c.loop_q: G.unify_waits([144, 432, 720], 288)
        G.place_salu(seq)
        self.raw(pre2)
        if self.c.loop_q:
            w = [[x.t for x in G.flat(a, a + 288)] for a in (144, 432, 720)]
            assert w[0] == w[1] == w[2], [(x, y, z) for x, y, z in zip(*w) if not x == y == z][:5]
            body = G.flat(144, 432)
            assert body[-1].k == "m" and G.flat(0, 144)[-1].k == "m"
            self.raw(G.flat(0, 144) + [I("s_branch L_qloop"), I(".p2align 6"), I("L_qloop:")] + body + [I("s_cbranch_scc1 L_qloop")] + G.flat(1008))
            self.checks.append(("qloop", body + body))
        else:
            self.raw(G.flat())
        print("phase Q est cycles", G.cost(), file=sys.stderr)
        e("L_qepi:")
        self.stamp()
        def pack(src0, src1, tmp):
            o = []
            for k, (kind, b) in enumerate((src0, src1)):
                if kind == "a":
                    for r in range(4): o.append(f"v_accvgpr_read_b32 v{12+r}, a{b+r}")
                    b = 12
                o.append(f"v_pk_mul_f32 v[{b}:{b+1}], v[{b}:{b+1}], s[{sC}:{sC+1}]")
                o.append(f"v_pk_mul_f32 v[{b+2}:{b+3}], v[{b+2}:{b+3}], s[{sC}:{sC+1}]")
                o.append(f"v_cvt_pk_bf16_f32 v{tmp+2*k}, v{b}, v{b+1}")
                o.append(f"v_cvt_pk_bf16_f32 v{tmp+2*k+1}, v{b+2}, v{b+3}")
            return o
        e(f"v_add_u32 v9, {SCR}, v{vDMA}")
        for s in range(4):
            e(*pack(self.qacc(2*s, 4), self.qacc(2*s+1, 4), 4))
            e(I(f"ds_write_b128 v9, v[4:7] offset:{s*1024}", id=("qsw", s)))
        e(f"s_cmp_eq_u32 s{sPI}, 1", "s_cbranch_scc1 L_qe1")
        done = " ".join(self.c.fill.values()).split()
        st = (dict((k, list(v)) for k, v in self.ws.q.items()), dict(self.ws.done), dict(self.ws.pos))
        for pi in range(2):
            if pi == 1:
                e("L_qe1:")
                self.ws.q, self.ws.done, self.ws.pos = st
            rest = sum([self.dma_kv_static(u[0], int(u[1])) for u in "K0 K1 K2 V3 K3".split() if u not in done], [])
            nrest = len(rest); cnt = 0
            for hh in range(2):
                h = hh ^ pi
                for j in range(4):
                    for s in range(4):
                        t0 = self.qacc(8*hh + 2*s, j); t1 = self.qacc(8*hh + 2*s + 1, j)
                        assert t0[0] == "v"
                        e(*pack(t0, t1, t0[1]))
                        cnt += 1
                        d = rest.pop(0) if (rest and (nrest - len(rest)) * 32 < cnt * nrest) else None
                        if d: e(*d[0], *d[1])
                        for r in range(4): e(f"v_accvgpr_write_b32 a{aQ[h] + (j*4+s)*4 + r}, v{t0[1]+r}")
                        if d: e(d[2])
            assert not rest
            if pi == 0: e("s_branch L_qe2")
        e("L_qe2:")
        self.stamp()
        e(I("s_barrier", needs=[("qsw", 3)] + [(k, 0, i) for k in "KV" for i in range(4)]))
        if self.c.stop_after != "A": self.announce_cleared()
        e(f"s_lshl_b32 s3, s{sPI}, 12", "v_subrev_u32 v9, s3, v9")
        for h in range(2):
            for s in range(4):
                e(I(f"ds_read_b128 {R('a', aQ[h] + (16+s)*4, 4)}, v9 offset:{h*4096 + s*1024}", id=("qsr", h, s)))
        for j in range(5): e(f"v_mov_b32 v{vNM+4*j}, 0xff800000")

    def attn_mfmas(self, h, nwin, first=True, lastw=True):
        ms = []; cstart = {}; cend = {}; pv = {}; wstart = []
        tcount = [0]; sslot = {}
        def chain(n, T, j):
            sl = tcount[0] % NS; tcount[0] += 1
            sslot[(n, T, j)] = sl
            cstart[(n, T, j)] = len(ms)
            for s in range(4):
                ms.append(I(mfma(("v", vS + 4*sl), ("a", aK + 16*T + 4*s), ("a", aQ[h] + (j*4+s)*4), ("v", vNM + 4*j) if s == 0 else None),
                            needs=[("kr", h, n, T, s)]))
            cend[(n, T, j)] = len(ms) - 1
        def pvm(n, dt, j):
            f = 8*n + dt
            pv[(n, dt, j)] = len(ms)
            ms.append(I(mfma(("v", vO + (j*8+dt)*4), ("a", aV + 4*(f % NV)), ("v", vP[n % 2] + 4*j), 0 if (n == 0 and first) else None),
                        needs=[("vr", h, f, 0), ("vr", h, f, 1)]))
        def onem(n, j):
            ms.append(I(mfma(("a", aL + 4*j), ("a", aONE), ("v", vP[n % 2] + 4*j), 0 if (n == 0 and first) else None)))
        for m in range(nwin):
            wstart.append(len(ms))
            for c in range(8):
                chain(2*m+1, c >> 2, c & 3)
                for j in range(5): pvm(2*m, c, j)
                if c - 2 in self.c.ones: onem(2*m, c - 2)
            lst = [(dt, j) for dt in range(8) for j in range(4)]
            cnt = self.c.cnt
            for c in range(10):
                if not (lastw and m == nwin - 1): chain(2*m+2, c // 5, c % 5)
                for _ in range(cnt[c]):
                    dt, j = lst.pop(0); pvm(2*m+1, dt, j)
                for j in range(4):
                    if self.c.onepos[j] == c and j in self.c.ones: onem(2*m+1, j)
        wstart.append(len(ms))
        return ms, cstart, cend, pv, sslot, wstart

    def code_touch(self, G, g, lab, vt, vd, idn):
        if not (self.c.retouch and self.c.code_prefetch): return
        if self.c.cp_split:
            G.val[g] += [I(f"v_lshrrev_b32 v{vt}, 3, v0")]
            G.val[g + 1] += [I(f"v_lshlrev_b32 v{vt}, 24, v{vt}")]
            G.val[g + 2] += [I(f"v_lshl_add_u32 v{vt}, v0, 7, v{vt}")]
            G.val[g + 3] += [I(f"v_mov_b32 v{vd}, s{sCT}")]
            G.val[g + 4] += [I(f"v_lshl_add_u32 v{vt}, v{vd}, 10, v{vt}"), I(f"s_mov_b32 s{sWK}, {lab}-L_pc")]
        else:
            G.val[g] += [I(f"v_lshlrev_b32 v{vt}, 3, v{vDMA}")]
            G.val[g + 1] += [I(f"v_and_b32 v{vd}, 0x1f80, v{vt}")]
            G.val[g + 2] += [I(f"v_lshrrev_b32 v{vt}, 2, v{vt}")]
            G.val[g + 3] += [I(f"v_and_b32 v{vt}, 0x6000, v{vt}")]
            G.val[g + 4] += [I(f"v_or_b32 v{vt}, v{vt}, v{vd}"), I(f"s_mov_b32 s{sWK}, {lab}-L_pc")]
        g += 6
        while G.mem[g]: g += 1
        G.mem[g].append(I(f"buffer_load_dword v{vd}, v{vt}, {srd(SX)}, s{sWK} offen", id=idn))

    def o_stores(self, h, vaddr):
        ops = []
        for j in range(4):
            for s in range(4):
                src = R("a", (j*4+s)*4, 4) if h == 0 else R("v", 16 + (j*4+s)*4, 4)
                ops.append(([], [], I(f"buffer_store_dwordx4 {src}, v{vaddr}, {srd(SWS)}, s{90+j} offen offset:{s*1024} {self.c.o_flags}", id=("os", h, j, s)), []))
        return ops

    def kread(self, h, n, T, s):
        return I(f"ds_read_b128 {R('a', aK + 16*T + 4*s, 4)}, v{vKA} offset:{512*T + 64*s}", id=("kr", h, n, T, s))
    def vread(self, h, f, v):
        return I(f"ds_read_b64_tr_b16 {R('a', aV + 4*(f % NV) + 2*v, 2)}, v{vVA} offset:{512*v + 32*(f % 8)}", id=("vr", h, f, v))

    def attn_schedule(self):
        NW = 8
        ms, cstart, cend, pv, sslot, wstart = self.attn_mfmas(0, NW, first=False, lastw=False)
        n = len(ms)
        mem = {}
        def put(g, key):
            while g in mem: g += 1
            mem[g] = key; return g
        rel = {}
        W = self.W = wstart[1]
        cs = lambda dn, T, j: cstart[(2 + dn, T, j)] - W
        bar = rel["bar"] = cs(1, 1, 0) + 3
        bodyo = rel["bodyo"] = cs(2, 0, 0)
        for i in range(4): rel[("dK", i)] = put(bar + self.c.kpos[0] + i * self.c.kpos[1], 1)
        for i in range(4): rel[("dV", i)] = put(self.c.vpos[0] + i * self.c.vpos[1], 1)
        first = {f: pv[(2 + f // 8, f % 8, 0)] - W for f in range(-4, 16)}
        lastu = {f: pv[(2 + f // 8, f % 8, 4 if (f // 8) % 2 == 0 else 3)] - W for f in range(-4, 16)}
        for f in range(16):
            g = max(first[f - 2], lastu[f - 4] + 1)
            for v in range(2):
                gg = g % W
                g2 = put(gg, 1)
                rel[("vr", f, v)] = g + (g2 - gg)
                g = rel[("vr", f, v)] + 2
                assert rel[("vr", f, v)] <= first[f] - 7, (f, v, rel[("vr", f, v)], first[f])
        for (dn, T), g0 in (((1, 1), 1), ((2, 0), bar + 3), ((2, 1), bodyo + 1), ((3, 0), cs(2, 1, 0) + 1)):
            for s in range(4):
                rel[("kr", dn, T, s)] = put(g0 + 6 * s, 1)
                assert rel[("kr", dn, T, s)] <= cs(dn, T, 0) + s - 7
        rel["barv"] = rel[("vr", 0, 0)] + W - 2
        assert rel["barv"] - rel[("vr", 15, 1)] >= 5 and rel[("dV", 3)] < bar
        rel[("ka", 0)] = rel[("kr", 1, 1, 3)] + 1
        rel[("ka", 1)] = rel[("kr", 2, 1, 3)] + 1
        rel[("va", 0)] = rel[("vr", 7, 1)]
        rel[("va", 1)] = rel[("vr", 15, 1)]
        assert rel[("vr", 8, 0)] > rel[("va", 0)] and rel[("vr", 0, 0)] + W > rel[("va", 1)]
        used = [0] * W
        for k, g in rel.items():
            if isinstance(k, str): continue
            used[g % W] += 2 if k[0] in ("dK", "dV") else 1
        used[W - 1] += 2
        tiles = sorted(cend, key=lambda t: cend[t])
        place = {}
        eq = []
        sm = []
        ti = 0
        for g in range(n):
            while ti < len(tiles) and cend[tiles[ti]] + self.c.edelay <= g:
                eq += [(tiles[ti], r) for r in range(4)]; ti += 1
            u = used[g % W]
            rdy = [x for x in sm if x[1] <= g]
            backlog = 3.5 * len(eq) + len(sm)
            budget = 3 if (backlog > self.c.backlog and g % W != W - 1) else 2
            def take_small():
                rdy.sort(); x = rdy.pop(0); sm.remove(x); place[x[2]] = g
            def take_e():
                t, r = eq.pop(0); place[("e", t, r)] = g
                if t[2] not in self.c.ones: sm.append(((cend[t], 1, r), g + 1, ("a", t, r)))
                if r % 2: sm.append(((cend[t], 0, r), g + 1, ("c", t, r // 2)))
            if u == 0 and eq and len(rdy) < 4:
                take_e(); u += 2
            elif u == 1 and budget == 3 and eq and len(rdy) < 2:
                take_e(); u += 2
            while u < budget and rdy:
                take_small(); u += 1
        def wrel(m):
            d = {}
            for k, g in place.items():
                nn, T, j = k[1]
                if nn in (2*m+1, 2*m+2): d[(k[0], nn - 2*m, T, j, k[2])] = g - W * m
            return d
        a, b = wrel(4), wrel(5)
        assert a == b, "VALU schedule not periodic"
        rel.update(a)
        self.rel = rel

    def head(self, h):
        e = self.e; rel = self.rel; c = self.c; W = self.W
        nloop_end = 13 if h == 1 else 15
        nloop_start = 1
        e(f"L_head{h}:")
        e(f"s_mov_b32 s{sOFF}, {(16*h+4)*16384}", f"s_mov_b32 s{sKO}, {(16*h+4)*16384}", f"s_mov_b32 s{sWIN}, 0",
          f"s_mov_b32 s{sD}, s{sDA}", f"s_add_u32 s{sDUM}, s{sKVW}, {SCR}", f"s_add_u32 s{sM0}, s{sKVW}, {VBASE}",
          f"s_lshr_b32 s{sT}, s{sG}, 3", f"s_and_b32 s3, s{sT}, {c.stag[0]}", f"s_lshl_b32 s{sXK}, {c.kmask[h]}, s3",
          f"s_xor_b32 s3, s{sT}, 2", f"s_and_b32 s3, s3, {c.stag[1]}", f"s_lshl_b32 s{sXM0}, {c.vmask[h]}, s3")
        assert max(c.kmask[h] << c.stag[0], c.vmask[h] << c.stag[1]) < 1 << nloop_end and c.kmask[h] and not (c.kmask[h] | c.vmask[h]) & 1
        unit = {}; nxt = {"dK": 16*h + 4, "dV": 16*h + 4}
        for m in range(16):
            for kind, mask in (("dV", c.vmask[h] | 1), ("dK", c.kmask[h])):
                if mask >> m & 1: unit[(kind, m)] = None if m else "x"
                elif nxt[kind] < 32: unit[(kind, m)] = nxt[kind]; nxt[kind] += 1
                else: unit[(kind, m)] = "x"; assert m >= nloop_end
        if h == 0:
            self.refill = [(k[1], u) for u in range(16, 20) for k in ("dK", "dV") if u >= nxt[k]]
        self.stamp()
        for T in range(2):
            for s in range(4): e(self.kread(h, 0, T, s))
        e(f"v_add_u32 v{vKA}, s{sH}, v{vKA}")
        tS = lambda T, j: vO + (j*2 + T) * 4
        refill = self.dma_kv_static(*self.refill[-1]) if h == 1 else []
        for j in range(5):
            for T in range(2):
                for s in range(4):
                    nd = [("kr", h, 0, T, s)] + ([("qsr", 1, 3)] if (h == 0 and j == 4) else [])
                    e(I(mfma(("v", tS(T, j)), ("a", aK + 16*T + 4*s), ("a", aQ[h] + (j*4+s)*4), 0 if s == 0 else None), needs=nd))
                    if refill and j in (1, 4) and T == 0:
                        if s == 0: e(*refill[0][0])
                        if s == 1: e(*refill[0][1], refill.pop(0)[2])
        ms, cstart, cend, pv, sslot, wstart = self.attn_mfmas(h, 16)
        G = Gaps(ms)
        early = []
        lastw = 15
        full, fcs, fce, fpv, _, _ = self.attn_mfmas(h, 16, lastw=False)
        dropped = set()
        for k, st in fcs.items():
            if k[0] == 32: dropped.update(range(st, st + 4))
        amap = []; a = -1
        for g in range(len(full)):
            if g not in dropped: a += 1
            amap.append(a)
        def at(m, g):
            p = W * m + g
            if p < 0: return None
            return amap[p]
        seq = []
        for m in range(-1, 16):
            items = []
            for k, g in rel.items():
                if isinstance(k, str): continue
                kind = k[0]
                if kind == "kr":
                    n = 2*m + k[1]
                    if n < 1 or n > 31: continue
                    items.append((g, "mem", self.kread(h, n, k[2], k[3])))
                elif kind == "vr":
                    if m < 0: continue
                    items.append((g, "mem", self.vread(h, 16*m + k[1], k[2])))
                elif kind in ("dK", "dV"):
                    if m < 0 or unit[(kind, m)] == "x": continue
                    i = k[1]; u = unit[(kind, m)]
                    items.append((g, "mem", I(f"buffer_load_dwordx4 v{vDMA}, {srd(SV if kind == 'dV' else SK)}, s{sCUR} offen offset:{i*1024} {c.kv_flags} lds",
                                              id=(kind[1], u, i) if u else None)))
                elif kind == "ka":
                    if m < 0 or (m == 15 and k[1] == 1): continue
                    items.append((g, "val", I(f"v_add_u32 v{vKA}, s{sD if k[1] == 0 else sH}, v{vKA}")))
                elif kind == "va":
                    if m < 0: continue
                    items.append((g, "val", I(f"v_add_u32 v{vVA}, s{sH if k[1] == 0 else sD}, v{vVA}")))
                else:
                    n = 2*m + k[1]
                    if n < 1 or n > 31: continue
                    T, j, r = k[2], k[3], k[4]
                    g_key = g
                    while n == 31 and kind != "a" and at(m, g) > pv[(n, 0, j)] - (2 if kind == "c" else 3): g -= 1
                    S = vS + 4 * sslot[(n, T, j)]
                    if kind == "e": x = I(f"v_exp_f32 v{S+r}, v{S+r}")
                    elif kind == "a": x = I(f"v_add_f32 v{vL+j}, v{vL+j}, v{S+r}")
                    else:
                        x = I(f"v_cvt_pk_bf16_f32 v{vP[n % 2] + 4*j + 2*T + r}, v{S+2*r}, v{S+2*r+1}")
                        assert at(m, g) <= pv[(n, 0, j)] - 2, ("late cvt", n, T, j)
                    x.key = (W*m + g_key, cend[(n, T, j)], {"e": 2, "c": 0, "a": 1}[kind], r)
                    nxt = [t for t in cstart if cstart[t] > cstart[(n, T, j)] and sslot[t] == sslot[(n, T, j)]]
                    if nxt: assert at(m, g) < min(cstart[t] for t in nxt), ("S slot reuse", n, T, j)
                    items.append((g, "val", x))
            items.sort(key=lambda t: t[0])
            for g, where, x in items:
                p = at(m, g)
                if p is None: early.append(x)
                else: getattr(G, where)[p].append(x)
            if m >= 0:
                M = 16*h + m
                g = at(m, rel["bar"])
                G.waitneeds[g] += [("kr", h, 2*m+1, 1, 3)]
                if M < 31: G.waitneeds[g] += [("K", M+1, i) for i in range(4)]
                G.sal[g + 1].append(I("s_barrier"))
                if m < 15:
                    gv = at(m, rel["barv"])
                    G.waitneeds[gv] += [("vr", h, 16*m + 15, 1)] + [("V", M+1, i) for i in range(4)]
                    G.sal[gv + 1].append(I("s_barrier"))
                if c.wtrace and not (h == 1 and m >= 13):
                    G.val[g + 1] += [I("s_memrealtime s[96:97]"), I(f"s_mov_b32 m0, s{sWIN}"), I("s_waitcnt lgkmcnt(0)"), I(f"v_writelane_b32 v{15 if h == 0 else 6}, s96, m0")]
                if h == 1 and m == c.touch_win and c.touch13 and c.stop_after != "A":
                    G.val[at(m, 2)] += [I("v_lshlrev_b32 v12, 7, v0")]
                    G.val[at(m, 3)] += [I("v_and_b32 v14, 0x380, v12")]
                    G.val[at(m, 5)] += [I("v_add_u32 v14, 0x2000, v14")]
                    if c.touch_pair:
                        for gg, va in ((at(m, c.touch_pos - 4), 12), (at(m, c.touch_pos - 2), 14)):
                            while G.mem[gg]: gg += 1
                            G.mem[gg].append(I(f"buffer_load_dword v9, v{va}, {srd(SWQ)}, s{sC} offen {c.touch_flags}"))
                    for gg, va in ((at(m, c.touch_pos), 12), (at(m, c.touch_pos + 6), 14)):
                        while G.mem[gg]: gg += 1
                        G.mem[gg].append(I(f"buffer_load_dword v9, v{va}, {srd(SWQ)}, s{sT3} offen {c.touch_flags}", id=("touch", va)))
                def group(kind, sptr, smask, base, lo, first):
                    return [(I(t), lo, first - 1) for t in (
                        f"s_bfe_u32 s{sT}, s{sptr}, 0x2000e", f"s_mul_i32 s{sT}, s{sT}, {PITCH}", f"s_add_u32 s{sT}, s{sT}, s{base}",
                        f"s_bitcmp1_b32 s{smask}, s{sWIN}", f"s_cselect_b32 m0, s{sDUM}, s{sT}", f"s_cselect_b32 s{sCUR}, s{sTHR}, s{sptr}",
                        f"s_cselect_b32 s{sT}, 0, 0x4000", f"s_add_u32 s{sptr}, s{sptr}, s{sT}")]
                lo = at(m, 0)
                if unit[("dV", m)] != "x":
                    for i in range(1, 4):
                        seq.append((I("s_add_u32 m0, m0, 32"), at(m, rel[("dV", i - 1)]) + 1, at(m, rel[("dV", i)]) - 1))
                    lo = at(m, rel[("dV", 3)]) + 1
                if c.wtrace: lo = g + 2
                if unit[("dK", m)] != "x":
                    seq += group("dK", sKO, sXK, sKVW, lo, at(m, rel[("dK", 0)]))
                    for i in range(1, 4):
                        seq.append((I("s_add_u32 m0, m0, 32"), at(m, rel[("dK", i - 1)]) + 1, at(m, rel[("dK", i)]) - 1))
                    lo = at(m, rel[("dK", 3)]) + 1
                if h == 1 and m >= 14 and c.stop_after != "A":
                    assert len(c.ones) == 5
                    vt = [4, 5, 6, 7, 8, 9, 12, 14, 15]
                    if m == 14:
                        for t in range(9):
                            G.val[g + 2 + t].append(I(f"v_accvgpr_read_b32 v{vt[t]}, a{240+t}", needs=[] if t else ([("touch", 14)] if c.touch13 else []) + ([("ct", 2)] if c.retouch and c.code_prefetch else [])))
                        tim = [(at(m, c.wo_pos[0] + c.wo_pos[1] * k), o) for k, o in enumerate(self.dma_wo(0, vt))]
                    else:
                        tim = [(at(m, 2 + 4 * k), o) for k, o in enumerate(self.dma_wo(2, vt))]
                        tim += [(g + 4 + 6 * k, o) for k, o in enumerate(self.dma_wo(1, vt))]
                    gg = lo
                    for t, (p_, same, vm, post) in tim:
                        gg = max(gg + 2, t)
                        while G.mem[gg]: gg += 1
                        G.mem[gg].append(vm)
                        for x in p_: seq.append((x, gg - 1, gg - 1))
                        for x in same: seq.append((x, gg - 1, gg))
                    lo = gg + 1
                if m == 15: continue
                seq.append((I(f"s_add_u32 s{sWIN}, s{sWIN}, 1"), lo, at(m, W - 12)))
                if unit[("dV", m + 1)] != "x" or m < nloop_end: seq += group("dV", sOFF, sXM0, sM0, lo, at(m, W - 4))
                g1 = max(lo, at(m, rel[("va", 1)]) + 1)
                for t in (f"s_and_b32 s{sT}, s{sWIN}, 3", f"s_cmp_eq_u32 s{sT}, 3"): seq.append((I(t), lo, at(m, W - 3)))
                seq.append((I(f"s_cselect_b32 s{sD}, s{sDB}, s{sDA}"), g1, at(m, W - 2)))
                if nloop_start <= m < nloop_end:
                    seq.append((I(f"s_cmp_lg_u32 s{sWIN}, {nloop_end}"), g1, at(m, W - 2)))
        if h == 1:
            for k, o in enumerate(self.o_stores(0, 13)):
                gg = wstart[13] + c.o0_pos[0] + k * c.o0_pos[1]
                while G.mem[gg] or any(x.k == "e" for x in G.val[gg]): gg += 1
                G.mem[gg].append(o[2])
        if h == 0: self.code_touch(G, wstart[15] + 1, "L_hepi0", 10, 11, ("ct", 1))
        else: self.code_touch(G, wstart[13] + 1, "L_hepi1", 4, 5, ("ct", 2))
        e(*[x for x in early if x.k == "ds"])
        assert all(x.k == "ds" for x in early)
        tm = lambda j: vS + j
        tt = lambda j: vS + 8 + j
        for j in range(5):
            b = tS(0, j)
            e(f"v_max3_f32 v{tm(j)}, v{b}, v{b+1}, v{vNM+4*j}", f"v_max3_f32 v{tt(j)}, v{b+2}, v{b+3}, v{b+4}",
              f"v_max3_f32 v{tm(j)}, v{b+5}, v{b+6}, v{tm(j)}", f"v_max3_f32 v{tm(j)}, v{b+7}, v{tt(j)}, v{tm(j)}")
        self.xlane([tm(j) for j in range(5)], [tt(j) for j in range(5)], "v_max_f32")
        for j in range(5):
            for r in range(4): e(f"v_sub_f32 v{vNM+4*j+r}, 0, v{tm(j)}")
        for j in range(5):
            b = tS(0, j)
            for r in range(0, 8, 2): e(f"v_pk_add_f32 v[{b+r}:{b+r+1}], v[{b+r}:{b+r+1}], v[{vNM+4*j}:{vNM+4*j+1}]")
            dm = refill.pop(0) if (refill and j in (0, 4)) else None
            if dm: e(*dm[0])
            for r in range(8): e(f"v_exp_f32 v{b+r}, v{b+r}")
            if dm: e(dm[2])
        for j in range(5):
            b = tS(0, j)
            for r in range(4): e(f"v_cvt_pk_bf16_f32 v{vP[0]+4*j+r}, v{b+2*r}, v{b+2*r+1}")
            if j in c.ones: continue
            e(f"v_pk_add_f32 v[{b}:{b+1}], v[{b}:{b+1}], v[{b+2}:{b+3}]", f"v_pk_add_f32 v[{b+4}:{b+5}], v[{b+4}:{b+5}], v[{b+6}:{b+7}]",
              f"v_pk_add_f32 v[{b}:{b+1}], v[{b}:{b+1}], v[{b+4}:{b+5}]", f"v_add_f32 v{vL+j}, v{b}, v{b+1}")
        full_o = (h == 1 and c.stop_after != "A")
        if h == 1:
            e("v_lshlrev_b32 v13, 4, v0")
            for j in range(4): e(f"s_add_u32 s{90+j}, s{sOB}, {j*4096}")
            e(f"s_mul_i32 s3, s{sHP}, 288", f"s_sub_u32 s{SWQ}, s{SWO}, s3", f"s_subb_u32 s{SWQ+1}, s{SWO+1}, 0", f"s_add_u32 s{SWQ+2}, s{SWO+2}, s3",
              f"s_lshr_b32 s3, s{sG}, 3", f"s_lshl_b32 s{sT}, s{sKQ}, 5", f"s_add_u32 s3, s3, s{sT}",
              f"s_mul_i32 s3, s3, {32*1152}", f"s_mul_i32 s{sT}, s{sW}, {8*1152}", f"s_add_u32 s{sT3}, s3, s{sT}")
            if c.touch_pair:
                e(f"s_add_u32 s{sC}, s{sT3}, {1024*1152}", f"s_bitcmp1_b32 s{sKQ}, 0", f"s_cselect_b32 s{SWQ+2}, 0, s{SWQ+2}")
        if full_o:
            self.dbg_off(sWM0)
            dload = f"buffer_load_dword v11, off, {srd(SDBG)}, s{sWM0} sc1"
            e(I(dload, id=("dbgp",)))
        self.stamp()
        for g in range(len(ms)):
            G.val[g].sort(key=lambda x: x.key or (0, 0, 0, 0))
        if c.wtrace:
            g = wstart[16] - 3 if h == 0 else wstart[13] + 20
            G.val[g] += [I("v_lshlrev_b32 v7, 2, v0"), I(f"s_add_u32 s99, s{sSTO}, {0x100000 * (h + 1)}"), I(f"buffer_store_dword v{15 if h == 0 else 6}, v7, {srd(SWS)}, s99 offen", k="x")]
        if full_o:
            test = ["v_readfirstlane_b32 s3, v11", "s_cmp_ge_u32 s3, 16"]
            g = wstart[14] + 3
            G.val[g] += [I(test[0], needs=[("dbgp",)])]
            G.val[g + 9] += [I(test[1]), I("s_cbranch_scc0 L_sp_dbg"), I("L_sb_dbg:")]
            self.spin("dbg", [dload], test)
        pre = []
        G.place_waits(self.ws, pre)
        G.unify_waits([wstart[m] for m in range(nloop_start, nloop_end)], W)
        G.place_salu(seq)
        self.raw(pre)
        win = [[x.t for x in G.flat(wstart[m], wstart[m+1])] for m in range(16)]
        import re
        for m in range(nloop_start, nloop_end - 1):
            assert len(win[m]) == len(win[nloop_end - 1]), f"window {m} differs"
            for x, y in zip(win[m], win[nloop_end - 1]):
                if x == y: continue
                nx, ny = re.search(r"vmcnt\((\d+)\)", x), re.search(r"vmcnt\((\d+)\)", y)
                assert nx and ny and int(nx.group(1)) >= int(ny.group(1)) and re.sub(r"vmcnt\(\d+\)", "", x) == re.sub(r"vmcnt\(\d+\)", "", y), (m, x, y)
        print(f"head {h}: window est cycles", G.cost(wstart[1], wstart[2]), "instrs", len(win[1]), file=sys.stderr)
        self.raw(G.flat(0, wstart[nloop_start]))
        self.raw([I(f"s_branch L_loop{h}"), I(".p2align 6"), I(f"L_loop{h}:")])
        body = G.flat(wstart[nloop_end - 1], wstart[nloop_end])
        assert body[-1].k == "m", body[-3:]
        self.raw(body)
        self.raw([I(f"s_cbranch_scc1 L_loop{h}")])
        self.checks.append((f"loop{h}", body + body))
        self.raw(fix_hazards(G.flat(wstart[nloop_end], wstart[16])))
        e(f"L_hepi{h}:")
        if c.lite: e(f"s_memrealtime s[{68 if h == 0 else 96}:{69 if h == 0 else 97}]", "s_waitcnt lgkmcnt(0)")
        self.stamp()
        self.head_epilogue(h)

    def xlane(self, xs, ts, op):
        e = self.e
        for sw in ("v_permlane32_swap_b32", "v_permlane16_swap_b32"):
            for x, t in zip(xs, ts): e(f"v_mov_b32 v{t}, v{x}")
            if len(xs) < 3: e("s_nop 1")
            for k, (x, t) in enumerate(zip(xs, ts)): e(f"{sw} v{t}, v{x}")
            for x, t in zip(xs, ts): e(f"{op} v{x}, v{x}, v{t}")

    def head_epilogue(self, h):
        e = self.e
        O = lambda j, dt: vO + (j*8 + dt) * 4
        if self.c.ones: e("s_nop 7")
        for j in sorted(self.c.ones, key=lambda j: (j + 1) % 5): e(f"v_accvgpr_read_b32 v{vL+j}, a{aL+4*j}")
        self.xlane([vL + j for j in range(5)], [vS + j for j in range(5)], "v_add_f32")
        ct = [("ct", 1)] if (h == 0 and self.c.retouch and self.c.code_prefetch) else []
        e(f"v_add_f32 v10, v{vL}, v{vL+1}", I(f"v_add_f32 v11, v{vL+2}, v{vL+3}", needs=ct),
          f"v_add_f32 v10, v10, v{vL+4}", "v_add_f32 v10, v10, v11",
          f"v_cmp_nge_f32 vcc, s{sTHR}, v10", "s_cmp_lg_u64 vcc, 0", f"s_cselect_b32 s3, 1, 0",
          f"v_mov_b32 v12, s3", f"s_lshl_b32 s3, s{sW}, 2", f"s_add_u32 s3, s3, {MISC + 2048}", "v_mov_b32 v13, s3",
          I("ds_write_b32 v13, v12", id=("fw", h)))
        e(f"v_add_u32 v9, {SCR}, v{vDMA}")
        e(f"v_xor_b32 v10, 4096, v{vDMA}", f"v_add_u32 v10, {SCR}, v10")
        e(f"v_lshrrev_b32 v11, 1, v{vDMA}", "v_and_b32 v11, 0x1f8, v11", f"s_lshl_b32 s3, s{sW}, 9", f"s_add_u32 s3, s3, {MISC}",
          "v_add_u32 v11, s3, v11", f"v_mov_b32 v12, v{vL+4}", f"v_mov_b32 v13, v{vNM+16}",
          I("ds_write_b64 v11, v[12:13]", id=("lw", h)), "v_xor_b32 v11, 512, v11")
        e(f"s_cmp_eq_u32 s{sPI}, 1", f"s_cbranch_scc1 L_he1_{h}")
        st = (dict((k, list(v)) for k, v in self.ws.q.items()), dict(self.ws.done), dict(self.ws.pos))
        for pi in range(2):
            if pi == 1:
                e(f"L_he1_{h}:")
                self.ws.q, self.ws.done, self.ws.pos = st
            for k in range(4):
                e(I(f"ds_write_b128 v10, {R('v', O(4, 4*(1-pi) + k), 4)} offset:{k*1024}", id=("ow", h, k)))
            if pi == 1:
                e("s_nop 1")
                for r in range(16): e(f"v_mov_b32 v{O(4, 0) + r}, v{O(4, 4) + r}")
            if pi == 0: e("s_branch L_he2_%d" % h)
        e(f"L_he2_{h}:")
        for j in range(4): e(f"v_rcp_f32 v{vL+j}, v{vL+j}")
        pub = h == 1 and self.c.stop_after != "A"
        e(I("s_barrier", needs=[("ow", h, 3)] + ([("os", 0, 3, 3)] if pub else [])))
        if pub: self.raw(self.publish(1))
        e(f"v_mov_b32 v14, {MISC + 2048}")
        e(I(f"ds_read_b128 v[{vS}:{vS+3}], v14", id=("fr", h)))
        e(I(f"ds_read_b64 v[14:15], v11", id=("lr", h)))
        for k in range(4):
            e(I(f"ds_read_b128 {R('v', O(4, 4 + k), 4)}, v9 offset:{k*1024}", id=("or", h, k)))
        e(I(f"v_or3_b32 v{vS}, v{vS}, v{vS+1}, v{vS+2}", needs=[("fr", h)]), f"v_or_b32 v{vS}, v{vS}, v{vS+3}", "s_nop 0",
          f"v_readfirstlane_b32 s3, v{vS}", f"s_andn2_b32 s3, s3, s{sREDO}", f"s_cbranch_scc1 L_redo{h}",
          f"s_mov_b32 s{sREDO}, 0")
        refill = sum([self.dma_kv_static(*u) for u in self.refill[:-1]], []) if h == 0 else []
        nref = len(refill)
        e(I("v_min_f32 v11, v13, v15", needs=[("lr", h)]), "v_sub_f32 v13, v11, v13", "v_sub_f32 v15, v11, v15",
          "v_exp_f32 v13, v13", "v_exp_f32 v15, v15", "s_nop 0", "v_mul_f32 v12, v12, v13", "v_fmac_f32 v12, v14, v15",
          "v_rcp_f32 v12, v12", "s_nop 0", "v_mul_f32 v14, v12, v15", "v_mul_f32 v12, v12, v13")
        b0, b1 = O(4, 0), O(4, 4)
        for r in range(0, 16, 2):
            e(f"v_pk_mul_f32 v[{b0+r}:{b0+r+1}], v[{b0+r}:{b0+r+1}], v[12:13] op_sel_hi:[1,0]")
        for r in range(0, 16, 2):
            e(I(f"v_pk_fma_f32 v[{b0+r}:{b0+r+1}], v[{b1+r}:{b1+r+1}], v[14:15], v[{b0+r}:{b0+r+1}] op_sel_hi:[1,0,1]", needs=[("or", h, r // 4)]))
        for r in range(8): e(f"v_cvt_pk_bf16_f32 v{b0+r}, v{b0+2*r}, v{b0+2*r+1}")
        e(f"v_and_b32 v13, 0x3ff, v{vDMA}", f"s_lshl_b32 s3, s{sPI}, 11", f"s_add_u32 s3, s3, s{sOS}")
        if h: e(f"s_add_u32 s3, s3, 73728")
        for k in range(2):
            e(I(f"ds_write_b128 v9, v[{b0+4*k}:{b0+4*k+3}] offset:{k*1024}", id=("pw", h, k)))
            e(I(f"buffer_store_dwordx4 v[{b0+4*k}:{b0+4*k+3}], v13, {srd(SWS)}, s3 offen offset:{k*1024} {self.c.o_flags}", id=("os", h, 4, k)))
        if h == 1:
            for j in range(4): e(f"s_add_u32 s{90+j}, s{sOB}, {73728 + j*4096}")
        for j in range(4):
            e(f"s_add_u32 s3, s{sOB}, {h*73728 + j*4096}")
            for s in range(4):
                b = O(j, 2*s)
                p = (vL + j) & ~1
                sel = "op_sel:[0,1] op_sel_hi:[1,1]" if (vL + j) & 1 else "op_sel_hi:[1,0]"
                for r in range(0, 8, 2):
                    e(f"v_pk_mul_f32 v[{b+r}:{b+r+1}], v[{b+r}:{b+r+1}], v[{p}:{p+1}] {sel}")
                d = 16 + (j*4 + s) * 4
                for r in range(4): e(f"v_cvt_pk_bf16_f32 v{d+r}, v{b+2*r}, v{b+2*r+1}")
                if h == 1 and self.c.o1_epi and self.c.stop_after != "A":
                    k0, k1 = ((j*4 + s) * self.c.o1_epi) // 16, ((j*4 + s + 1) * self.c.o1_epi) // 16
                    for k in range(k0, k1): e(self.o_stores(1, 13)[k][2])
                if self.c.stop_after == "A" and h == 1:
                    e(I(f"buffer_store_dwordx4 v[{d}:{d+3}], v13, {srd(SWS)}, s3 offen offset:{s*1024} sc1", id=("os", h, j, s)))
                if h == 0:
                    dm = refill.pop(0) if (refill and (nref - len(refill)) * 16 < (j*4 + s + 1) * nref) else None
                    if dm: e(*dm[0], *dm[1])
                    for r in range(4): e(f"v_accvgpr_write_b32 a{(j*4+s)*4 + r}, v{d+r}")
                    if dm: e(dm[2])
        assert not refill
        e(I("s_barrier", needs=[("pw", h, 1)] + ([("V", 16, 3)] if h == 0 else [])))
        e(f"s_lshl_b32 s3, s{sPI}, 12", "v_subrev_u32 v9, s3, v9")
        for s in range(4):
            dst = R("a", 64 + 4*s, 4) if h == 0 else R("v", 80 + 4*s, 4)
            e(I(f"ds_read_b128 {dst}, v9 offset:{(s >> 1)*4096 + (s & 1)*1024}", id=("pr", h, s)))
        if h == 0:
            e("s_nop 1")
            for j in range(5): e(f"v_mov_b32 v{vNM+4*j}, 0xff800000")

    def redo(self, h):
        e = self.e
        save = self.ws; self.ws = WaitState()
        e(f"L_redo{h}:", "s_waitcnt vmcnt(0) lgkmcnt(0)", "s_barrier", f"s_mov_b32 s{sREDO}, 1")
        self.kv_addr_init()
        for j in range(5): e(f"v_mov_b32 v{vNM+4*j}, 0xff800000")
        e(f"s_mov_b32 s{sOFF}, {16*h*16384}", f"s_mov_b32 s{sD}, s{sH}", f"L_rl{h}:")
        for i in range(4):
            e(f"s_add_u32 m0, s{sKVW}, {32*i}", "s_nop 0",
              f"buffer_load_dwordx4 v{vDMA}, {srd(SK)}, s{sOFF} offen offset:{i*1024} lds")
        e("s_waitcnt vmcnt(0)", "s_barrier")
        for half in range(2):
            for T in range(2):
                for s in range(4): e(self.kread(h, 0, T, s))
            e("s_waitcnt lgkmcnt(0)", f"v_add_u32 v{vKA}, s{sD}, v{vKA}", f"s_sub_u32 s{sD}, 0, s{sD}")
            for j in range(5):
                for T in range(2):
                    for s in range(4):
                        e(mfma(("v", vO + (j*2+T)*4), ("a", aK + 16*T + 4*s), ("a", aQ[h] + (j*4+s)*4), 0 if s == 0 else None))
            e("s_nop 7")
            for j in range(5):
                b = vO + j*8
                for r in range(0, 8, 2): e(f"v_max3_f32 v{vNM+4*j}, v{b+r}, v{b+r+1}, v{vNM+4*j}")
        e("s_barrier", f"s_add_u32 s{sOFF}, s{sOFF}, 16384", f"s_cmp_lg_u32 s{sOFF}, {16*(h+1)*16384}", f"s_cbranch_scc1 L_rl{h}")
        for M in range(16*h, 16*h + 4):
            self.emit_dma_straight(self.dma_kv_static("K", M) + self.dma_kv_static("V", M))
        e("s_waitcnt vmcnt(0)", "s_barrier", f"s_branch L_head{h}")
        self.ws = save

    def wo_hh(self, i):
        return [(0, 0), (0, 1), (1, 0), (2, 0), (3, 0), (1, 1), (2, 1), (3, 1)][i]
    def dma_wo(self, i, vbase):
        p, par = self.wo_hh(i)
        ops = []
        for t in range(9):
            pre = [I(f"s_add_u32 m0, s{sOM0}, {(i % 4)*OST + t*1024}")] if t % 4 == 0 else []
            same = [I(f"s_add_u32 s{sT3}, s{sWR+p}, {par*128*1152}")] if t == 0 else []
            ops.append((pre, same, I(f"buffer_load_dwordx4 v{vbase[t]}, {srd(SWO)}, s{sT3} offen offset:{(t % 4)*1024} {self.c.wo_flags} lds", id=("wo", i, t)), []))
        return ops
    def oacc(self, j, i):
        if j < 4: return ("v", 96 + (j*9 + i) * 4)
        return ("v", 240 + 4*i) if i < 4 else ("a", 160)

    def o_stream(self, N, ws):
        c = self.c
        vLN, vA1, vA0, vWO, vPL = self.o_regs
        aA, NR = 164, 12
        L = N - 1; gL = 164 * L
        sC2, sC3, sX1, sNEED, sF2, sWB, sRB, sSTEP, sN, sXX, sU, sU2, sPF, sPS, sCNT = 47, 48, 49, 51, 52, 55, 56, 57, 59, 63, 66, 67, 72, 73, 74
        Bbuf = lambda i: ("v", 16) if i == 1 else (("a", 0) if (i == 0 or i % 2 == 1) else ("a", 80))
        def areg(f):
            r = f - 36 * L
            if r < 12: return aA + 4 * (f % NR)
            return 80 - Bbuf(L)[1] + 4 * (r - 12) if r < 32 else 212 + 4 * (r - 32)
        ms = []; start = {}; last = {}; tend = {}
        def chain(i, n, j):
            for s in range(4):
                f = 36*i + 4*n + s
                start.setdefault(f, len(ms)); last[f] = len(ms)
                k, b = Bbuf(i)
                nd = [("oa", f + 3, 1)] if s == 0 else []
                if i >= 2: nd.append(("ob", i, 3, j))
                elif j == 4: nd.append(("pr", i, s))
                ms.append(I(mfma(self.oacc(j, n), ("a", areg(f)), (k, b + (j*4+s)*4), 0 if (i == 0 and s == 0) else None), needs=nd))
            tend[(j, n)] = len(ms) - 1
        for i in range(L):
            for n in range(9):
                for j in ([1, 2, 3, 4, 0] if n <= 4 else [1, 2, 3, 0]): chain(i, n, j)
        for n in range(9):
            for j in ([4] if 1 <= n <= 4 else []) + [1, 2, 3]: chain(L, n, j)
        chain(L, 0, 4)
        for n in range(9): chain(L, n, 0)
        G = Gaps(ms)
        def aread(f, v):
            n, s = divmod(f % 36, 4)
            va, off = (vA0[n], 0) if n < 4 else (vA1, 32*(n-4))
            return I(f"ds_read_b64_tr_b16 {R('a', areg(f) + 2*v, 2)}, v{va} offset:{s*9216 + v*4608 + off}", id=("oa", f, v))
        pre = [I("s_barrier", needs=[("wo", 0, 8), ("pr", 1, 3)])]
        for i in range(N):
            for r in range(36):
                for v in range(2):
                    f = 36*i + r
                    n = r // 4; k = 2*(r % 4) + v
                    if n < 2: g = 164*i - 17 + 8*n + k
                    elif i == L: g = 164*i + ((8*(n - 2) + k) * 3) // 2
                    elif n >= 6: g = start[36*i + 4*n - 4] - 4 - 3 * (n - 5) + (3 * k) // 2
                    else: g = start[36*i + 4*n - 4] - 8 + 2 * k
                    if g < 0: pre.append(aread(f, v)); continue
                    assert g <= start[f - f % 4] - 8, (f, g, start[f])
                    assert f < NR or f >= 36*L + 12 or g >= last[f - NR], (f, g)
                    G.mem[g].append(aread(f, v))
        seq = []
        gb = 143
        vCA, vCD, vCR, vLW, vCL = 16, 17, 18, 19, 20
        for i in range(L):
            g0 = 164 * i
            ev = []
            def grp(lo, hi, *ts): ev.append((g0 + lo, [(I(t), g0 + lo, g0 + hi) for t in ts]))
            def free(g):
                while G.mem[g]: g += 1
                return g
            tim = []
            if i >= 1:
                nm = "o1" if i == 1 else f"g{i % 2}"
                load = f"buffer_load_dword v{vPL}, off, {srd(SWS)}, s{sF2} sc1"
                test = [f"v_readfirstlane_b32 s{sT2}, v{vPL}", f"s_cmp_ge_u32 s{sT2}, s{sNEED}"]
                G.val[g0] += [I(test[0], needs=[("poll", i)])]
                G.val[g0 + 1] += [I(test[1]), I(f"s_cbranch_scc0 L_sp_{nm}"), I(f"L_sb_{nm}:")]
                if N == 8 and i <= 3: self.spin(nm, [load], test)
                k, b = Bbuf(i + 1)
                ob = []
                for j in (1, 2, 3, 4, 0):
                    for s in range(4):
                        same = [] if s else ([f"s_xor_b32 s{sT2}, s{sX1}, {j*4096}", f"s_add_u32 s{sT2}, s{sT2}, s{sPF}"] if j < 4 else [f"s_mov_b32 s{sT2}, s{sPS}"])
                        ob.append(([], same, I(f"buffer_load_dwordx4 {R(k, b + (j*4+s)*4, 4)}, v{vLN}, {srd(SWS)}, s{sT2} offen offset:{s*1024} {c.ob_flags}", id=("ob", i + 1, s, j))))
                tim += [(g0 + 4 + k * c.bstep, o) for k, o in enumerate(ob)]
                grp(8, 24, f"s_and_b32 s{sU}, s{sC2}, 3", f"s_xor_b32 s{sU}, s{sU}, s{sKQ}", f"s_lshl_b32 s{sU}, s{sU}, 2",
                    f"s_bfe_u32 s{sU2}, s{sC2}, 0x20002", f"s_xor_b32 s{sU2}, s{sU2}, s{sHP}", f"s_add_u32 s{sU}, s{sU}, s{sU2}")
                grp(9, 24, f"s_lshl_b32 s{sU}, s{sU}, 1", f"s_bfe_u32 s{sU2}, s{sC2}, 0x10004", f"s_add_u32 s{sU}, s{sU}, s{sU2}",
                    f"s_lshl_b32 s{sU}, s{sU}, 2", f"s_add_u32 s{sU}, s{sU}, s{sW}", f"s_mul_i32 s{sU}, s{sU}, {32*1152}")
                grp(10, 24, f"s_cmp_lt_u32 s{sC2}, 32", f"s_cselect_b32 s{sT3}, s{sU}, s{sTHR}")
                for t in range(9):
                    p_ = [f"s_add_u32 m0, s{sWB}, {t*1024}"] if t % 4 == 0 else []
                    tim.append((g0 + c.wstart + t * c.wstep, (p_, [], I(f"buffer_load_dwordx4 v{vWO+t}, {srd(SWO)}, s{sT3} offen offset:{(t % 4)*1024} {c.wo_flags} lds", id=("wo", i + 2, t)))))
            else:
                st = self.o_stores(1, vLN)[c.o1_epi:]
                tim += [(g0 + 1 + (k * c.st_span) // len(st), o[:3]) for k, o in enumerate(st)]
            tp = 90 if i else c.poll1
            if i: grp(62, tp - 2, f"s_and_b32 s{sU}, s{sC2}, 3", f"s_lshl_b32 s{sU}, s{sU}, 7", f"s_xor_b32 s{sF2}, s{sFL}, s{sU}")
            if i: grp(69, tp - 2, f"s_and_b32 s{sU}, s{sC2}, 12", f"s_lshl_b32 s{sU}, s{sU}, 8", f"s_xor_b32 s{sF2}, s{sF2}, s{sU}")
            tim.append((g0 + tp, ([], [], I(f"buffer_load_dword v{vPL}, off, {srd(SWS)}, s{sF2} sc1", id=("poll", i + 1)))))
            nb = []
            if i >= 2:
                if c.steal:
                    grp(5, 20, f"s_cmp_lt_u32 s{sN+2}, s{sN+1}", f"s_cselect_b32 s{sXX}, 2, 1", f"s_min_u32 s{sU}, s{sN+1}, s{sN+2}")
                    grp(6, 20, f"s_cmp_lt_u32 s{sN+3}, s{sU}", f"s_cselect_b32 s{sXX}, 3, s{sXX}",
                        f"s_min_u32 s{sU}, s{sU}, s{sN+3}", f"s_cmp_lt_u32 s{sU}, 3", f"s_cselect_b32 s{sXX}, s{sXX}, 64")
                else: grp(6, 20, f"s_mov_b32 s{sXX}, 64")
                grp(7, 20, f"s_cmp_lt_u32 s{sN}, 3", f"s_cselect_b32 s{sXX}, 0, s{sXX}", f"s_cmp_lt_u32 s{sC2}, 32", f"s_cselect_b32 s{sXX}, s{sXX}, 64",
                    f"s_cmp_eq_u32 s{sXX}, s{sW}", f"s_cselect_b32 s{sN}, 1, 0", f"s_cselect_b32 s{sN+1}, 1, 0", f"s_atomic_add s{sN}, s[{SK}:{SK+1}], 0 glc" if not c.diag_noatom else f"s_sub_u32 s{sN}, s{sCNT}, 3")
                for k, t in enumerate([f"v_mov_b32 v{vLW}, s{sW}", f"v_lshlrev_b32 v{vLW}, 2, v{vLW}", f"v_add_u32 v{vLW}, {4*OST}, v{vLW}",
                                       f"v_lshrrev_b32 v{vCL}, 2, v{vLN}", f"v_and_b32 v{vCL}, 12, v{vCL}", f"v_add_u32 v{vCL}, {4*OST}, v{vCL}"]):
                    G.val[g0 + 50 + 2*k].append(I(t))
                G.val[g0 + gb - 7] += [I("s_waitcnt lgkmcnt(0)"), I(f"v_mov_b32 v{vCR}, s{sN}")]
                G.val[g0 + gb - 6] += [I(f"v_add_u32 v{vCR}, s{sN+1}, v{vCR}")]
                g = free(g0 + gb - 5); assert g < g0 + gb
                G.mem[g].append(I(f"ds_write_b32 v{vLW}, v{vCR} offset:{64 * (i % 2)}", id=("cw", i)))
                nb = [("cw", i)]
                G.mem[g0 + gb + 3].append(I(f"ds_read_b32 v{vCR}, v{vCL} offset:{64 * (i % 2)}", id=("cr", i)))
                G.val[g0 + 153].append(I(f"v_readlane_b32 s{sU2}, v{vCR}, s{sXX}", needs=[("cr", i)]))
                for k in range(4): G.val[g0 + 154 + k].append(I(f"v_readlane_b32 s{sN+k}, v{vCR}, {k}"))
                grp(154, 160, f"s_lshl_b32 s{sU}, s{sU2}, 2", f"s_or_b32 s{sU}, s{sU}, s{sXX}", f"s_or_b32 s{sU}, s{sU}, 16",
                    f"s_cmp_le_u32 s{sU2}, 3", f"s_cselect_b32 s{sC3}, s{sU}, 64")
            grp(104, 128, f"s_cmp_eq_u32 s{sRB}, {3*OST}", f"s_cselect_b32 s{sSTEP}, {-3*OST & 0xffffffff:#x}, s{sWIN}", f"s_add_u32 s{sRB}, s{sRB}, s{sSTEP}")
            for k, va in enumerate(vA0 + [vA1]):
                G.val[g0 + gb - 12 + k].append(I(f"v_add_u32 v{va}, s{sSTEP}, v{va}"))
            G.waitneeds[g0 + gb + 1] += [("oa", 36*i + 35, 1), ("wo", i + 1, 8)] + nb
            if i == c.pub2: G.waitneeds[g0 + gb + 1] += [("os", 1, 3, 3)]
            G.sal[g0 + gb + 2].append(I("s_barrier"))
            if i < 2: self.stamp_gap(G, g0 + gb + 2)
            if i >= 2 and c.stamps and not c.steal:
                k0 = self.nstamp - 2
                x = [I(t) for t in (f"s_memtime s[{sST}:{sST+1}]", "s_memrealtime s[96:97]", f"s_lshl_b32 s99, s{sCNT}, 3", f"s_add_u32 s99, s99, s{sSTO}", "s_waitcnt lgkmcnt(0)",
                     f"v_accvgpr_write_b32 a252, s{sST}", f"v_accvgpr_write_b32 a253, s96",
                     f"buffer_store_dwordx2 a[252:253], off, {srd(SWS)}, s99 offset:{(k0 - 1)*8}")]
                G.val[g0 + gb + 2] += x[:-1]; G.mem[g0 + gb + 3].insert(0, x[-1])
            if i == c.pub2: G.val[g0 + gb + 3] += self.publish(2)
            G.waitneeds[g0 + 162] += ms[g0 + 164].needs
            tim.sort(key=lambda t: t[0])
            g = g0 + 1; gsame = 108
            for t, (p_, same, vm) in tim:
                g = free(max(g + 2, t))
                assert g < g0 + 147, (i, g - g0)
                G.mem[g].append(vm)
                if p_: ev.append((g - 1.5, [(I(x), g - 1, g - 1) for x in p_]))
                if same: ev.append((g - 1.5, [(I(x), g - 1, g) for x in same])); gsame = max(gsame, g - g0)
            grp(gsame + 1, 152, f"s_and_b32 s{sU}, s{sC2}, 3", f"s_lshl_b32 s{sX1}, s{sU}, 12", f"s_xor_b32 s{sU}, s{sU}, s{sKQ}", f"s_lshl_b32 s{sU}, s{sU}, 2",
                f"s_bfe_u32 s{sU2}, s{sC2}, 0x20002", f"s_xor_b32 s{sU2}, s{sU2}, s{sHP}", f"s_add_u32 s{sU}, s{sU}, s{sU2}", f"s_lshl_b32 s{sU}, s{sU}, 1",
                f"s_bfe_u32 s{sNEED}, s{sC2}, 0x10004", f"s_add_u32 s{sU}, s{sU}, s{sNEED}", f"s_mul_i32 s{sU}, s{sU}, {73728 if not c.diag_bhot else 0}",
                f"s_add_u32 s{sPF}, s{sU}, s{sOB}", f"s_add_u32 s{sPS}, s{sU}, s{sOS}", f"s_add_u32 s{sNEED}, s{sNEED}, 1")
            grp(147, 153, f"s_cmp_ge_u32 s{sRB}, {2*OST}", f"s_cselect_b32 s{sWB}, {-2*OST & 0xffffffff:#x}, s{sDUM}",
                f"s_add_u32 s{sWB}, s{sWB}, s{sRB}", f"s_add_u32 s{sWB}, s{sWB}, s{sOM0}")
            if i >= 2:
                if c.stamps: grp(158, 162, f"s_add_u32 s{sCNT}, s{sCNT}, 1")
                grp(159, 162, f"s_cmp_lt_u32 s{sC2}, 32", f"s_mov_b32 s{sC2}, s{sC3}")
            else: grp(159, 162, f"s_mov_b32 s{sC2}, {4 * (i + 2)}")
            ev.sort(key=lambda t: t[0])
            for k, (t, items) in enumerate(ev):
                cap = min([x[2] for _, it in ev[k+1:] for x in it] + [10**9])
                seq += [(x, lo, min(hi, cap)) for x, lo, hi in items]
        vL8, vOS, vE, vOW, vFA = 82, 83, 84, 90, 95
        if c.stamps and c.steal:
            self.stamp_gap(G, gL)
            if N == 7:
                for x in G.val[gL]: x.t = x.t.replace("s_memtime ", "S_MEMTIME ")
        load7 = lambda g: 2 * sum(x.k == "vm" for x in G.mem[g]) + sum(x.k == "ds" for x in G.mem[g]) + len(G.val[g])
        def putv(g, t):
            while load7(g) >= 2: g += 1
            G.val[g].append(I(t)); return g
        sal7 = [f"s_sub_u32 s84, s{sRB}, s{sSTEP}", f"s_mul_i32 s{sT}, s{sKQ}, {4*5120}", f"s_add_u32 s{sT}, s{sT}, s{sPB}"]
        if c.stamps: sal7 = [f"s_mov_b32 s{sC3}, s{sCNT}"] + sal7
        for j in range(1, 4):
            sal7 += [f"s_xor_b32 s3, s{sKQ}, {j}", f"s_mul_i32 s3, s3, {16*5120}", f"s_add_u32 s{89+j}, s3, s{sT}"]
        n_first = len(sal7)
        sal7 += [f"s_lshr_b32 s3, s{sG}, 3", f"s_lshl_b32 s{sT2}, s{sBR}, 5", f"s_add_u32 s3, s3, s{sT2}", "s_lshl_b32 s3, s3, 13",
                 f"s_lshl_b32 s{sT2}, s{sW}, 9", f"s_add_u32 s3, s3, s{sT2}", f"s_add_u32 s{sT3}, s3, {WS_SH}",
                 f"s_lshl_b32 s3, s{sKQ}, 11", f"s_add_u32 s93, s3, s{sT3}",
                 f"s_mul_i32 s{sT}, s{sKQ}, {16*5120}", f"s_add_u32 s{sT}, s{sT}, s{sPB}"]
        for j in range(1, 4):
            sal7 += [f"s_xor_b32 s{sT2}, s{sKQ}, {j}", f"s_mul_i32 s3, s{sT2}, {4*5120}", f"s_add_u32 s{sFP+j-1}, s3, s{sT}",
                     f"s_lshl_b32 s3, s{sT2}, 11", f"s_add_u32 s{sOP+j-1}, s3, s{sT3}"]
        sal7 += [f"s_mul_i32 s{sT}, s{sBR}, 1152", f"s_mul_i32 s3, s{sHP}, 288", f"s_add_u32 s{sT}, s{sT}, s3",
                 f"s_mul_i32 s3, s{sB}, {288*2304}", f"s_add_u32 s{sT}, s{sT}, s3",
                 f"s_lshl_b32 s3, s{sROW+4}, 1", f"s_add_u32 s82, s{sT}, s3", f"s_lshl_b32 s3, s{sROW}, 1", f"s_add_u32 s81, s{sT}, s3",
                 f"s_lshl_b32 s3, s{sKQ}, 5", f"s_add_u32 s3, s3, s{sD}", f"s_add_u32 s83, s3, s82",
                 f"s_lshl_b32 s3, s{sW}, 2", f"s_sub_u32 s{sFL}, s{sFL}, {WS_FLAG}", f"s_add_u32 s84, s84, s{sOM0}", f"s_mov_b32 s62, {1 if c.half else 2}",
                 f"s_add_u32 s3, s3, {WS_FLAG + 16}", f"s_add_u32 s{SK}, s{SWS}, s3", f"s_addc_u32 s{SK+1}, s{SWS+1}, 0"]
        sal7 += [f"s_sub_u32 s{sFQ+j}, s{sFQ+j}, {WS_FLAG}" for j in range(3)]
        for k, t in enumerate(sal7): seq.append((I(t), gL, gL + (24 if k < n_first else 66)))
        pk, pairs = self.pk, self.pairs
        msgs = []
        for k in range(5):
            for j in range(1, 4):
                d = 16 + ((j-1)*5 + k) * 4
                g = 0
                for q, (tj, tn) in enumerate(pairs(j, 0)[k]):
                    gg = tend[(tj, tn)] + 6
                    for t in pk(d + 2*q, self.oacc(tj, tn)[1]): gg = putv(gg, t)
                    g = max(g, gg)
                msgs.append((g + 1, k, j, I(f"buffer_store_dwordx4 v[{d}:{d+3}], v{vLN}, {srd(SWS)}, s{89+j} offen offset:{(k % 4)*1024} {c.p_flags}", id=("ps", j, k))))
        gg = tend[(4, 4)] + 5
        for r in range(4): gg = putv(gg, f"v_accvgpr_read_b32 v{76+r}, a{160+r}")
        for t in pk(80, 76): gg = putv(gg + 1, t)
        msgs.append((gg + 1, 5, 0, I(f"buffer_store_dwordx2 v[80:81], v{vL8}, {srd(SWS)}, s93 offen {c.p_flags}", id=("ps", 4, 0))))
        msgs.sort(key=lambda t: t[0])
        g = 0
        for t, k, j, vm in msgs:
            g = max(g + 2, t)
            while G.mem[g] or len(G.val[g]) > 1: g += 1
            G.mem[g].append(vm)
            if k == 4: seq.append((I(f"s_add_u32 s{89+j}, s{89+j}, 4096"), g - 1, g))
            assert g > gL + (25 if k < 5 else 67)
        if c.half:
            G.val[g + c.half].append(I(f"s_atomic_add s62, s[{SK}:{SK+1}], s{sFL}", needs=[("ps", j, 2) for j in (1, 2, 3)] + [("ps", 4, 0)]))
        setup = [f"v_lshrrev_b32 v{vL8}, 1, v{vLN}", f"v_lshrrev_b32 v3, 4, v{vLN}",
                 "v_lshrrev_b32 v4, 4, v3", "v_bfe_u32 v5, v3, 2, 2",
                 "v_cmp_eq_u32 vcc, v4, v5", "v_and_b32 v6, 1, v3", "v_lshlrev_b32 v6, 4, v6", "v_mov_b32 v7, 0x3f80",
                 "v_lshlrev_b32 v6, v6, v7", "v_cndmask_b32 v6, 0, v6, vcc", "v_and_b32 v7, 2, v3", "v_cmp_eq_u32 vcc, 0, v7",
                 f"v_mov_b32 v{vE}, 0", f"v_mov_b32 v{vE+1}, 0", f"v_cndmask_b32 v{vE+2}, 0, v6, vcc", f"v_sub_u32 v{vE+3}, v6, v{vE+2}",
                 f"v_mov_b32 v{vE+4}, 0", f"v_mov_b32 v{vE+5}, 0",
                 f"v_and_b32 v{vOS}, 15, v3", f"v_mul_u32_u24 v{vOS}, 2304, v{vOS}", f"v_lshl_add_u32 v{vOS}, v4, 3, v{vOS}"]
        for t in range(5):
            v = vOW + t
            setup += [f"v_add_u32 v7, {64*t}, v3", f"v_mul_u32_u24 v{v}, 3641, v7", f"v_lshrrev_b32 v{v}, 16, v{v}",
                      f"v_mul_u32_u24 v{v}, 2016, v{v}", f"v_lshl_add_u32 v{v}, v7, 4, v{v}"]
        setup += ["v_lshrrev_b32 v7, 5, v3", f"v_lshl_add_u32 v{vOW+4}, v7, 28, v{vOW+4}"]
        gg = gL
        for t in setup: gg = putv(gg, t)
        assert gg < g
        tr = [f"v_lshrrev_b32 v9, 4, v{vLN}", "v_and_b32 v10, 15, v9", "v_mul_u32_u24 v10, 288, v10", "v_lshrrev_b32 v9, 4, v9",
              "v_lshl_add_u32 v10, v9, 3, v10", "v_add_u32 v10, s84, v10", f"v_add_u32 v8, s84, v{vLN}",
              f"v_mov_b32 v11, s{sKQ}", f"v_add_u32 v7, s{sD}, v10"]
        for n in range(4): tr += [f"v_xor_b32 v{3+n}, {n}, v11", f"v_lshl_add_u32 v{3+n}, v{3+n}, 5, v7"]
        tr += [f"v_mov_b32 v11, s{sPI}", "v_xor_b32 v11, 1, v11", "v_lshl_add_u32 v7, v11, 7, v10"]
        gg = g + 3
        for t in tr + [f"v_mov_b32 v{134 + 4*j + r}, 0" for j in range(1, 4) for r in range(2)]: gg = putv(gg, t)
        seq += [(I(f"s_mov_b32 s{sKO}, 0"), g + 1, len(ms) - 1), (I(f"s_mov_b32 s{sWIN}, 0"), g + 1, len(ms) - 1),
                (I(f"s_mov_b32 s{sSPIN}, 0x40000"), g + 1, len(ms) - 1)]
        seq += [(I(t), len(ms) - 12, len(ms) - 1) for t in self.fpoll]
        pre = linear_waits(pre, ws)
        G.place_waits(ws, pre)
        G.unify_waits([164 * i for i in range(2, L)], 164)
        G.place_salu(seq, dense=True)
        return G, pre

    def phase_o(self):
        import copy
        e = self.e; c = self.c
        vLN, vA1 = 1, 2
        vA0 = [13, 14, 0, 12]
        vWO, vPL = 3, 15
        vL8, vOS, vE, vOW, vFA = 82, 83, 84, 90, 95
        self.o_regs = (vLN, vA1, vA0, vWO, vPL)
        def pk(dst, t):
            return [f"v_cvt_pk_bf16_f32 v{dst}, v{t}, v{t+1}", f"v_cvt_pk_bf16_f32 v{dst+1}, v{t+2}, v{t+3}"]
        pairs = lambda j, x: [((j, 0 ^ x), (j, 1 ^ x)), ((j, 2 ^ x), (j, 3 ^ x)), ((4, j), (j, 4)), ((j, 5), (j, 6)), ((j, 7), (j, 8))]
        self.pk, self.pairs = pk, pairs
        poll = self.fpoll = [f"s_mov_b32 s{59+j}, 0" for j in range(3)] + [f"s_atomic_add s{59+j}, s[{SK}:{SK+1}], s{sFQ+j} glc" for j in range(3)]
        e(f"v_lshrrev_b32 v12, 2, v0", "v_mul_u32_u24 v12, 288, v12", "v_and_b32 v14, 3, v0", "v_lshl_add_u32 v12, v14, 3, v12",
          f"v_lshlrev_b32 v{vLN}, 4, v0",
          f"s_lshl_b32 s3, s{sPI}, 7", "s_xor_b32 s3, s3, 128", f"v_add_u32 v{vA1}, s3, v12", f"s_mul_i32 s{sD}, s{sPI}, 160")
        for i in range(4):
            e(f"s_xor_b32 s3, s{sKQ}, {i}", "s_lshl_b32 s3, s3, 5", f"s_add_u32 s3, s3, s{sD}", f"v_add_u32 v{vA0[i]}, s3, v12")
        for t in range(9): e(f"v_accvgpr_read_b32 v{vWO+t}, a{240+t}")
        e(f"s_lshl_b32 s3, s{sKQ}, 2", f"s_add_u32 s3, s3, s{sHP}", "s_mul_i32 s3, s3, 147456", f"s_sub_u32 s{sOB}, s{sOB}, s3", f"s_sub_u32 s{sOS}, s{sOS}, s3",
          "s_mov_b32 s47, 4", f"s_xor_b32 s52, s{sFL}, {1 << 10}", "s_mov_b32 s56, 0", "s_mov_b32 s59, 0", "s_mov_b32 s60, 0", "s_mov_b32 s61, 0", "s_mov_b32 s62, 0",
          f"s_mov_b32 s{sWIN}, {OST}", f"s_mov_b32 s{sDUM}, {2*OST}", "s_mov_b32 s74, 3",
          f"s_lshl_b32 s3, s{sW}, 7", f"s_xor_b32 s3, s3, s{sFL}", "s_add_u32 s3, s3, 4", f"s_add_u32 s{SK}, s{SWS}, s3", f"s_addc_u32 s{SK+1}, s{SWS+1}, 0")
        ns = self.nstamp
        G7, _ = self.o_stream(7, copy.deepcopy(self.ws))
        self.nstamp = ns
        G, pre = self.o_stream(8, self.ws)
        txt = lambda G, i: [x.t for x in G.flat(164 * i, 164 * (i + 1))]
        assert txt(G, 2) == txt(G, 4) == txt(G, 6) == txt(G7, 2) == txt(G7, 4) and txt(G, 3) == txt(G, 5) == txt(G7, 3) == txt(G7, 5)
        st = lambda G, i: G.flat(164 * i, 164 * (i + 1))
        assert all(st(G, i)[-1].k == "m" for i in (1, 2, 3))
        self.raw(pre + st(G, 0) + st(G, 1) + [I("s_branch L_gz"), I(".p2align 6"), I("L_gz:")] + st(G, 2) + [I("s_cbranch_scc0 L_lastx")])
        self.raw(st(G, 3) + [I("s_cbranch_scc1 L_gz")] + st(G7, 6) + [I("s_branch L_otail"), I(".p2align 6"), I("L_lastx:")] + st(G, 7) + [I("L_otail:")])
        self.checks += [("o8", G.flat()), ("o7", G7.flat())]
        print("phase O est cycles", G.cost(), [G.cost(164*i, 164*i + 164) for i in range(8)], file=sys.stderr)
        if c.stamps and not c.steal:
            self.nstamp += 5; e("; s_memtime s_memtime s_memtime")
        if c.stamps:
            e("v_accvgpr_write_b32 a252, s48", f"buffer_store_dword a252, off, {srd(SWS)}, s{sSTO} offset:248")
        self.stamp()
        sDONE = sKO
        e("s_waitcnt vmcnt(0) lgkmcnt(0)", f"s_atomic_add s62, s[{SK}:{SK+1}], s{sFL}")
        self.stamp()
        e("s_branch L_gfirst", "L_gather:", "s_waitcnt lgkmcnt(0)", "L_gfirst:")
        for lvl in (1, 2):
            for j in range(1, 4):
                bit = (lvl - 1) * 3 + j - 1
                e(f"s_bitcmp1_b32 s{sDONE}, {bit}", f"s_cbranch_scc1 L_gl{bit}", f"s_cmp_ge_u32 s{58+j}, {lvl}", f"s_cbranch_scc0 L_gl{bit}",
                  f"s_bitset1_b32 s{sDONE}, {bit}")
                for k in ((0, 1, 2) if lvl == 1 else (3, 4)):
                    d = 16 + ((j-1)*5 + k) * 4
                    if k == 4: e(f"s_add_u32 s{sFP+j-1}, s{sFP+j-1}, 4096")
                    e(f"buffer_load_dwordx4 v[{d}:{d+3}], v{vLN}, {srd(SWS)}, s{sFP+j-1} offen offset:{(k % 4)*1024} sc1")
                if lvl == 1: e(f"buffer_load_dwordx2 v[{132+4*j}:{133+4*j}], v{vL8}, {srd(SWS)}, s{sOP+j-1} offen sc1")
                e(f"L_gl{bit}:")
        e(f"s_cmp_eq_u32 s{sDONE}, 63", "s_cbranch_scc1 L_gdone", *poll,
          f"s_sub_u32 s{sSPIN}, s{sSPIN}, 1", "s_cbranch_scc0 L_gather", "s_waitcnt lgkmcnt(0)", "L_gdone:")
        if c.stamps: e(*self.stamp_ins()[:-1]); last_stamp = self.nstamp - 1
        e("s_waitcnt vmcnt(2)")
        for lvl in (1, 2):
            if lvl == 2: e("s_waitcnt vmcnt(0)")
            if lvl == 2 and c.stamps: e(f"buffer_store_dwordx2 a[252:253], off, {srd(SWS)}, s{sSTO} offset:{last_stamp*8}")
            for j in range(1, 4):
                for k in ((0, 1, 2) if lvl == 1 else (3, 4)):
                    t0, t1 = pairs(0, j)[k]
                    d = 16 + ((j-1)*5 + k) * 4
                    e(mfma(self.oacc(*t0), ("v", vE + 2), ("v", d)), mfma(self.oacc(*t1), ("v", vE), ("v", d)))
                if lvl == 1: e(mfma(("v", 76), ("v", vE + 2), ("v", 132 + 4*j)))
        self.stamp()
        e("s_nop 7")
        for n in range(9):
            t = self.oacc(0, n)[1]
            e(*pk(t, t), I(f"ds_write_b64 v{3 + min(n, 4)}, v[{t}:{t+1}] offset:{32 * max(0, n - 4)}", id=("tw", n)))
        for t in range(5): e(I(f"ds_read_b128 v[{16+4*t}:{19+4*t}], v8 offset:{1024*t}", id=("tr", t)))
        t = self.oacc(4, 0)[1]
        e(*pk(t, t), *pk(76, 76), f"v_cmp_eq_u32 vcc, s{sKQ}, v9")
        for k in range(5):
            e(I(f"buffer_store_dwordx4 v[{16+4*k}:{19+4*k}], v{vOW+k}, {srd(SOUT)}, s81 offen {c.out_flags}", needs=[("tr", k)]))
        e(f"buffer_store_dwordx2 v[{t}:{t+1}], v{vOS}, {srd(SOUT)}, s83 offen {c.out_flags}")
        e(f"s_cmp_eq_u32 s{sPI}, 1", "s_cbranch_scc1 L_fin",
          "s_and_saveexec_b64 s[90:91], vcc", f"buffer_store_dwordx2 v[76:77], v{vOS}, {srd(SOUT)}, s82 offen offset:128 {c.out_flags}",
          "s_mov_b64 exec, s[90:91]", "L_fin:")

    def build(self):
        self.setup()
        self.phase_q()
        self.attn_schedule()
        self.head(0)
        self.head(1)
        self.stamp()
        if self.c.stop_after != "A":
            self.phase_o()
        self.e("s_waitcnt vmcnt(0) lgkmcnt(0)")
        if self.c.lite:
            self.e("; lite", "s_memrealtime s[100:101]", "s_waitcnt lgkmcnt(0)", "v_mov_b32 v4, s98", "v_mov_b32 v5, s68", "v_mov_b32 v6, s96", "v_mov_b32 v7, s100",
                   f"buffer_store_dwordx4 v[4:7], off, {srd(SWS)}, s{sSTO}")
        self.stamp()
        if self.c.amp is not None:
            print("n stamps", self.nstamp, file=sys.stderr)
            if self.c.amp[0] < 0: self.e("s_mov_b32 s96, s98")
            self.e(f"s_and_b32 s3, s{sG}, {self.c.amp[1]}", f"s_cmp_lg_u32 s3, {self.c.amp[2]}", "s_cbranch_scc1 L_end",
                   "s_sub_u32 s96, s96, s98", "s_mul_i32 s96, s96, 4", "s_add_u32 s96, s96, 20000", "L_amp:", "s_memrealtime s[100:101]", "s_waitcnt lgkmcnt(0)",
                   "s_sub_u32 s100, s100, s98", "s_cmp_lt_u32 s100, s96", "s_cbranch_scc1 L_amp")
        self.e("s_endpgm")
        self.raw(self.tailcode)
        self.redo(0)
        self.redo(1)
        self.e("L_end:")
        probs = check_hazards(self.out, "main") + check_scc(self.out, "scc")
        for nm, seq in self.checks: probs += check_hazards(seq, nm)
        for p in probs: print(p, file=sys.stderr)
        assert not probs
        hdr = open("cdna_kernels/" + NAME[:-7] + ".s.ref").read().split("; Override launch")[0]
        txt = hdr + f"; @launch grid=(256,1,1) block=(256,1,1) lds={LDS_BYTES}\n"
        txt += f""".amdgcn_target "amdgcn-amd-amdhsa--gfx950"
.text
.globl {NAME}
.p2align 8
.type {NAME},@function
{NAME}:
"""
        for x in self.out:
            if x.id and x.id[0] == "os" and x.id[1] in self.c.diag_nost and x.id[2] < 4: x = I("buffer_store_dword v1, off, s[32:35], 0 offset:512")
            if x.id and x.id[0] == "ps" and 2 in self.c.diag_nost: x = I("buffer_store_dword v1, off, s[32:35], 0 offset:512")
            if self.c.no_dma and x.k == "vm" and f"s{sOFF} offen" in x.t: continue
            txt += (x.t if x.k == "l" else "    " + " ".join(x.t.split())) + "\n"
        txt += f"""    s_endpgm
.section .rodata,"a"
.p2align 6
.amdhsa_kernel {NAME}
  .amdhsa_next_free_vgpr 512
  .amdhsa_next_free_sgpr 102
  .amdhsa_accum_offset 256
  .amdhsa_group_segment_fixed_size 0
  .amdhsa_kernarg_size 104
  .amdhsa_user_sgpr_count 2
  .amdhsa_user_sgpr_kernarg_segment_ptr 1
  .amdhsa_system_sgpr_workgroup_id_x 1
.end_amdhsa_kernel
"""
        return txt

def make(**kw):
    c = Cfg()
    for k, v in kw.items():
        assert hasattr(c, k), k
        setattr(c, k, v)
    return Gen(c).build()

if __name__ == "__main__":
    kw = {}
    out = sys.argv[1]
    for a in sys.argv[2:]:
        k, v = a.split("=", 1)
        try: v = eval(v)
        except Exception: pass
        kw[k] = v
    open(out, "w").write(make(**kw))
```
